```python
import torch

def _softmax(x, axis=-1):
    return torch.softmax(x, dim=axis)
def _gelu(x):
    return torch.nn.functional.gelu(x, approximate="tanh")
def _silu(x):
    return torch.nn.functional.silu(x)
def _sigmoid(x):
    return torch.sigmoid(x)
def _layernorm(x, axis=-1, eps=1e-5):
    m = x.mean(dim=axis, keepdim=True)
    v = x.var(dim=axis, keepdim=True, unbiased=False)
    return (x - m) / torch.sqrt(v + eps)
def _scatter_add(tgt, idx, src, axis=0):
    return tgt.clone().index_add_(axis, idx, src)
def _segment_sum(src, seg, n):
    out = torch.zeros((n,) + src.shape[1:], dtype=src.dtype)
    return out.index_add_(0, seg, src)
def _pad(x, pw):
    flat = tuple(v for pair in reversed(pw) for v in pair)
    return torch.nn.functional.pad(x, flat)

kernel_name = 'recurrent_scan__ssm_conv_h3__glu_gated_swiglu__prompt'

def setup_inputs():

    _w = (lambda a: (lambda t: t.to(torch.bfloat16) if t.is_floating_point() else t)(torch.as_tensor(a)))
    def _A_setup():
        B, S, D = 1, 2048, 448
        ks = 4
        return {
            "q": _w((lambda *s: torch.randn(*s, dtype=torch.bfloat16) * 0.05)(B, S, D)),
            "k": _w((lambda *s: torch.randn(*s, dtype=torch.bfloat16) * 0.8)(B, S, D)),
            "v": _w((lambda *s: torch.randn(*s, dtype=torch.bfloat16) * 0.8)(B, S, D)),
            "shift_k": _w((lambda *s: torch.randn(*s, dtype=torch.bfloat16) * 0.8)(D, ks) * 0.5),
            "ssm_k": _w((lambda *s: torch.randn(*s, dtype=torch.bfloat16) * 0.8)(D, S) * (1.0 / S ** 0.5)),
            "ssm_D": _w((lambda *s: torch.randn(*s, dtype=torch.bfloat16) * 0.8)(D)),
        }
    _A_in = _A_setup()

    def _B_setup():
        B, S, D, F = 1, 2048, 448, 1792
        return {
            "x": _w((lambda *s: torch.randn(*s, dtype=torch.bfloat16) * 0.05)(B, S, D)),
            "w1": _w((lambda *s: torch.randn(*s, dtype=torch.bfloat16) * 0.2)(D, F) * (2.0 / D) ** 0.5),
            "w3": _w((lambda *s: torch.randn(*s, dtype=torch.bfloat16) * 0.2)(D, F) * (2.0 / D) ** 0.5),
            "w2": _w((lambda *s: torch.randn(*s, dtype=torch.bfloat16) * 0.2)(F, D) * (2.0 / F) ** 0.5),
        }
    _B_in = _B_setup()

    return {
        "A_q": _A_in["q"],
        "A_k": _A_in["k"],
        "A_v": _A_in["v"],
        "A_shift_k": _A_in["shift_k"],
        "A_ssm_k": _A_in["ssm_k"],
        "A_ssm_D": _A_in["ssm_D"],
        "B_x": _B_in["x"],
        "B_w1": _B_in["w1"],
        "B_w3": _B_in["w3"],
        "B_w2": _B_in["w2"],
    }

def reference(A_q, A_k, A_v, A_shift_k, A_ssm_k, A_ssm_D, B_x, B_w1, B_w3, B_w2):
    def _A_ref(q, k, v, shift_k, ssm_k, ssm_D):
        B, S, D = q.shape
        ks = shift_k.shape[-1]
        k_pad = _pad(k, ((0, 0), (ks - 1, 0), (0, 0)))
        k_shift = torch.zeros_like(k)
        for t in range(ks):
            k_shift = k_shift + k_pad[:, t:t + S, :] * shift_k[:, ks - 1 - t][None, None, :]
        kv = k_shift * v
        L = 2 * S
        kv_pad = _pad(kv, ((0, 0), (0, S), (0, 0)))
        kf_pad = _pad(ssm_k, ((0, 0), (0, S)))
        kv_f = (lambda x, axes=(-2,-1): torch.fft.rfft2(x.float(), dim=axes))(kv_pad[:, None, :, :], axes=(1, 2))
        kf_f = (lambda x, axes=(-2,-1): torch.fft.rfft2(x.float(), dim=axes))(kf_pad[:, None, :], axes=(1, 2))
        kf_f = (lambda x, *d: x.permute(*d))(kf_f, 1, 2, 0)
        y_f = kv_f * kf_f[None, :, :, :]
        y = (lambda x, s, axes=(-2,-1): torch.fft.irfft2(x, s=s, dim=axes).to(torch.bfloat16))(y_f, (1, L), axes=(1, 2))[:, 0, :S, :]
        y = y + kv * ssm_D[None, None, :]
        return q * y

    def _B_ref(x, w1, w3, w2):
        gate = torch.einsum("bsd,df->bsf", x, w1)
        up = torch.einsum("bsd,df->bsf", x, w3)
        h = _silu(gate) * up
        out = torch.einsum("bsf,fd->bsd", h, w2)
        return out

    x = A_q
    xn = _layernorm(x, axis=-1)
    s = _A_ref(xn, A_k, A_v, A_shift_k, A_ssm_k, A_ssm_D)
    g = _silu(_B_ref(xn, B_w1, B_w3, B_w2))
    return x + s * g
```

```python
class Asm:
    def __init__(self):
        self.lines = []
        self.nlabel = 0
    def e(self, s):
        for ln in s.split("\n"):
            ln = ln.strip()
            if ln:
                self.lines.append("    " + ln if not ln.endswith(":") else ln)
    def c(self, s):
        self.lines.append("    ; " + s)
    def label(self, base="L"):
        self.nlabel += 1
        return f"{base}_{self.nlabel}"
    def text(self):
        return "\n".join(self.lines)

def vr(b, n=1):
    return f"v{b}" if n == 1 else f"v[{b}:{b+n-1}]"
def ar(b, n=1):
    return f"a{b}" if n == 1 else f"a[{b}:{b+n-1}]"
def sr(b, n=1):
    return f"s{b}" if n == 1 else f"s[{b}:{b+n-1}]"

def kernel_header(name):
    return f".globl {name}\n.p2align 8\n.type {name},@function\n{name}:"

def kernel_desc(name, nvgpr, accum, nsgpr=102):
    return f""".p2align 6
.amdhsa_kernel {name}
  .amdhsa_next_free_vgpr {nvgpr}
  .amdhsa_next_free_sgpr {nsgpr}
  .amdhsa_accum_offset {accum}
  .amdhsa_group_segment_fixed_size 0
  .amdhsa_kernarg_size 104
  .amdhsa_user_sgpr_count 2
  .amdhsa_user_sgpr_kernarg_segment_ptr 1
  .amdhsa_system_sgpr_workgroup_id_x 1
.end_amdhsa_kernel"""
```

```python
import sys
from asmlib import *

NAME = "recurrent_scan__ssm_conv_h3__glu_gated_swiglu__prompt"
WS_KV = 0
WS_W2F = 4 << 20
WS_H = 8 << 20
WS_ST = 16 << 20
WS_Y = 17 << 20
WS_FLAG = 20 << 20
WS_SIZE = 24 << 20

S_X, S_WSEL, S_WS, S_K, S_V, S_SHK, S_SSMK, S_SSMD, S_W2, S_OUT, S_DBG = 44, 48, 52, 56, 60, 64, 68, 72, 76, 80, 84
def srd(b): return f"s[{b}:{b+3}]"

LOG2E = 1.4426950408889634
import struct
def fbits(f): return "0x%08x" % struct.unpack("<I", struct.pack("<f", f))[0]

WS_STAMP = 22 << 20
STAMPS = False
def stamp(a, idx):
    if not STAMPS: return
    a.e("s_memrealtime s[92:93]\ns_memtime s[94:95]\ns_waitcnt lgkmcnt(0)")
    a.e(f"v_writelane_b32 v143, s92, {idx}")
    a.e(f"v_writelane_b32 v143, s94, {32+idx}")
def stamp_flush(a):
    if not STAMPS: return
    L = a.label("Lstamp")
    a.e(f"s_lshl_b32 s96, s2, 3\ns_add_u32 s96, s96, s3\ns_lshl_b32 s96, s96, 8\ns_add_u32 s96, s96, {WS_STAMP}")
    a.e("v_lshlrev_b32 v142, 2, v1")
    a.e(f"buffer_store_dword v143, v142, {srd(S_WS)}, s96 offen")

def prologue(a, nwg):
    a.e(f"s_cmp_ge_u32 s2, {nwg}")
    a.e("s_cbranch_scc1 " + a.endlabel)
    a.e("s_load_dwordx16 s[16:31], s[0:1], 0")
    a.e("s_load_dwordx8 s[32:39], s[0:1], 64")
    a.e("s_load_dwordx2 s[40:41], s[0:1], 96")
    a.e("v_and_b32 v1, 63, v0")
    if STAMPS: a.e("v_mov_b32 v143, 0")
    a.e("v_lshrrev_b32 v2, 6, v0")
    a.e("s_nop 0")
    a.e("v_readfirstlane_b32 s3, v2")
    a.e("s_waitcnt lgkmcnt(0)")
    def mk(b, p, size):
        a.e(f"s_mov_b32 s{b}, s{p}\ns_mov_b32 s{b+1}, s{p+1}\ns_mov_b32 s{b+2}, {size}\ns_mov_b32 s{b+3}, 0x20000")
    mk(S_X, 16, 1835008); mk(S_K, 18, 1835008); mk(S_V, 20, 1835008); mk(S_SHK, 22, 3584)
    mk(S_SSMK, 24, 1835008); mk(S_SSMD, 26, 896); mk(S_W2, 34, 1605632); mk(S_OUT, 36, 1835008)
    mk(S_DBG, 38, 256); mk(S_WS, 40, WS_SIZE)
    a.e("s_cmp_ge_u32 s3, 4")
    a.e(f"s_cselect_b32 s{S_WSEL}, s32, s30")
    a.e(f"s_cselect_b32 s{S_WSEL+1}, s33, s31")
    a.e(f"s_mov_b32 s{S_WSEL+2}, 1605632\ns_mov_b32 s{S_WSEL+3}, 0x20000")

XRING = 0; NX = 3
WRING = 49152; NW = 5
G1_ST = 131072
G1_CS = G1_ST + 4096

def gemm1(a, sc1=False, do_stats=True):
    e = a.e
    SC = " sc1" if sc1 else ""
    a.c("=== GEMM1 ===")
    e("s_and_b32 s4, s3, 1\ns_lshr_b32 s5, s3, 1")
    e("s_and_b32 s8, s2, 7\ns_lshr_b32 s9, s2, 3")
    e("s_and_b32 s10, s9, 3\ns_lshr_b32 s11, s9, 2")
    e("s_lshr_b32 s6, s8, 1\ns_lshl_b32 s6, s6, 2\ns_add_u32 s6, s6, s10")
    e("s_and_b32 s7, s8, 1\ns_mul_i32 s7, s7, 7\ns_add_u32 s7, s7, s11")
    e("v_lshrrev_b32 v20, 3, v1\nv_and_b32 v21, 7, v1\nv_lshrrev_b32 v22, 4, v1")
    e("s_lshl_b32 s8, s3, 4")
    e("v_add_u32 v23, s8, v20")
    e("v_mul_u32_u24 v23, 896, v23")
    e("v_xor_b32 v24, v21, v22")
    e("v_lshl_add_u32 v2, v24, 4, v23")
    e("v_xor_b32 v24, 4, v24")
    e("v_lshl_add_u32 v3, v24, 4, v23")
    e("v_add_u32 v3, 7168, v3")
    e("s_and_b32 s8, s3, 3\ns_lshl_b32 s8, s8, 3")
    e("v_add_u32 v23, s8, v22")
    e("v_mul_u32_u24 v23, 3584, v23")
    e("s_lshr_b32 s9, s3, 2\ns_lshl_b32 s9, s9, 2")
    e("v_or_b32 v24, s9, v22")
    e("v_bfe_u32 v25, v1, 1, 3")
    e("v_xor_b32 v24, v24, v25")
    e("v_and_b32 v25, 1, v1")
    e("v_lshl_or_b32 v24, v24, 1, v25")
    e("v_lshl_add_u32 v4, v24, 4, v23")
    e("v_and_b32 v23, 31, v1")
    e("v_lshrrev_b32 v24, 5, v1")
    e("v_bfe_u32 v25, v1, 1, 3")
    e("s_lshl_b32 s8, s4, 13")
    e("v_lshlrev_b32 v26, 7, v23")
    e("v_add_u32 v26, s8, v26")
    if XRING: e(f"v_add_u32 v26, {XRING}, v26")
    for st in range(4):
        e(f"v_or_b32 v27, {2*st}, v24")
        e("v_xor_b32 v27, v27, v25")
        e(f"v_lshl_add_u32 v{5+st}, v27, 4, v26")
    e("v_bfe_u32 v23, v1, 4, 1")
    e("v_bfe_u32 v25, v1, 2, 2")
    e("v_lshl_or_b32 v26, v23, 2, v25")
    e("v_lshl_add_u32 v27, v24, 3, v25")
    e("v_lshlrev_b32 v27, 8, v27")
    e("v_lshl_add_u32 v27, v23, 13, v27")
    e("v_and_b32 v28, 3, v1")
    e("v_lshl_add_u32 v27, v28, 3, v27")
    e(f"v_add_u32 v27, {WRING}, v27")
    for j in range(2):
        e(f"s_lshl_b32 s8, s5, 1\ns_add_u32 s8, s8, {j}")
        e("v_xor_b32 v28, s8, v26")
        e(f"v_lshl_add_u32 v{9+j}, v28, 5, v27")
        e(f"v_add_u32 v{11+j}, 49152, v{9+j}")
    e("v_mov_b32 v13, 0x3f803f80")
    for r in range(14, 20): e(f"v_mov_b32 v{r}, 0")
    e("s_mul_i32 s88, s6, 114688")
    e("s_lshl_b32 s89, s7, 8")
    e("s_lshl_b32 s90, s3, 11")

    issued = []
    def issue_x(c):
        slot = c % NX
        for ee in range(2):
            e(f"s_add_u32 m0, s90, {XRING + slot*16384 + ee*1024}")
            e(f"s_add_u32 s8, s88, {c*128}")
            e(f"buffer_load_dwordx4 v{2+ee}, {srd(S_X)}, s8 offen lds")
        issued.append(("X", c))
    def issue_w(j):
        slot = j % NW
        for ee in range(2):
            e(f"s_add_u32 m0, s90, {WRING + slot*16384 + ee*1024}")
            e(f"s_add_u32 s8, s89, {(32*j + 4*ee)*3584}")
            e(f"buffer_load_dwordx4 v4, {srd(S_WSEL)}, s8 offen lds")
        issued.append(("W", j))
    stamp(a, 0)
    issue_x(0); issue_w(0); issue_w(1); issue_x(1); issue_w(2); issue_w(3); issue_x(2); issue_w(4)

    FR = [20, 36]
    def acc(j, t): return 64 + (2*j + t) * 16
    def reads(s):
        p = s // 2; st2 = s % 2; c = p // 2; st = s % 4
        f = FR[s % 2]
        wslot = p % NW; xslot = c % NX
        for j in range(2):
            base = 9 + j if wslot < 3 else 11 + j
            so = (wslot if wslot < 3 else wslot - 3) * 16384
            for t in range(2):
                e(f"ds_read_b64_tr_b16 v[{f+4*j+2*t}:{f+4*j+2*t+1}], v{base} offset:{so + (16*st2 + 4*t)*256}")
        for t in range(2):
            e(f"ds_read_b128 v[{f+8+4*t}:{f+8+4*t+3}], v{5+st} offset:{xslot*16384 + t*4096}")
    def mfmas(s):
        f = FR[s % 2]
        for j in range(2):
            for t in range(2):
                A = vr(f + 4*j, 4); B = vr(f + 8 + 4*t, 4); C = vr(acc(j, t), 16)
                e(f"v_mfma_f32_32x32x16_bf16 {C}, {A}, {B}, {C if s > 0 else 0}")
        if do_stats:
            L = a.label("Lst")
            e(f"s_cmp_lg_u32 s5, {s % 4}\ns_cbranch_scc1 {L}")
            for t in range(2):
                for q in range(4):
                    r = f + 8 + 4*t + q
                    e(f"v_dot2_f32_bf16 v{14+2*t}, v{r}, v13, v{14+2*t}")
                    e(f"v_dot2_f32_bf16 v{15+2*t}, v{r}, v{r}, v{15+2*t}")
            e(f"{L}:")
            L = a.label("Lcs")
            e(f"s_cmp_lg_u32 s4, {s % 2}\ns_cbranch_scc1 {L}")
            for q in range(4):
                for j in range(2):
                    r = f + 4*j + q
                    e(f"v_dot2_f32_bf16 v{18+j}, v{r}, v13, v{18+j}")
            e(f"{L}:")
    for p in range(14):
        need = max(issued.index(("X", p // 2)), issued.index(("W", p)))
        n_after = 2 * (len(issued) - 1 - need)
        e(f"s_waitcnt vmcnt({n_after}) lgkmcnt(0)")
        e("s_barrier")
        stamp(a, 1 + p)
        if p >= 1:
            if p % 2 == 0 and (p // 2 - 1 + NX) < 7: issue_x(p // 2 - 1 + NX)
            if p - 1 + NW < 14: issue_w(p - 1 + NW)
        reads(2*p)
        if p >= 1: mfmas(2*p - 1)
        reads(2*p + 1)
        e("s_waitcnt lgkmcnt(6)")
        mfmas(2*p)
    e("s_waitcnt lgkmcnt(0)")
    mfmas(27)
    a.c("--- GEMM1 epilogue")
    stamp(a, 15)
    e("s_nop 4")
    for r in range(14, 20):
        e(f"v_mov_b32 v{r+6}, v{r}")
    e("s_nop 1")
    for r in range(14, 20):
        e(f"v_permlane32_swap_b32 v{r}, v{r+6}")
    e("s_nop 1")
    for r in range(14, 20):
        e(f"v_add_f32 v{r}, v{r}, v{r+6}")
    e("v_and_b32 v26, 31, v1")
    e("s_lshl_b32 s8, s4, 9")
    e("v_lshl_add_u32 v27, v26, 3, s8")
    e("s_lshl_b32 s9, s5, 10")
    e("v_add_u32 v28, s9, v27")
    e(f"ds_write_b64 v28, v[14:15] offset:{G1_ST - 65536 if False else 0}") if False else None
    e(f"v_add_u32 v28, {G1_ST}, v28")
    e("ds_write_b64 v28, v[14:15]")
    e("ds_write_b64 v28, v[16:17] offset:256")
    e("s_lshl_b32 s8, s4, 10\ns_lshl_b32 s9, s5, 8\ns_add_u32 s8, s8, s9")
    e(f"s_add_u32 s8, s8, {G1_CS}")
    e("v_lshl_add_u32 v29, v26, 2, s8")
    e("ds_write_b32 v29, v18")
    e("ds_write_b32 v29, v19 offset:128")
    e("s_waitcnt lgkmcnt(0)")
    e("s_barrier")
    e(f"v_add_u32 v27, {G1_ST}, v27")
    for t in range(2):
        for m in range(4):
            e(f"ds_read_b64 v[{32+8*t+2*m}:{33+8*t+2*m}], v27 offset:{m*1024 + t*256}")
    e("v_lshrrev_b32 v24, 5, v1")
    e("s_lshl_b32 s9, s5, 8")
    e(f"s_add_u32 s9, s9, {G1_CS}")
    e("v_lshl_add_u32 v30, v24, 4, s9")
    e("s_waitcnt lgkmcnt(0)")
    e(f"s_mov_b32 s10, {fbits(1.0/448)}")
    e(f"s_mov_b32 s11, {fbits(-LOG2E)}")
    for t in range(2):
        b = 32 + 8*t; o = 14 + 4*t
        e(f"v_add_f32 v{b}, v{b}, v{b+2}\nv_add_f32 v{b+4}, v{b+4}, v{b+6}\nv_add_f32 v{b}, v{b}, v{b+4}")
        e(f"v_add_f32 v{b+1}, v{b+1}, v{b+3}\nv_add_f32 v{b+5}, v{b+5}, v{b+7}\nv_add_f32 v{b+1}, v{b+1}, v{b+5}")
        e(f"v_mul_f32 v{b}, s10, v{b}")
        e(f"v_mul_f32 v{b+1}, s10, v{b+1}")
        e(f"v_fma_f32 v{b+1}, -v{b}, v{b}, v{b+1}")
        e(f"v_max_f32 v{b+1}, 0, v{b+1}")
        e(f"v_add_f32 v{b+1}, {fbits(1e-5)}, v{b+1}")
        e(f"v_rsq_f32 v{b+1}, v{b+1}")
        e(f"v_sub_f32 v{o}, 0, v{b}")
        e(f"v_mov_b32 v{o+1}, v{b+1}")
        e(f"v_mul_f32 v{o+2}, s11, v{b+1}")
        e(f"v_mul_f32 v{o+3}, v{b+1}, v{b+1}")
    L = a.label("Lnost")
    e("s_or_b32 s8, s7, s5\ns_cmp_lg_u32 s8, 0\ns_cbranch_scc1 " + L)
    e("v_and_b32 v26, 31, v1")
    e("s_lshl_b32 s8, s6, 10\ns_lshl_b32 s9, s4, 9\ns_add_u32 s8, s8, s9")
    e(f"s_add_u32 s8, s8, {WS_ST}")
    e("v_lshlrev_b32 v26, 3, v26")
    e(f"buffer_store_dwordx2 v[32:33], v26, {srd(S_WS)}, s8 offen{SC}")
    e(f"buffer_store_dwordx2 v[40:41], v26, {srd(S_WS)}, s8 offen offset:256{SC}")
    e(f"{L}:")
    e("s_lshl_b32 s8, s6, 2\ns_lshl_b32 s9, s4, 1\ns_add_u32 s8, s8, s9\ns_mul_i32 s8, s8, 112")
    e("s_lshl_b32 s9, s7, 3\ns_add_u32 s8, s8, s9\ns_lshl_b32 s9, s5, 1\ns_add_u32 s8, s8, s9")
    e(f"s_lshl_b32 s8, s8, 10\ns_add_u32 s8, s8, {WS_H}")
    e(f"s_add_u32 s9, s8, {112*1024}")
    e("v_lshlrev_b32 v31, 4, v1")
    for j in range(2):
        for npp in range(2):
            for mat in range(2):
                for q in range(2):
                    d = 32 + 16*npp + 8*mat + 4*q
                    e(f"ds_read_b128 v[{d}:{d+3}], v30 offset:{npp*1024 + j*128 + (16*mat + 8*q)*4}")
        e("s_waitcnt lgkmcnt(0)")
        for r in range(16):
            e(f"v_add_f32 v{32+r}, v{32+r}, v{48+r}")
        for t in range(2):
            A = acc(j, t); o = 14 + 4*t
            T = 48
            for r in range(8):
                e(f"v_fma_f32 v{A+r}, v{o}, v{32+r}, v{A+r}")
                e(f"v_fma_f32 v{A+8+r}, v{o}, v{40+r}, v{A+8+r}")
            for r in range(8):
                e(f"v_mul_f32 v{T+r}, v{o+2}, v{A+r}")
            for r in range(8):
                e(f"v_exp_f32 v{T+r}, v{T+r}")
            for r in range(8):
                e(f"v_mul_f32 v{A+r}, v{A+r}, v{A+8+r}")
            for r in range(8):
                e(f"v_add_f32 v{T+r}, 1.0, v{T+r}")
            for r in range(8):
                e(f"v_rcp_f32 v{T+r}, v{T+r}")
            for r in range(8):
                e(f"v_mul_f32 v{A+r}, v{A+r}, v{T+r}")
            for q in range(4):
                e(f"v_cvt_pk_bf16_f32 v{A+8+q}, v{A+2*q}, v{A+2*q+1}")
            e(f"buffer_store_dwordx4 v[{A+8}:{A+11}], v31, {srd(S_WS)}, s{8+t} offen offset:{j*1024}{SC}")

def phase_a(a, sidx, sc1=False):
    e = a.e
    SC = " sc1" if sc1 else ""
    a.c("=== phase A ===")
    RW = 20480
    e(f"s_mul_i32 s90, s3, {RW}")
    e("v_lshrrev_b32 v20, 3, v1\nv_and_b32 v21, 7, v1")
    e("v_mul_u32_u24 v2, 896, v20")
    e("v_lshl_add_u32 v2, v21, 4, v2")
    e("v_lshlrev_b32 v31, 4, v1")
    Lskip = a.label("Lw2skip")
    e(f"s_lshl_b32 s8, s{sidx}, 3\ns_add_u32 s8, s8, s3")
    e(f"s_cmp_ge_u32 s8, 196\ns_cbranch_scc1 {Lskip}")
    e("s_mul_hi_u32 s9, s8, 0x24924925")
    e("s_mul_i32 s10, s9, 7\ns_sub_u32 s10, s8, s10")
    e("s_mul_i32 s11, s9, 57344\ns_lshl_b32 s12, s10, 7\ns_add_u32 s11, s11, s12")
    for i in range(8):
        e(f"s_add_u32 m0, s90, {i*1024}")
        e(f"s_add_u32 s12, s11, {i*7168}")
        e(f"buffer_load_dwordx4 v2, {srd(S_W2)}, s12 offen lds")
    e("v_lshrrev_b32 v22, 5, v1\nv_bfe_u32 v23, v1, 2, 2\nv_lshl_add_u32 v22, v22, 2, v23\nv_lshlrev_b32 v22, 7, v22")
    e("v_bfe_u32 v23, v1, 4, 1\nv_lshl_add_u32 v22, v23, 5, v22\nv_and_b32 v23, 3, v1\nv_lshl_add_u32 v22, v23, 3, v22")
    e("v_add_u32 v22, s90, v22")
    e("s_mul_i32 s12, s10, 224\ns_lshl_b32 s13, s9, 2\ns_add_u32 s12, s12, s13\ns_lshl_b32 s12, s12, 10")
    e(f"s_add_u32 s12, s12, {WS_W2F}\ns_add_u32 s13, s12, {112*1024}")
    e("s_waitcnt vmcnt(0)")
    for ks in range(4):
        for mt in range(2):
            d = 32 + (ks*2 + mt) * 4
            for t in range(2):
                e(f"ds_read_b64_tr_b16 v[{d+2*t}:{d+2*t+1}], v22 offset:{(16*ks + 8*t)*128 + 64*mt}")
    e("s_waitcnt lgkmcnt(0)")
    for ks in range(4):
        for mt in range(2):
            d = 32 + (ks*2 + mt) * 4
            e(f"buffer_store_dwordx4 v[{d}:{d+3}], v31, {srd(S_WS)}, s{12+mt} offen offset:{ks*1024}{SC}")
    e(f"{Lskip}:")
    Lk = a.label("Lkvskip")
    e(f"s_cmp_ge_u32 s3, 7\ns_cbranch_scc1 {Lk}")
    GP = 1088
    e(f"s_mul_i32 s8, s{sidx}, 57344\ns_lshl_b32 s9, s3, 7\ns_add_u32 s8, s8, s9")
    e("s_sub_u32 s9, s8, 7168")
    e("v_add_u32 v3, s9, v2")
    for (S, base) in ((S_K, 0), (S_V, 9*GP)):
        e(f"s_add_u32 m0, s90, {base}")
        e("s_nop 0")
        e(f"buffer_load_dwordx4 v3, {srd(S)}, 0 offen lds")
        for G in range(8):
            e(f"s_add_u32 m0, s90, {base + (G+1)*GP}")
            e(f"s_add_u32 s9, s8, {G*7168}")
            e(f"buffer_load_dwordx4 v2, {srd(S)}, s9 offen lds")
    e("s_lshl_b32 s9, s3, 9")
    e("v_lshlrev_b32 v4, 6, v20")
    for q in range(4):
        e(f"buffer_load_dwordx4 v[{120+4*q}:{123+4*q}], v4, {srd(S_SHK)}, s9 offen offset:{16*q}")
    e(f"v_mul_u32_u24 v5, {GP}, v21\nv_lshl_add_u32 v5, v20, 4, v5\nv_add_u32 v5, s90, v5")
    e("v_mul_u32_u24 v6, 69632, v20\nv_sub_u32 v7, 7, v21\nv_lshl_add_u32 v6, v7, 4, v6")
    e("s_mul_i32 s10, s3, 557056")
    e(f"s_lshr_b32 s11, s{sidx}, 1\ns_sub_u32 s11, 15, s11\ns_mul_i32 s11, s11, 272\ns_add_u32 s10, s10, s11")
    e(f"s_and_b32 s11, s{sidx}, 1\ns_lshl_b32 s11, s11, 7\ns_sub_u32 s11, 128, s11\ns_add_u32 s10, s10, s11")
    if WS_KV: e(f"s_add_u32 s10, s10, {WS_KV}")
    e("s_waitcnt vmcnt(0)")
    KR = 32; VR = 80
    def off(i): return GP + 128*i if i >= 0 else (8 + i) * 128
    for i in range(-4, 8):
        r = KR + (i+4)*4
        e(f"ds_read_b128 v[{r}:{r+3}], v5 offset:{off(i)}")
    for i in range(-1, 8):
        r = VR + (i+1)*4
        e(f"ds_read_b128 v[{r}:{r+3}], v5 offset:{9*GP + off(i)}")
    e("s_mov_b32 s14, 0xffff0000")
    e("s_waitcnt lgkmcnt(0)")
    UF = [26, 27, 28, 29, 30, 116, 117, 118, 119]
    def unpack(dst, src, hi):
        if hi: e(f"v_and_b32 v{dst}, s14, v{src}")
        else: e(f"v_lshlrev_b32 v{dst}, 16, v{src}")
    for c in range(8):
        q = c >> 1; hi = c & 1
        for i in range(12): unpack(8 + i, KR + i*4 + q, hi)
        for j in range(4): unpack(22 + j, 120 + c*2 + (j >> 1), j & 1)
        for i in range(-1, 8):
            u = UF[i+1]
            e(f"v_mul_f32 v{u}, v22, v{8 + i + 4}")
            for lag in range(1, 4):
                e(f"v_fmac_f32 v{u}, v{22+lag}, v{8 + i + 4 - lag}")
        for i in range(-1, 8):
            unpack(8 + i + 1, VR + (i+1)*4 + q, hi)
        for i in range(-1, 8):
            e(f"v_mul_f32 v{UF[i+1]}, v{UF[i+1]}, v{8+i+1}")
        P = 136
        for j in range(4):
            e(f"v_cvt_pk_bf16_f32 v{P+j}, v{UF[6-2*j+1]}, v{UF[5-2*j+1]}")
            e(f"v_cvt_pk_bf16_f32 v{P+4+j}, v{UF[7-2*j+1]}, v{UF[6-2*j+1]}")
        e(f"s_add_u32 s11, s10, {c*8704}\ns_add_u32 s12, s10, {c*8704 + 4352}")
        e(f"buffer_store_dwordx4 v[{P}:{P+3}], v6, {srd(S_WS)}, s11 offen{SC}")
        e(f"buffer_store_dwordx4 v[{P+4}:{P+7}], v6, {srd(S_WS)}, s12 offen{SC}")
        e("s_nop 1")
    e(f"{Lk}:")

CV_HA = 0
CV_UB = 9216
CV_YB = CV_UB + 4*7168
S_T0 = 96

def conv(a, sidx, sc1=False):
    e = a.e
    SC = " sc1" if sc1 else ""
    a.c("=== conv ===")
    e(f"s_and_b32 s8, s3, 1\ns_lshl_b32 s9, s{sidx}, 1\ns_add_u32 s9, s9, s8\ns_lshl_b32 s9, s9, 12")
    e(f"s_add_u32 s{S_T0}, s24, s9\ns_addc_u32 s{S_T0+1}, s25, 0\ns_mov_b32 s{S_T0+2}, 4096\ns_mov_b32 s{S_T0+3}, 0x20000")
    e("s_lshr_b32 s10, s3, 1\ns_lshl_b32 s10, s10, 8")
    e(f"s_mul_i32 s11, s8, 4608\ns_add_u32 s11, s11, s10")
    if CV_HA: e(f"s_add_u32 s11, s11, {CV_HA}")
    e("v_lshlrev_b32 v2, 2, v1\nv_add_u32 v2, s10, v2\nv_subrev_u32 v2, 252, v2")
    for i in range(5):
        L = None
        if i == 4:
            L = a.label("Lh")
            e(f"s_cmp_ge_u32 s3, 4\ns_cbranch_scc1 {L}")
        e(f"s_add_u32 m0, s11, {i*1024}")
        e(f"v_add_u32 v3, {i*1024}, v2")
        e(f"buffer_load_dword v3, {srd(S_T0)}, 0 offen lds")
        if L: e(f"{L}:")
    e(f"s_lshr_b32 s8, s3, 1\ns_mul_i32 s9, s{sidx}, 17408\ns_mul_i32 s10, s8, 4352\ns_add_u32 s9, s9, s10")
    if WS_KV: e(f"s_add_u32 s9, s9, {WS_KV}")
    e("s_nop 4")
    e(f"s_add_u32 s{S_T0+4-4}, s40, s9") if False else None
    S_T1 = 12
    e(f"s_add_u32 s{S_T1}, s40, s9\ns_addc_u32 s{S_T1+1}, s41, 0\ns_mov_b32 s{S_T1+2}, 4352\ns_mov_b32 s{S_T1+3}, 0x20000")
    e(f"s_mul_i32 s10, s8, 7168\ns_and_b32 s11, s3, 1\ns_lshl_b32 s11, s11, 10\ns_add_u32 s10, s10, s11\ns_add_u32 s10, s10, {CV_UB}")
    e("v_lshlrev_b32 v4, 4, v1\nv_add_u32 v4, s11, v4")
    for i in range(4):
        L = None
        if i == 3:
            L = a.label("Lu")
            e(f"s_bitcmp1_b32 s3, 0\ns_cbranch_scc1 {L}")
        e(f"s_add_u32 m0, s10, {i*2048}")
        e(f"v_add_u32 v3, {i*2048}, v4")
        e(f"buffer_load_dwordx4 v3, {srd(S_T1)}, 0 offen lds{SC}")
        if L: e(f"{L}:")
    e(f"s_lshr_b32 s8, s3, 2\ns_lshl_b32 s9, s{sidx}, 1\ns_add_u32 s9, s9, s8\ns_lshl_b32 s9, s9, 1")
    e("v_mov_b32 v3, 0")
    e(f"buffer_load_ushort v19, v3, {srd(S_SSMD)}, s9 offen")
    e("s_bfe_u32 s8, s3, 0x10001")
    e("s_and_b32 s9, s3, 1")
    e("s_cmp_ge_u32 s3, 4")
    e("s_cselect_b32 s10, 1, 0")
    e("s_lshl_b32 s11, s9, 9\ns_add_u32 s11, s11, 1024\ns_cselect_b32 s11, s11, 0") if False else None
    e("s_lshl_b32 s11, s9, 9\ns_add_u32 s11, s11, 1024\ns_cmp_ge_u32 s3, 4\ns_cselect_b32 s11, s11, 0")
    e("s_cselect_b32 s91, 7, 8")
    e("s_cselect_b32 s92, 2, 4")
    e("v_and_b32 v20, 15, v1\nv_lshrrev_b32 v21, 4, v1")
    e("v_lshlrev_b32 v22, s91, v21\nv_add_u32 v22, s11, v22")
    e("v_lshl_add_u32 v5, v20, 3, v22\nv_lshlrev_b32 v5, 1, v5")
    e(f"s_mul_i32 s93, s8, 4608\ns_add_u32 s93, s93, {CV_HA}\nv_add_u32 v5, s93, v5")
    e("v_or_b32 v23, 8, v20")
    e("v_cmp_gt_u32 vcc, 8, v20")
    e("s_nop 1")
    e("v_cndmask_b32 v24, 0, 1, vcc")
    e("v_mov_b32 v25, s9")
    e("s_cmp_ge_u32 s3, 4\ns_cselect_b64 vcc, -1, 0")
    e("s_nop 1")
    e("v_cndmask_b32 v23, v20, v23, vcc")
    e("v_cndmask_b32 v24, v25, v24, vcc")
    e("v_sub_u32 v23, 15, v23\nv_lshrrev_b32 v25, 7, v22\nv_add_u32 v23, v23, v25")
    e("v_mul_u32_u24 v23, 272, v23")
    e("v_mul_u32_u24 v24, 7168, v24")
    e(f"s_mul_i32 s93, s8, 14336\ns_add_u32 s93, s93, {CV_UB}")
    e("v_add3_u32 v6, v23, v24, s93")
    R = 32; S = 68; B = 104; ACC = 120
    for r in range(16): e(f"v_mov_b32 v{ACC+r}, 0")
    e("s_waitcnt vmcnt(0)")
    e("s_barrier")
    queue = []
    def rdA(slot, off):
        e(f"ds_read_b128 v[{R+4*slot}:{R+4*slot+3}], v5 offset:{off}")
        queue.append(("A", slot))
    def rdB(q, off):
        e(f"ds_read_b128 v[{B+4*(q%4)}:{B+4*(q%4)+3}], v6 offset:{off}")
        queue.append(("B", q % 4))
    def wait_for(tags):
        idx = -1
        for t in tags:
            ii = [i for i, x in enumerate(queue) if x == t]
            if ii: idx = max(idx, ii[-1])
        if idx >= 0:
            n = len(queue) - 1 - idx
            e(f"s_waitcnt lgkmcnt({n})")
            del queue[:idx+1]
    rdA(0, 0); rdA(1, 16); rdB(0, 0); rdA(2, 32); rdB(1, 16)
    e("s_mov_b32 s93, 0")
    Lloop = a.label("Lconv")
    e(f"{Lloop}:")
    e("s_bitcmp1_b32 s93, 0\ns_cselect_b32 s94, 16, 0\ns_add_u32 s94, s94, 128")
    e("v_add_u32 v7, s94, v6")
    entry_queue = list(queue)
    for q in range(8):
        if q <= 5: rdA(q + 3, 16*(q+3))
        elif q == 6: rdA(0, 128); rdA(1, 144)
        else: rdA(2, 160)
        if q <= 5: rdB(q + 2, 16*(q+2))
        else:
            e(f"ds_read_b128 v[{B+4*((q+2)%4)}:{B+4*((q+2)%4)+3}], v7 offset:{16*(q-6)}")
            queue.append(("B", (q+2) % 4))
        need = []
        def wait_oldest(tags):
            idx = -1
            for t in tags:
                ii = [i for i, x in enumerate(queue) if x == t]
                if ii: idx = max(idx, ii[0])
            if idx >= 0:
                n = len(queue) - 1 - idx
                e(f"s_waitcnt lgkmcnt({n})")
                del queue[:idx+1]
        wait_oldest([("A", q), ("A", q+1), ("B", q % 4)])
        if q == 0:
            e(f"v_mov_b32 v{S}, v{R+1}\nv_mov_b32 v{S+1}, v{R+2}")
        for i in range(4):
            e(f"v_mov_b32 v{S+4*q+2+i}, v{R+4*q+3+i}")
        Bq = vr(B + 4*(q % 4), 4)
        e(f"v_mfma_f32_16x16x32_bf16 {vr(ACC,4)}, {vr(R+4*q,4)}, {Bq}, {vr(ACC,4)}")
        e(f"v_mfma_f32_16x16x32_bf16 {vr(ACC+8,4)}, {vr(R+4*q+2,4)}, {Bq}, {vr(ACC+8,4)}")
        e(f"v_mfma_f32_16x16x32_bf16 {vr(ACC+4,4)}, {vr(S+4*q,4)}, {Bq}, {vr(ACC+4,4)}")
        e(f"v_mfma_f32_16x16x32_bf16 {vr(ACC+12,4)}, {vr(S+4*q+2,4)}, {Bq}, {vr(ACC+12,4)}")
    assert queue == entry_queue, (queue, entry_queue)
    e("v_add_u32 v5, 128, v5\nv_mov_b32 v6, v7")
    e(f"s_add_u32 s93, s93, 1\ns_cmp_lt_u32 s93, s92\ns_cbranch_scc1 {Lloop}")
    e("s_waitcnt lgkmcnt(0)")
    e("s_nop 7")
    e(f"s_lshl_b32 s8, s3, 12\ns_add_u32 s8, s8, {CV_YB}")
    e("v_lshl_add_u32 v2, v1, 4, s8")
    for a2 in range(4):
        e(f"ds_write_b128 v2, {vr(ACC+4*a2,4)} offset:{a2*1024}")
    e("s_waitcnt lgkmcnt(0)")
    e("s_barrier")
    e("s_lshr_b32 s8, s3, 2\ns_and_b32 s9, s3, 3")
    e(f"s_lshl_b32 s10, s8, 13\ns_lshl_b32 s11, s9, 8\ns_add_u32 s10, s10, s11\ns_add_u32 s10, s10, {CV_YB}")
    e("v_lshl_add_u32 v2, v1, 2, s10")
    Y = 32
    for b in range(2):
        for a2 in range(4):
            e(f"ds_read_b32 v{Y + 2*a2 + b}, v2 offset:{b*4096 + a2*1024}")
    e("v_lshrrev_b32 v20, 2, v1\nv_and_b32 v21, 3, v1")
    e("v_sub_u32 v22, 15, v20\nv_mul_u32_u24 v22, 272, v22")
    e("s_lshl_b32 s11, s9, 2\ns_sub_u32 s11, 15, s11")
    e("v_sub_u32 v23, s11, v21\nv_lshl_add_u32 v22, v23, 4, v22")
    e(f"s_mul_i32 s11, s8, 14336\ns_add_u32 s11, s11, {CV_UB + 7168}")
    e("v_add_u32 v22, s11, v22")
    e("ds_read_b128 v[60:63], v22")
    e("v_subrev_u32 v3, 128, v2")
    e("s_mov_b32 exec_lo, 0")
    for u in range(2):
        for b in range(2):
            for a2 in range(4):
                e(f"ds_read_b32 v{40 + 8*u + 2*a2 + b}, v{2 if b == 0 else 3} offset:{16384 + u*4096 + a2*1024}")
    e("s_waitcnt lgkmcnt(0)")
    for j in range(8):
        e(f"v_add_f32 v{40+j}, v{40+j}, v{48+j}")
        e(f"v_add_f32 v{Y+j}, v{Y+j}, v{40+j}")
    e("s_mov_b32 exec_lo, -1")
    e("v_lshlrev_b32 v19, 16, v19")
    e("s_mov_b32 s14, 0xffff0000")
    for q in range(4):
        e(f"v_lshlrev_b32 v40, 16, v{60+q}\nv_and_b32 v41, s14, v{60+q}")
        e(f"v_fmac_f32 v{Y+7-2*q}, v19, v40\nv_fmac_f32 v{Y+6-2*q}, v19, v41")
    for q in range(4):
        e(f"v_cvt_pk_bf16_f32 v{44+q}, v{Y+2*q}, v{Y+2*q+1}")
    e(f"s_lshl_b32 s10, s{sidx}, 1\ns_add_u32 s10, s10, s8\ns_lshl_b32 s10, s10, 12\ns_lshl_b32 s11, s9, 6\ns_add_u32 s10, s10, s11\ns_add_u32 s10, s10, {WS_Y}")
    e("v_lshlrev_b32 v20, 8, v20\nv_lshl_add_u32 v20, v21, 4, v20")
    e(f"buffer_store_dwordx4 v[44:47], v20, {srd(S_WS)}, s10 offen{SC}")

G2_RING = 0; G2_NS = 4
G2_YT = 131072
def gemm2(a, sc1=False):
    e = a.e
    SC = " sc1" if sc1 else ""
    a.c("=== GEMM2 ===")
    e("s_and_b32 s4, s3, 1\ns_lshr_b32 s5, s3, 1")
    e("s_and_b32 s8, s2, 7\ns_lshr_b32 s9, s2, 3")
    e("s_mul_hi_u32 s10, s9, 0x24924925")
    e("s_mul_i32 s11, s10, 7\ns_sub_u32 s7, s9, s11")
    e("s_lshl_b32 s6, s8, 2\ns_add_u32 s6, s6, s10")
    e("v_lshlrev_b32 v2, 4, v1")
    e("s_lshl_b32 s8, s6, 1\ns_add_u32 s8, s8, s4\ns_mul_i32 s8, s8, 112\ns_mul_i32 s9, s5, 28\ns_add_u32 s8, s8, s9")
    e(f"s_lshl_b32 s88, s8, 10\ns_add_u32 s88, s88, {WS_H}")
    e(f"s_lshl_b32 s90, s3, 12")
    if G2_RING: e(f"s_add_u32 s90, s90, {G2_RING}")
    nvm = [0]
    issued = []
    def issue_h(sg):
        e(f"s_add_u32 m0, s90, {(sg % G2_NS)*32768}")
        e(f"s_add_u32 s8, s88, {sg*4096}")
        for i in range(4):
            e(f"buffer_load_dwordx4 v2, {srd(S_WS)}, s8 offen offset:{i*1024} lds{SC}")
            issued.append(("H", sg))
    e("s_lshl_b32 s8, s7, 1\ns_add_u32 s8, s8, s4\ns_mul_i32 s8, s8, 112\ns_mul_i32 s9, s5, 28\ns_add_u32 s8, s8, s9")
    e(f"s_lshl_b32 s89, s8, 10\ns_add_u32 s89, s89, {WS_W2F}")
    def issue_w(sg):
        e(f"s_add_u32 s8, s89, {sg*4096}")
        for i in range(4):
            r = (sg*4 + i) * 4
            e(f"buffer_load_dwordx4 a[{r}:{r+3}], v2, {srd(S_WS)}, s8 offen offset:{i*1024}{SC}")
            issued.append(("W", sg))
    for sg in range(G2_NS):
        issue_h(sg); issue_w(sg)
    for sg in range(G2_NS, 7): issue_w(sg)
    e("v_lshrrev_b32 v20, 3, v1\nv_and_b32 v21, 7, v1")
    e("s_lshl_b32 s8, s3, 3\nv_add_u32 v22, s8, v20")
    e("v_mul_u32_u24 v3, 896, v22\nv_lshl_add_u32 v3, v21, 4, v3")
    e("s_mul_i32 s91, s6, 57344\ns_lshl_b32 s9, s7, 7\ns_add_u32 s91, s91, s9")
    e(f"buffer_load_dwordx4 v[8:11], v3, {srd(S_X)}, s91 offen"); issued.append(("E", 0))
    e(f"s_lshl_b32 s9, s6, 9\ns_add_u32 s9, s9, {WS_ST}")
    e("v_lshlrev_b32 v4, 3, v22")
    e(f"buffer_load_dwordx2 v[12:13], v4, {srd(S_WS)}, s9 offen{SC}"); issued.append(("E", 1))
    e("v_lshlrev_b32 v4, 12, v22\nv_lshl_add_u32 v4, v21, 4, v4")
    e(f"s_lshl_b32 s9, s7, 18\ns_lshl_b32 s10, s6, 7\ns_add_u32 s9, s9, s10\ns_add_u32 s9, s9, {WS_Y}")
    e(f"s_mul_i32 s10, s3, 1040\ns_add_u32 m0, s10, {G2_YT}")
    e("s_nop 0")
    e(f"buffer_load_dwordx4 v4, {srd(S_WS)}, s9 offen lds{SC}"); issued.append(("E", 2))
    e("s_lshl_b32 s8, s5, 13")
    e("v_add_u32 v5, s8, v2")
    if G2_RING: e(f"v_add_u32 v5, {G2_RING}, v5")
    e("v_add_u32 v6, 65536, v5")
    ACC = 32
    F = 64
    def last_idx(tag): return max(i for i, x in enumerate(issued) if x == tag)
    for sg in range(7):
        need = max(last_idx(("H", sg)), last_idx(("W", sg)))
        e(f"s_waitcnt vmcnt({min(63, len(issued) - 1 - need)}) lgkmcnt(0)")
        e("s_barrier")
        if sg >= 1 and sg - 1 + G2_NS < 7: issue_h(sg - 1 + G2_NS)
        slot = sg % G2_NS
        base = 5 if slot < 2 else 6
        so = (slot % 2) * 32768
        for s in range(4):
            for t in range(2):
                f = F + (s*2 + t) * 4
                e(f"ds_read_b128 v[{f}:{f+3}], v{base} offset:{so + t*4096 + s*1024}")
        for s in range(4):
            for t in range(2):
                f = F + (s*2 + t) * 4
                e(f"s_waitcnt lgkmcnt({7 - (s*2 + t)})")
                C = vr(ACC + 16*t, 16)
                A = ar((sg*4 + s) * 4, 4)
                e(f"v_mfma_f32_32x32x16_bf16 {C}, {A}, {vr(f,4)}, {C if (sg or s) else 0}")
    e("s_waitcnt vmcnt(0) lgkmcnt(0)")
    e("s_barrier")
    e("v_and_b32 v23, 31, v1\nv_lshrrev_b32 v24, 5, v1")
    e("v_mul_u32_u24 v23, 272, v23\nv_lshl_add_u32 v23, v24, 4, v23")
    e("s_mul_i32 s8, s5, 17408\ns_lshl_b32 s9, s4, 7\ns_add_u32 s8, s8, s9")
    e("v_add_u32 v23, s8, v23")
    e("s_nop 7")
    for t in range(2):
        for q in range(4):
            e(f"ds_write_b128 v23, {vr(ACC + 16*t + 4*q, 4)} offset:{t*32*272 + q*32}")
    e("s_waitcnt lgkmcnt(0)")
    e("s_barrier")
    e("v_mul_u32_u24 v23, 272, v22\nv_lshl_add_u32 v23, v21, 5, v23")
    for kq in range(4):
        for hh in range(2):
            r = 32 + kq*8 + hh*4
            e(f"ds_read_b128 v[{r}:{r+3}], v23 offset:{kq*17408 + hh*16}")
    e(f"v_mul_u32_u24 v24, 1040, v21\nv_lshl_add_u32 v24, v22, 1, v24\nv_add_u32 v24, {G2_YT}, v24")
    for i in range(8):
        e(f"ds_read_u16 v{64+i}, v24 offset:{i*128}")
    e("s_mov_b32 s14, 0xffff0000")
    e(f"s_mov_b32 s11, {fbits(-LOG2E)}")
    e("v_mul_f32 v14, v13, v13")
    e("v_mul_f32 v15, v12, v13")
    for q in range(4):
        e(f"v_lshlrev_b32 v{72+2*q}, 16, v{8+q}\nv_and_b32 v{73+2*q}, s14, v{8+q}")
    e("s_waitcnt lgkmcnt(0)")
    for i in range(8):
        e(f"v_add_f32 v{32+i}, v{32+i}, v{40+i}\nv_add_f32 v{48+i}, v{48+i}, v{56+i}")
    for i in range(8):
        e(f"v_add_f32 v{32+i}, v{32+i}, v{48+i}")
    for i in range(8):
        e(f"v_mul_f32 v{32+i}, v14, v{32+i}")
    for i in range(8):
        e(f"v_mul_f32 v{40+i}, s11, v{32+i}")
    for i in range(8):
        e(f"v_exp_f32 v{40+i}, v{40+i}")
    for i in range(8):
        e(f"v_lshlrev_b32 v{64+i}, 16, v{64+i}")
        e(f"v_fma_f32 v{48+i}, v{72+i}, v13, -v15")
    for i in range(8):
        e(f"v_add_f32 v{40+i}, 1.0, v{40+i}")
    for i in range(8):
        e(f"v_rcp_f32 v{40+i}, v{40+i}")
    for i in range(8):
        e(f"v_mul_f32 v{48+i}, v{48+i}, v{64+i}")
        e(f"v_mul_f32 v{48+i}, v{48+i}, v{32+i}")
    for i in range(8):
        e(f"v_fma_f32 v{72+i}, v{48+i}, v{40+i}, v{72+i}")
    for q in range(4):
        e(f"v_cvt_pk_bf16_f32 v{80+q}, v{72+2*q}, v{73+2*q}")
    e(f"buffer_store_dwordx4 v[80:83], v3, {srd(S_OUT)}, s91 offen")

def build_multi(which):
    out = []
    kernels = []
    for k in which:
        a = Asm(); a.endlabel = f"Lend_{k}"
        if k == "g1":
            prologue(a, 224); gemm1(a)
            desc = ("g1_kernel", 224, 512, 160*1024, 144, 144)
        elif k == "pa":
            prologue(a, 32); phase_a(a, 2)
            desc = ("pa_kernel", 32, 512, 160*1024, 144, 144)
        elif k == "cv":
            prologue(a, 224); conv(a, 2)
            desc = ("cv_kernel", 224, 512, 160*1024, 144, 144)
        elif k == "g2":
            prologue(a, 224); gemm2(a)
            desc = ("g2_kernel", 224, 512, 160*1024, 256, 144)
        elif k == "g1ns":
            prologue(a, 224); gemm1(a, do_stats=False)
            desc = ("g1ns_kernel", 224, 512, 160*1024, 144, 144)
        stamp(a, 16)
        if STAMPS: a.e("s_waitcnt vmcnt(0)")
        stamp(a, 17)
        stamp_flush(a)
        a.e(f"{a.endlabel}:")
        a.e("s_endpgm")
        kernels.append((desc, a))
    for (name, grid, block, lds, nv, acc), a in kernels:
        out.append(f"; @launch kernel={name} grid=({grid},1,1) block=({block},1,1) lds={lds}")
    out.append('.amdgcn_target "amdgcn-amd-amdhsa--gfx950"\n.text')
    for (name, grid, block, lds, nv, acc), a in kernels:
        out.append(kernel_header(name)); out.append(a.text())
    out.append('.section .rodata,"a"')
    for (name, grid, block, lds, nv, acc), a in kernels:
        out.append(kernel_desc(name, nv, acc))
    return "\n".join(out) + "\n"

if __name__ == "__main__":
    if len(sys.argv) > 2 and sys.argv[2] == "stamps": STAMPS = True
    print(build_multi(sys.argv[1].split(",")))
```

```python
import sys, struct
from asmlib import *

NAME = "recurrent_scan__ssm_conv_h3__glu_gated_swiglu__prompt"
WS_KV = 0
WS_W2F = 4 << 20
WS_H = 8 << 20
WS_ST = 16 << 20
WS_CS = (16 << 20) + 65536
WS_Y = 17 << 20
WS_FLAG = 20 << 20
WS_F1 = WS_FLAG
WS_FW = WS_FLAG + 2048
WS_FH = WS_FLAG + 4096
WS_FY = WS_FLAG + 16384
WS_STAMP = 22 << 20
WS_SIZE = 24 << 20

S_X, S_WSEL, S_WS, S_K, S_V, S_SHK, S_SSMK, S_SSMD, S_W2, S_OUT, S_DBG = 44, 48, 52, 56, 60, 64, 68, 72, 76, 80, 84
S_T0 = 96
S_TOK = 42
def srd(b): return f"s[{b}:{b+3}]"
LOG2E = 1.4426950408889634
def fbits(f): return "0x%08x" % struct.unpack("<I", struct.pack("<f", f))[0]

STAMPS = False
SPIN_MAX = 20000
SCL = " sc1"
STAMP_REGS = [16,17,18,19,20,21,22,23,26,27,28,29,30,31,32,33,34,35,36,37,38,39]
def stamp(a, idx):
    if not STAMPS: return
    a.e("s_memrealtime s[100:101]\ns_waitcnt lgkmcnt(0)")
    a.e(f"s_mov_b32 s{STAMP_REGS[idx]}, s100")
def stamp_init(a):
    if not STAMPS: return
    for r in STAMP_REGS: a.e(f"s_mov_b32 s{r}, 0")
def stamp_flush(a):
    if not STAMPS: return
    a.e("v_mov_b32 v2, 0")
    for i, r in enumerate(STAMP_REGS): a.e(f"v_writelane_b32 v2, s{r}, {i}")
    a.e(f"s_lshl_b32 s8, s2, 3\ns_add_u32 s8, s8, s3\ns_lshl_b32 s8, s8, 8\ns_add_u32 s8, s8, {WS_STAMP}")
    a.e("v_lshlrev_b32 v3, 2, v1")
    a.e(f"buffer_store_dword v2, v3, {srd(S_WS)}, s8 offen")

XRING = 0; WRING = 49152; L_HA = 147456; L_CS = 156672; L_ST = L_CS + 1024
L_UB = WRING + 32768; L_YB = WRING + 65536
L_YT = 147456
LDS_TOTAL = 158720

def interleave(a, main, other, start=0, per=1):
    other = list(other)
    for i, m in enumerate(main):
        a.e(m)
        if i >= start:
            for _ in range(per):
                if other: a.e(other.pop(0))
    for o in other: a.e(o)

def prologue(a):
    e = a.e
    e("s_cmp_ge_u32 s2, 256\ns_cbranch_scc1 Lend")
    e("s_load_dwordx16 s[16:31], s[0:1], 0")
    e("s_load_dwordx8 s[32:39], s[0:1], 64")
    e("s_load_dwordx2 s[40:41], s[0:1], 96")
    e("v_and_b32 v1, 63, v0")
    e("v_lshrrev_b32 v2, 6, v0")
    e("s_nop 0")
    e("v_readfirstlane_b32 s3, v2")
    e("s_waitcnt lgkmcnt(0)")
    def mk(b, p, size):
        e(f"s_mov_b32 s{b}, s{p}\ns_mov_b32 s{b+1}, s{p+1}\ns_mov_b32 s{b+2}, {size}\ns_mov_b32 s{b+3}, 0x20000")
    mk(S_X, 16, 1835008)
    e("s_cmp_ge_u32 s3, 4")
    e(f"s_cselect_b32 s{S_WSEL}, s32, s30")
    e(f"s_cselect_b32 s{S_WSEL+1}, s33, s31")
    e(f"s_mov_b32 s{S_WSEL+2}, 1605632\ns_mov_b32 s{S_WSEL+3}, 0x20000")
    mk(S_WS, 40, WS_SIZE)
    mk(S_K, 18, 1835008); mk(S_V, 20, 1835008); mk(S_SHK, 22, 3584)
    mk(S_SSMD, 26, 896); mk(S_W2, 34, 1605632); mk(S_OUT, 36, 1835008)
    mk(S_DBG, 38, 256)
    stamp_init(a)
    stamp(a, 0)

def poll_issue(a, vflag, voff, soff_reg, wide=False):
    if wide: a.e(f"buffer_load_dwordx4 v[{vflag}:{vflag+3}], v{voff}, {srd(S_WS)}, s{soff_reg} offen sc1")
    else: a.e(f"buffer_load_dword v{vflag}, v{voff}, {srd(S_WS)}, s{soff_reg} offen sc1")

def poll_check(a, vflag, voff, soff_reg, nlanes, wide=False):
    e = a.e
    Lchk = a.label("Lchk"); Lok = a.label("Lok")
    e("s_mov_b32 s9, 0")
    e(f"{Lchk}:")
    if wide:
        e(f"v_xor_b32 v{vflag}, s{S_TOK}, v{vflag}\nv_xor_b32 v{vflag+1}, s{S_TOK}, v{vflag+1}\nv_xor_b32 v{vflag+2}, s{S_TOK}, v{vflag+2}\nv_xor_b32 v{vflag+3}, s{S_TOK}, v{vflag+3}")
        e(f"v_or3_b32 v{vflag}, v{vflag}, v{vflag+1}, v{vflag+2}\nv_or_b32 v{vflag}, v{vflag}, v{vflag+3}")
        e(f"v_cmp_ne_u32 vcc, 0, v{vflag}")
    else:
        e(f"v_cmp_ne_u32 vcc, s{S_TOK}, v{vflag}")
    mask = (1 << nlanes) - 1
    if nlanes <= 32:
        e(f"s_and_b32 s8, vcc_lo, {hex(mask)}")
    else:
        e(f"s_and_b32 s8, vcc_hi, {hex(mask >> 32)}\ns_or_b32 s8, s8, vcc_lo")
    e(f"s_cmp_eq_u32 s8, 0\ns_cbranch_scc1 {Lok}")
    e(f"s_add_u32 s9, s9, 1\ns_cmp_gt_u32 s9, {SPIN_MAX}\ns_cbranch_scc1 {Lok}")
    e("s_sleep 4")
    poll_issue(a, vflag, voff, soff_reg, wide)
    e("s_waitcnt vmcnt(0)")
    e(f"s_branch {Lchk}")
    e(f"{Lok}:")

def token_get(a, vtok):
    e = a.e
    Lt = a.label("Ltok")
    e("s_mov_b32 s9, 0")
    e(f"{Lt}:")
    e(f"v_readfirstlane_b32 s{S_TOK}, v{vtok}")
    e(f"s_cmp_lg_u32 s{S_TOK}, 0\ns_cbranch_scc1 {Lt}_ok")
    e(f"s_add_u32 s9, s9, 1\ns_cmp_gt_u32 s9, {SPIN_MAX}\ns_cbranch_scc1 {Lt}_ok")
    e(f"s_sleep 4\nbuffer_load_dword v{vtok}, off, {srd(S_DBG)}, 0 sc1\ns_waitcnt vmcnt(0)\ns_branch {Lt}")
    e(f"{Lt}_ok:")

def stats_row_issue(a, vdst, vtmp):
    e = a.e
    e("s_lshl_b32 s8, s2, 3\ns_add_u32 s8, s8, s3\ns_mul_i32 s8, s8, 896")
    e(f"v_cmp_gt_u32 vcc, 56, v1\nv_mov_b32 v{vtmp}, 0x80000000\nv_lshlrev_b32 v{vdst}, 4, v1\nv_cndmask_b32 v{vtmp}, v{vtmp}, v{vdst}, vcc")
    e(f"buffer_load_dwordx4 v[{vdst}:{vdst+3}], v{vtmp}, {srd(S_X)}, s8 offen")

def stats_row_compute(vsrc, t):
    o = []
    o.append(f"v_mov_b32 v{t+2}, 0x3f803f80\nv_mov_b32 v{t}, 0\nv_mov_b32 v{t+1}, 0")
    for q in range(4):
        o.append(f"v_dot2_f32_bf16 v{t}, v{vsrc+q}, v{t+2}, v{t}\nv_dot2_f32_bf16 v{t+1}, v{vsrc+q}, v{vsrc+q}, v{t+1}")
    o.append("s_nop 2")
    for pat in ("quad_perm:[1,0,3,2]", "quad_perm:[2,3,0,1]", "row_half_mirror", "row_mirror"):
        o.append(f"v_add_f32_dpp v{t}, v{t}, v{t} {pat} row_mask:0xf bank_mask:0xf\nv_add_f32_dpp v{t+1}, v{t+1}, v{t+1} {pat} row_mask:0xf bank_mask:0xf\ns_nop 0")
    for sw in ("v_permlane16_swap_b32", "v_permlane32_swap_b32"):
        o.append(f"v_mov_b32 v{t+2}, v{t}\nv_mov_b32 v{t+3}, v{t+1}\ns_nop 1\n{sw} v{t}, v{t+2}\n{sw} v{t+1}, v{t+3}\ns_nop 1\nv_add_f32 v{t}, v{t}, v{t+2}\nv_add_f32 v{t+1}, v{t+1}, v{t+3}")
    o.append(f"v_mul_f32 v{t}, {fbits(1.0/448)}, v{t}\nv_mul_f32 v{t+1}, {fbits(1.0/448)}, v{t+1}")
    o.append(f"v_fma_f32 v{t+1}, -v{t}, v{t}, v{t+1}\nv_max_f32 v{t+1}, 0, v{t+1}\nv_add_f32 v{t+1}, {fbits(1e-5)}, v{t+1}\nv_rsq_f32 v{t+1}, v{t+1}")
    o.append(f"s_lshl_b32 s8, s2, 3\ns_add_u32 s8, s8, s3\ns_lshl_b32 s8, s8, 3\ns_add_u32 s8, s8, {WS_ST}\nbuffer_store_dwordx2 v[{t}:{t+1}], off, {srd(S_WS)}, s8 sc1")
    return o

ACC = 16
FRG = [80, 112]
W2R = 144
def g1acc(mat, ft, t): return ACC + ((mat*2 + ft)*4 + t) * 4

def main_path(a):
    e = a.e
    a.c("=== MAIN: GEMM1 setup ===")
    e("s_and_b32 s4, s3, 1\ns_lshr_b32 s5, s3, 1")
    e("s_and_b32 s8, s2, 7\ns_lshr_b32 s9, s2, 3")
    e("s_and_b32 s10, s9, 3\ns_lshr_b32 s11, s9, 2")
    e("s_lshr_b32 s6, s8, 1\ns_lshl_b32 s6, s6, 2\ns_add_u32 s6, s6, s10")
    e("s_and_b32 s7, s8, 1\ns_mul_i32 s7, s7, 7\ns_add_u32 s7, s7, s11")
    e("v_lshrrev_b32 v20, 3, v1\nv_and_b32 v21, 7, v1\nv_lshrrev_b32 v22, 4, v1")
    e("s_lshl_b32 s8, s3, 4")
    e("v_add_u32 v23, s8, v20\nv_mul_u32_u24 v23, 896, v23")
    e("v_xor_b32 v24, v21, v22")
    e("v_lshl_add_u32 v2, v24, 4, v23")
    e("v_xor_b32 v24, 4, v24\nv_lshl_add_u32 v3, v24, 4, v23\nv_add_u32 v3, 7168, v3")
    e("s_and_b32 s8, s3, 3\ns_lshl_b32 s8, s8, 4")
    e("v_add_u32 v23, s8, v22\nv_mul_u32_u24 v23, 3584, v23")
    e("v_bfe_u32 v25, v1, 1, 3\nv_xor_b32 v24, v22, v25\nv_and_b32 v26, 1, v1")
    e("v_lshl_or_b32 v27, v24, 1, v26\nv_lshl_add_u32 v4, v27, 4, v23")
    e("v_xor_b32 v24, 4, v24\nv_lshl_or_b32 v27, v24, 1, v26\nv_lshl_add_u32 v5, v27, 4, v23")
    e("s_mul_i32 s88, s6, 114688\ns_lshl_b32 s89, s7, 8")
    e("s_lshl_b32 s90, s3, 11\ns_lshl_b32 s91, s3, 12")
    issued = []
    def dma_x(c):
        out = []
        for ee in range(2):
            out.append(f"s_add_u32 m0, s90, {XRING + (c % 3)*16384 + ee*1024}\ns_add_u32 s8, s88, {c*128}\nbuffer_load_dwordx4 v{2+ee}, {srd(S_X)}, s8 offen lds")
            issued.append(("X", c))
        return out
    def dma_w(c):
        out = []
        for ee in range(4):
            out.append(f"s_add_u32 m0, s91, {WRING + (c % 3)*32768 + ee*1024}\ns_add_u32 s8, s89, {(64*c + 4*ee)*3584}\nbuffer_load_dwordx4 v{4+(ee>>1)}, {srd(S_WSEL)}, s8 offen lds")
            issued.append(("W", c))
        return out
    for s in dma_x(0) + dma_w(0): e(s)
    LKV = WRING + 65536
    e("s_mul_hi_u32 s12, s2, 0x24924925\ns_mul_i32 s13, s12, 7\ns_sub_u32 s13, s2, s13")
    e("v_mul_u32_u24 v23, 896, v20\nv_lshl_add_u32 v23, v21, 4, v23")
    e("s_mul_i32 s8, s12, 57344\ns_lshl_b32 s9, s13, 7\ns_add_u32 s8, s8, s9")
    e("s_mul_i32 s9, s3, 7168\ns_add_u32 s9, s9, s8")
    e(f"s_mul_i32 s10, s3, 1040\ns_add_u32 m0, s10, {LKV + 1040}")
    e("s_sub_u32 s8, s8, 7168")
    e(f"buffer_load_dwordx4 v23, {srd(S_K)}, s9 offen lds")
    e(f"s_add_u32 m0, s10, {LKV + 9360 + 1040}")
    e("v_add_u32 v24, s8, v23")
    e(f"buffer_load_dwordx4 v23, {srd(S_V)}, s9 offen lds")
    e("s_cmp_eq_u32 s4, 0")
    e(f"s_cselect_b32 s{S_T0}, s{S_K}, s{S_V}\ns_cselect_b32 s{S_T0+1}, s{S_K+1}, s{S_V+1}\ns_mov_b32 s{S_T0+2}, 1835008\ns_mov_b32 s{S_T0+3}, 0x20000")
    e(f"s_mul_i32 s10, s4, 9360\ns_add_u32 m0, s10, {LKV}")
    e("s_nop 0")
    e(f"buffer_load_dwordx4 v24, {srd(S_T0)}, 0 offen lds")
    issued.extend([("KV", 0)] * 3)
    e("s_lshl_b32 s8, s13, 9\ns_lshl_b32 s9, s3, 6\ns_add_u32 s8, s8, s9\nv_lshlrev_b32 v23, 4, v22")
    e(f"buffer_load_dwordx4 v[160:163], v23, {srd(S_SHK)}, s8 offen"); issued.append(("KV", 0))
    stats_row_issue(a, 164, 23); issued.append(("KV", 0))
    for s in dma_x(1) + dma_w(1) + dma_x(2): e(s)
    e("v_and_b32 v23, 15, v1\nv_lshrrev_b32 v24, 1, v23\nv_and_b32 v25, 1, v23")
    e("v_mul_u32_u24 v24, 1040, v24\nv_lshl_add_u32 v24, v25, 9, v24\nv_lshl_add_u32 v24, v22, 2, v24")
    e(f"s_lshl_b32 s8, s3, 4\ns_add_u32 s8, s8, {LKV + 1040}\nv_add_u32 v194, s8, v24")
    e("v_lshlrev_b32 v25, 4, v25\nv_add_u32 v195, v194, v25\nv_subrev_u32 v195, 528, v195")
    e("v_mul_u32_u24 v196, 17408, v22\nv_sub_u32 v23, 15, v23\nv_lshl_add_u32 v196, v23, 3, v196")
    e("s_mul_i32 s15, s13, 557056\ns_mul_i32 s9, s3, 69632\ns_add_u32 s15, s15, s9")
    e("s_lshr_b32 s9, s12, 1\ns_sub_u32 s9, 15, s9\ns_mul_i32 s9, s9, 272\ns_add_u32 s15, s15, s9")
    e("s_and_b32 s9, s12, 1\ns_lshl_b32 s9, s9, 7\ns_sub_u32 s9, 128, s9\ns_add_u32 s15, s15, s9")
    e("s_mov_b32 s14, 0xffff0000")
    def kv_compute():
        o = []
        def up(d, s_, hi): return f"v_and_b32 v{d}, s14, v{s_}" if hi else f"v_lshlrev_b32 v{d}, 16, v{s_}"
        for c in range(2):
            for j in range(4): o.append(up(168 + j, 160 + 2*c + (j >> 1), j & 1))
            for i in range(8): o.append(up(172 + i, 144 + i, c))
            for i in range(-1, 4): o.append(f"v_mul_f32 v{181+i}, v168, v{176+i}")
            for lag in range(1, 4):
                for i in range(-1, 4): o.append(f"v_fmac_f32 v{181+i}, v{168+lag}, v{176+i-lag}")
            for i in range(5): o.append(up(172 + i, 152 + i, c))
            for i in range(5): o.append(f"v_mul_f32 v{180+i}, v{180+i}, v{172+i}")
            for b in range(2):
                d = 186 + (2*c + b) * 2
                o.append(f"v_cvt_pk_bf16_f32 v{d}, v{181+2+b}, v{181+1+b}")
                o.append(f"v_cvt_pk_bf16_f32 v{d+1}, v{181+b}, v{181+b-1}")
                o.append(f"s_add_u32 s8, s15, {(2*c+b)*4352}\nbuffer_store_dwordx2 v[{d}:{d+1}], v196, {srd(S_WS)}, s8 offen sc1")
        return o
    e("v_and_b32 v23, 15, v1\nv_bfe_u32 v25, v1, 1, 3")
    e("s_lshl_b32 s8, s4, 13\nv_lshlrev_b32 v26, 7, v23\nv_add_u32 v26, s8, v26")
    for st in range(2):
        e(f"v_or_b32 v27, {4*st}, v22\nv_xor_b32 v27, v27, v25\nv_lshl_add_u32 v{6+st}, v27, 4, v26")
    e("v_bfe_u32 v25, v1, 2, 2\nv_bfe_u32 v23, v1, 4, 1\nv_lshl_or_b32 v26, v23, 2, v25")
    e("v_lshl_add_u32 v27, v22, 3, v25\nv_lshlrev_b32 v27, 8, v27\nv_and_b32 v28, 3, v1\nv_lshl_add_u32 v27, v28, 3, v27")
    e(f"v_add_u32 v27, {WRING}, v27")
    for ft in range(2):
        e(f"s_lshl_b32 s8, s5, 1\ns_add_u32 s8, s8, {ft}\nv_xor_b32 v28, s8, v26\nv_lshl_add_u32 v{8+ft}, v28, 5, v27")
    e("v_lshlrev_b32 v12, 4, v1\nv_lshlrev_b32 v13, 2, v1")
    def reads(s):
        p = s // 2; st = s % 2; f = FRG[s % 2]
        out = []
        for t in range(4):
            out.append(f"ds_read_b128 v[{f+16+4*t}:{f+19+4*t}], v{6+st} offset:{XRING + (p % 3)*16384 + t*2048}")
        for mat in range(2):
            for ft in range(2):
                for t in range(2):
                    r = f + (mat*2 + ft)*4 + 2*t
                    out.append(f"ds_read_b64_tr_b16 v[{r}:{r+1}], v{10+ft} offset:{mat*16384 + (32*st + 4*t)*256}")
        return out
    def mfmas(s):
        f = FRG[s % 2]; out = []
        for mat in range(2):
            for ft in range(2):
                for t in range(4):
                    C = vr(g1acc(mat, ft, t), 4)
                    out.append(f"v_mfma_f32_16x16x32_bf16 {C}, {vr(f + (mat*2+ft)*4, 4)}, {vr(f+16+4*t, 4)}, {C if s > 0 else 0}")
        return out
    def lastidx(tag): return max(i for i, x in enumerate(issued) if x == tag)
    def ha_dma():
        o = []
        o.append("\n".join([
            "s_lshl_b32 s9, s2, 1\ns_add_u32 s9, s9, s4\ns_lshl_b32 s9, s9, 12",
            f"s_add_u32 s{S_T0}, s24, s9\ns_addc_u32 s{S_T0+1}, s25, 0\ns_mov_b32 s{S_T0+2}, 4096\ns_mov_b32 s{S_T0+3}, 0x20000",
            "s_lshl_b32 s10, s5, 8",
            f"s_mul_i32 s11, s4, 4608\ns_add_u32 s11, s11, s10\ns_add_u32 s11, s11, {L_HA}",
            "v_add_u32 v14, s10, v13\nv_subrev_u32 v14, 252, v14"]))
        for i in range(5):
            if i == 4:
                o.append(f"s_cmp_ge_u32 s3, 4\ns_cselect_b32 s12, 0, 1024\ns_add_u32 s12, s12, 3072\ns_add_u32 m0, s11, s12\nv_add_u32 v15, s12, v14\nbuffer_load_dword v15, {srd(S_T0)}, 0 offen lds")
            else:
                o.append(f"s_add_u32 m0, s11, {i*1024}\nv_add_u32 v15, {i*1024}, v14\nbuffer_load_dword v15, {srd(S_T0)}, 0 offen lds")
            issued.append(("HA", 0))
        return o
    e("s_and_b32 s8, s2, 7\ns_lshr_b32 s9, s2, 3\ns_mul_hi_u32 s10, s9, 0x24924925")
    e("s_mul_i32 s11, s10, 7\ns_sub_u32 s93, s9, s11\ns_lshl_b32 s92, s8, 2\ns_add_u32 s92, s92, s10")
    e(f"s_mov_b32 s94, {WS_F1}")
    for p in range(7):
        need = max(lastidx(("X", p)), lastidx(("W", p)))
        if p == 0: need = max(need, lastidx(("KV", 0)))
        if p == 3: need = max(need, lastidx(("SIDE", 0)), lastidx(("TOK", 0)))
        if p == 5: need = max(need, lastidx(("POLL", 0)))
        if p == 6: need = max(need, lastidx(("AUXL", 0)))
        e(f"s_waitcnt vmcnt({min(63, len(issued) - 1 - need)}) lgkmcnt(0)")
        e("s_barrier")
        stamp(a, 1 + p)
        e(f"v_add_u32 v10, {(p % 3)*32768}, v8\nv_add_u32 v11, {(p % 3)*32768}, v9")
        ex0 = []; ex1 = []
        if p == 0:
            for i in range(-4, 4):
                e(f"ds_read_b32 v{148+i}, v{195 if i < 0 else 194} offset:{(i+4)*128 if i < 0 else i*128}")
            for i in range(-1, 4):
                e(f"ds_read_b32 v{153+i}, v{195 if i < 0 else 194} offset:{9360 + ((i+4)*128 if i < 0 else i*128)}")
            for r in reads(0): e(r)
            e("s_waitcnt lgkmcnt(12)")
            e("s_barrier")
            for s in dma_w(2): e(s)
            ex1 = kv_compute(); issued.extend([("SIDE", 0)] * 4)
        if 1 <= p <= 4: ex0 = dma_x(p + 2) + dma_w(p + 2)
        if p == 1:
            ex1 = stats_row_compute(164, 198); issued.append(("SIDE", 0))
            ex1.append(f"buffer_load_dword v197, off, {srd(S_DBG)}, 0 sc1"); issued.append(("TOK", 0))
        if p == 2: ex1 = ha_dma()
        if p == 3:
            token_get(a, 197)
            Lnf = a.label("Lnf1")
            e(f"s_cmp_lg_u32 s3, 0\ns_cbranch_scc1 {Lnf}")
            e(f"s_lshl_b32 s8, s2, 2\ns_add_u32 s8, s8, {WS_F1}")
            e(f"buffer_store_dword v197, off, {srd(S_WS)}, s8 sc1")
            e(f"{Lnf}:")
        if p == 4:
            ex1.append(f"buffer_load_dwordx4 v[144:147], v12, {srd(S_WS)}, s94 offen sc1"); issued.append(("POLL", 0))
        if p == 5:
            poll_check(a, 144, 12, 94, 64, wide=True)
            e("s_mul_i32 s9, s2, 17408\ns_mul_i32 s10, s5, 4352\ns_add_u32 s9, s9, s10")
            e(f"s_add_u32 s{S_T0}, s40, s9\ns_addc_u32 s{S_T0+1}, s41, 0\ns_mov_b32 s{S_T0+2}, 4352\ns_mov_b32 s{S_T0+3}, 0x20000")
            e(f"s_mul_i32 s10, s5, 7168\ns_lshl_b32 s11, s4, 10\ns_add_u32 s10, s10, s11\ns_add_u32 s95, s10, {L_UB}")
            e("v_add_u32 v14, s11, v12")
            ex0.append("\n".join([
                f"s_mul_i32 s8, s5, 7168\ns_lshl_b32 s9, s7, 9\ns_add_u32 s8, s8, s9\ns_lshl_b32 s9, s4, 8\ns_add_u32 s8, s8, s9\ns_add_u32 s8, s8, {WS_CS}",
                f"s_lshl_b32 s9, s6, 10\ns_lshl_b32 s10, s3, 8\ns_add_u32 s9, s9, s10\ns_add_u32 s9, s9, {WS_ST - 1024}",
                "s_cmp_ge_u32 s3, 4\ns_cselect_b32 s8, s9, s8",
                f"s_add_u32 m0, s10, {L_CS}",
                "s_nop 0",
                f"buffer_load_dword v13, {srd(S_WS)}, s8 offen sc1 lds"]))
            issued.append(("AUXL", 0))
            for i in range(4):
                if i == 3:
                    ex0.append(f"s_cmp_eq_u32 s4, 0\ns_cselect_b32 s12, 2048, 0\ns_add_u32 s12, s12, 4096\ns_add_u32 m0, s95, s12\nv_add_u32 v15, s12, v14\nbuffer_load_dwordx4 v15, {srd(S_T0)}, 0 offen sc1 lds")
                else:
                    ex0.append(f"s_add_u32 m0, s95, {i*2048}\nv_add_u32 v15, {i*2048}, v14\nbuffer_load_dwordx4 v15, {srd(S_T0)}, 0 offen sc1 lds")
                issued.append(("AUXL", 0))
        if p == 6:
            e(f"s_mov_b32 s94, {WS_FW}")
            ex1.append(f"buffer_load_dword v15, v13, {srd(S_WS)}, s94 offen sc1")
        def merge(x, y):
            o = []
            for i in range(max(len(x), len(y))):
                if i < len(x): o.append(x[i])
                if i < len(y): o.append(y[i])
            return o
        if p >= 1:
            oth = merge(reads(2*p), ex0)
            interleave(a, mfmas(2*p - 1), oth, start=0, per=2)
        e("s_waitcnt lgkmcnt(0)")
        oth = reads(2*p + 1) + ex1
        interleave(a, mfmas(2*p), oth, start=0, per=max(1, (len(oth) + 15) // 16))
    e("s_waitcnt lgkmcnt(0)")
    for m in mfmas(13): e(m)
    stamp(a, 8)
    g1_epilogue(a)
    stamp(a, 9)
    poll_check(a, 15, 13, 94, 32)
    e("s_lshl_b32 s8, s93, 2\ns_lshl_b32 s9, s4, 1\ns_add_u32 s8, s8, s9\ns_mul_i32 s8, s8, 56\ns_mul_i32 s9, s5, 14\ns_add_u32 s8, s8, s9")
    e(f"s_lshl_b32 s43, s8, 10\ns_add_u32 s43, s43, {WS_W2F}")
    for s in range(14):
        for j in range(2):
            r = W2R + (s*2 + j) * 4
            e(f"s_add_u32 s8, s43, {j*57344 + s*1024}\nbuffer_load_dwordx4 v[{r}:{r+3}], v12, {srd(S_WS)}, s8 offen{SCL}")
    conv_loop(a)
    stamp(a, 10)
    conv_final(a)
    stamp(a, 12)
    gemm2(a)

def g1_epilogue(a):
    e = a.e
    a.c("--- GEMM1 epilogue")
    T = 80
    e("v_lshrrev_b32 v2, 4, v1\nv_and_b32 v3, 15, v1")
    e(f"s_lshl_b32 s8, s5, 7\ns_add_u32 s8, s8, {L_CS}\nv_lshl_add_u32 v2, v2, 4, s8")
    for mat in range(2):
        for ft in range(2):
            r = T + (mat*2 + ft)*4
            e(f"ds_read_b128 v[{r}:{r+3}], v2 offset:{mat*512 + ft*64}")
    e(f"s_lshl_b32 s8, s4, 9\ns_add_u32 s8, s8, {L_ST}\nv_lshl_add_u32 v3, v3, 3, s8")
    for t in range(4):
        e(f"ds_read_b64 v[{T+16+2*t}:{T+17+2*t}], v3 offset:{t*128}")
    e(f"s_mov_b32 s11, {fbits(-LOG2E)}")
    e("s_lshl_b32 s8, s6, 3\ns_lshl_b32 s9, s4, 2\ns_add_u32 s8, s8, s9\ns_mul_i32 s8, s8, 56\ns_lshl_b32 s9, s7, 2\ns_add_u32 s8, s8, s9\ns_add_u32 s8, s8, s5")
    e(f"s_lshl_b32 s8, s8, 10\ns_add_u32 s8, s8, {WS_H}")
    e("s_waitcnt lgkmcnt(0)")
    for t in range(4):
        e(f"v_mul_f32 v{T+17+2*t}, s11, v{T+17+2*t}")
    E = T + 24
    for t in range(4):
        mean = T + 16 + 2*t; c1 = mean + 1
        regs = [(g1acc(0, ft, t) + r, g1acc(1, ft, t) + r, T + ft*4 + r, T + 8 + ft*4 + r) for ft in range(2) for r in range(4)]
        for (g, u, cg, cu) in regs:
            e(f"v_fma_f32 v{g}, -v{mean}, v{cg}, v{g}")
        for i, (g, u, cg, cu) in enumerate(regs):
            e(f"v_mul_f32 v{E+i}, v{c1}, v{g}")
        for i, (g, u, cg, cu) in enumerate(regs):
            e(f"v_exp_f32 v{E+i}, v{E+i}")
            e(f"v_fma_f32 v{u}, -v{mean}, v{cu}, v{u}")
        for i, (g, u, cg, cu) in enumerate(regs):
            e(f"v_add_f32 v{E+i}, 1.0, v{E+i}")
        for i, (g, u, cg, cu) in enumerate(regs):
            e(f"v_rcp_f32 v{E+i}, v{E+i}")
            e(f"v_mul_f32 v{g}, v{g}, v{u}")
        for i, (g, u, cg, cu) in enumerate(regs):
            e(f"v_mul_f32 v{g}, v{g}, v{E+i}")
        P = E + 8 + 4*t
        for q in range(4):
            e(f"v_cvt_pk_bf16_f32 v{P+q}, v{regs[2*q][0]}, v{regs[2*q+1][0]}")
        e(f"s_add_u32 s9, s8, {t*57344}")
        e(f"buffer_store_dwordx4 v[{P}:{P+3}], v12, {srd(S_WS)}, s9 offen sc1")
    e("s_lshl_b32 s8, s6, 1\ns_add_u32 s8, s8, s4\ns_lshl_b32 s8, s8, 8\ns_lshl_b32 s9, s7, 4\ns_add_u32 s8, s8, s9\ns_lshl_b32 s9, s5, 2\ns_add_u32 s8, s8, s9")
    e(f"s_add_u32 s8, s8, {WS_FH}")
    e(f"v_mov_b32 v2, s{S_TOK}")
    e("s_waitcnt vmcnt(0)")
    e(f"buffer_store_dword v2, off, {srd(S_WS)}, s8 sc1")

CR = 16; CS_ = 52; CACC = 104; CB = [88, 92, 96, 100]
def conv_loop(a):
    e = a.e
    a.c("--- conv loop")
    e("s_bfe_u32 s8, s3, 0x10001\ns_and_b32 s9, s3, 1")
    e("s_lshl_b32 s11, s9, 9\ns_add_u32 s11, s11, 1024\ns_cmp_ge_u32 s3, 4\ns_cselect_b32 s11, s11, 0")
    e("s_cselect_b32 s12, 7, 8\ns_cselect_b32 s13, 2, 4")
    e("s_cselect_b64 s[14:15], -1, 0")
    t = 120
    e(f"v_and_b32 v{t}, 15, v1\nv_lshrrev_b32 v{t+1}, 4, v1")
    e(f"v_lshlrev_b32 v{t+2}, s12, v{t+1}\nv_add_u32 v{t+2}, s11, v{t+2}")
    e(f"v_lshl_add_u32 v2, v{t}, 3, v{t+2}\nv_lshlrev_b32 v2, 1, v2")
    e(f"s_mul_i32 s10, s8, 4608\ns_add_u32 s10, s10, {L_HA}\nv_add_u32 v2, s10, v2")
    e(f"v_or_b32 v{t+3}, 8, v{t}\nv_cmp_gt_u32 vcc, 8, v{t}\nv_mov_b32 v{t+5}, s9\ns_nop 0")
    e(f"v_cndmask_b32 v{t+4}, 0, 1, vcc")
    e(f"v_cndmask_b32 v{t+3}, v{t}, v{t+3}, s[14:15]\nv_cndmask_b32 v{t+4}, v{t+5}, v{t+4}, s[14:15]")
    e(f"v_sub_u32 v{t+3}, 15, v{t+3}\nv_lshrrev_b32 v{t+5}, 7, v{t+2}\nv_add_u32 v{t+3}, v{t+3}, v{t+5}")
    e(f"v_mul_u32_u24 v{t+3}, 272, v{t+3}\nv_mul_u32_u24 v{t+4}, 7168, v{t+4}")
    e(f"s_mul_i32 s10, s8, 14336\ns_add_u32 s10, s10, {L_UB}")
    e(f"v_add3_u32 v3, v{t+3}, v{t+4}, s10")
    for r in range(16): e(f"v_mov_b32 v{CACC+r}, 0")
    R = CR; S = CS_
    queue = []
    def rdA(slot, off):
        e(f"ds_read_b128 v[{R+4*slot}:{R+4*slot+3}], v2 offset:{off}"); queue.append(("A", slot))
    def rdB(q, areg, off):
        b = CB[q % 4]
        e(f"ds_read_b128 v[{b}:{b+3}], v{areg} offset:{off}"); queue.append(("B", q % 4))
    def wait_oldest(tags):
        idx = -1
        for tg in tags:
            ii = [i for i, x in enumerate(queue) if x == tg]
            if ii: idx = max(idx, ii[0])
        if idx >= 0:
            e(f"s_waitcnt lgkmcnt({len(queue) - 1 - idx})")
            del queue[:idx+1]
    rdA(0, 0); rdB(0, 3, 0); rdA(1, 16); rdA(2, 32); rdB(1, 3, 16); rdA(3, 48); rdB(2, 3, 32)
    e("s_mov_b32 s10, 0")
    Lloop = a.label("Lconv")
    e(f"{Lloop}:")
    e("s_bitcmp1_b32 s10, 0\ns_cselect_b32 s11, 16, 0\ns_add_u32 s11, s11, 128")
    e("v_add_u32 v14, s11, v3")
    entry = list(queue)
    for q in range(8):
        if q <= 4: rdA(q + 4, 16*(q+4))
        elif q == 5: rdA(0, 128)
        elif q == 6: rdA(1, 144); rdA(2, 160)
        else: rdA(3, 176)
        if q <= 4: rdB(q + 3, 3, 16*(q+3))
        else: rdB(q + 3, 14, 16*(q-5))
        wait_oldest([("A", q), ("A", q+1), ("B", q % 4)])
        if q == 0: e(f"v_mov_b32 v{S}, v{R+1}\nv_mov_b32 v{S+1}, v{R+2}")
        for i in range(4): e(f"v_mov_b32 v{S+4*q+2+i}, v{R+4*q+3+i}")
        Bq = vr(CB[q % 4], 4)
        e(f"v_mfma_f32_16x16x32_bf16 {vr(CACC,4)}, {vr(R+4*q,4)}, {Bq}, {vr(CACC,4)}")
        e(f"v_mfma_f32_16x16x32_bf16 {vr(CACC+8,4)}, {vr(R+4*q+2,4)}, {Bq}, {vr(CACC+8,4)}")
        e(f"v_mfma_f32_16x16x32_bf16 {vr(CACC+4,4)}, {vr(S+4*q,4)}, {Bq}, {vr(CACC+4,4)}")
        e(f"v_mfma_f32_16x16x32_bf16 {vr(CACC+12,4)}, {vr(S+4*q+2,4)}, {Bq}, {vr(CACC+12,4)}")
    assert queue == entry, (queue, entry)
    e("v_add_u32 v2, 128, v2\nv_mov_b32 v3, v14")
    e(f"s_add_u32 s10, s10, 1\ns_cmp_lt_u32 s10, s13\ns_cbranch_scc1 {Lloop}")
    e("s_waitcnt lgkmcnt(0)")
    e(f"s_lshl_b32 s8, s3, 12\ns_add_u32 s8, s8, {L_YB}")
    e("v_add_u32 v2, s8, v12")
    e("s_nop 5")
    for a2 in range(4):
        e(f"ds_write_b128 v2, {vr(CACC+4*a2,4)} offset:{a2*1024}")

def conv_final(a):
    e = a.e
    a.c("--- conv finalize")
    e("s_lshr_b32 s8, s3, 2\ns_and_b32 s9, s3, 3")
    e("s_lshl_b32 s10, s2, 1\ns_add_u32 s10, s10, s8\ns_lshl_b32 s11, s10, 1")
    e(f"buffer_load_ushort v19, off, {srd(S_SSMD)}, s11")
    e(f"s_lshl_b32 s94, s92, 8\ns_add_u32 s94, s94, {WS_FH}")
    poll_issue(a, 15, 13, 94)
    e("s_waitcnt lgkmcnt(0)")
    e("s_barrier")
    stamp(a, 11)
    e(f"s_lshl_b32 s12, s8, 13\ns_lshl_b32 s11, s9, 8\ns_add_u32 s12, s12, s11\ns_add_u32 s12, s12, {L_YB}")
    e("v_add_u32 v2, s12, v13")
    Y = 32
    for b in range(2):
        for a2 in range(4):
            e(f"ds_read_b32 v{Y + 2*a2 + b}, v2 offset:{b*4096 + a2*1024}")
    e("v_lshrrev_b32 v20, 2, v1\nv_and_b32 v21, 3, v1")
    e("v_sub_u32 v22, 15, v20\nv_mul_u32_u24 v22, 272, v22")
    e("s_lshl_b32 s11, s9, 2\ns_sub_u32 s11, 15, s11")
    e("v_sub_u32 v23, s11, v21\nv_lshl_add_u32 v22, v23, 4, v22")
    e(f"s_mul_i32 s11, s8, 14336\ns_add_u32 s11, s11, {L_UB + 7168}")
    e("v_add_u32 v22, s11, v22")
    e("ds_read_b128 v[60:63], v22")
    e("v_subrev_u32 v3, 128, v2")
    e("s_mov_b32 exec_lo, 0")
    for u in range(2):
        for b in range(2):
            for a2 in range(4):
                e(f"ds_read_b32 v{40 + 8*u + 2*a2 + b}, v{2 if b == 0 else 3} offset:{16384 + u*4096 + a2*1024}")
    e("s_waitcnt lgkmcnt(0)")
    for j in range(8):
        e(f"v_add_f32 v{40+j}, v{40+j}, v{48+j}\nv_add_f32 v{Y+j}, v{Y+j}, v{40+j}")
    e("s_mov_b32 exec_lo, -1")
    e("s_waitcnt vmcnt(0)")
    e("v_lshlrev_b32 v19, 16, v19")
    e("s_mov_b32 s14, 0xffff0000")
    for q in range(4):
        e(f"v_lshlrev_b32 v40, 16, v{60+q}\nv_and_b32 v41, s14, v{60+q}")
        e(f"v_fmac_f32 v{Y+7-2*q}, v19, v40\nv_fmac_f32 v{Y+6-2*q}, v19, v41")
    for q in range(4):
        e(f"v_cvt_pk_bf16_f32 v{44+q}, v{Y+2*q}, v{Y+2*q+1}")
    e(f"s_lshl_b32 s10, s10, 12\ns_lshl_b32 s11, s9, 6\ns_add_u32 s10, s10, s11\ns_add_u32 s10, s10, {WS_Y}")
    e("v_lshlrev_b32 v20, 8, v20\nv_lshl_add_u32 v20, v21, 4, v20")
    e(f"buffer_store_dwordx4 v[44:47], v20, {srd(S_WS)}, s10 offen sc1")

G2_NS = 4
def gemm2(a):
    e = a.e
    a.c("=== GEMM2 ===")
    poll_check(a, 15, 13, 94, 56)
    stamp(a, 13)
    e("s_waitcnt vmcnt(0) lgkmcnt(0)")
    e("s_barrier")
    Lnf = a.label("Lnf")
    e(f"s_cmp_lg_u32 s3, 0\ns_cbranch_scc1 {Lnf}")
    e(f"s_lshl_b32 s8, s2, 2\ns_add_u32 s8, s8, {WS_FY}\nv_mov_b32 v2, s{S_TOK}")
    e(f"buffer_store_dword v2, off, {srd(S_WS)}, s8 sc1")
    e("s_waitcnt vmcnt(0)")
    e(f"{Lnf}:")
    e("s_lshl_b32 s8, s92, 2\ns_lshl_b32 s9, s4, 1\ns_add_u32 s8, s8, s9\ns_mul_i32 s8, s8, 56\ns_mul_i32 s9, s5, 14\ns_add_u32 s8, s8, s9")
    e(f"s_lshl_b32 s88, s8, 10\ns_add_u32 s88, s88, {WS_H}")
    issued = []
    def issue_h(sg):
        out = []
        for tt in range(2):
            out.append(f"s_add_u32 m0, s91, {(sg % G2_NS)*32768 + tt*2048}\ns_add_u32 s8, s88, {tt*57344 + sg*2048}\n"
                       f"buffer_load_dwordx4 v12, {srd(S_WS)}, s8 offen{SCL} lds\nbuffer_load_dwordx4 v12, {srd(S_WS)}, s8 offen offset:1024{SCL} lds")
            issued.extend([("H", sg)] * 2)
        return out
    for sg in range(G2_NS):
        for s in issue_h(sg): e(s)
    e("v_lshrrev_b32 v20, 3, v1\nv_and_b32 v21, 7, v1")
    e("s_lshl_b32 s8, s3, 3\nv_add_u32 v22, s8, v20")
    e("v_mul_u32_u24 v3, 896, v22\nv_lshl_add_u32 v3, v21, 4, v3")
    e("s_mul_i32 s89, s92, 57344\ns_lshl_b32 s9, s93, 7\ns_add_u32 s89, s89, s9")
    e(f"buffer_load_dwordx4 v[8:11], v3, {srd(S_X)}, s89 offen"); issued.append(("E", 0))
    e(f"s_lshl_b32 s9, s92, 9\ns_add_u32 s9, s9, {WS_ST}")
    e("v_lshlrev_b32 v4, 3, v22")
    e(f"buffer_load_dwordx2 v[16:17], v4, {srd(S_WS)}, s9 offen sc1"); issued.append(("E", 1))
    e("s_lshl_b32 s8, s5, 13\nv_add_u32 v5, s8, v12\nv_add_u32 v6, 65536, v5")
    e(f"s_lshl_b32 s94, s93, 7\ns_add_u32 s94, s94, {WS_FY}")
    AC = 32; F = 64
    def lastidx(tag): return max(i for i, x in enumerate(issued) if x == tag)
    for sg in range(7):
        need = lastidx(("H", sg))
        if sg == 5: need = max(need, lastidx(("POLL", 0)))
        e(f"s_waitcnt vmcnt({min(63, len(issued) - 1 - need)}) lgkmcnt(0)")
        e("s_barrier")
        extra = []
        if sg >= 1 and sg - 1 + G2_NS < 7: extra = issue_h(sg - 1 + G2_NS)
        if sg == 4:
            extra.append(f"buffer_load_dword v15, v13, {srd(S_WS)}, s94 offen sc1"); issued.append(("POLL", 0))
        if sg == 5:
            poll_check(a, 15, 13, 94, 32)
            e("v_lshlrev_b32 v4, 12, v22\nv_lshl_add_u32 v4, v21, 4, v4")
            e(f"s_lshl_b32 s9, s93, 18\ns_lshl_b32 s10, s92, 7\ns_add_u32 s9, s9, s10\ns_add_u32 s9, s9, {WS_Y}")
            e(f"s_mul_i32 s10, s3, 1040\ns_add_u32 m0, s10, {L_YT}")
            e("s_nop 0")
            e(f"buffer_load_dwordx4 v4, {srd(S_WS)}, s9 offen sc1 lds"); issued.append(("E", 2))
        slot = sg % G2_NS
        base = 5 if slot < 2 else 6
        so = (slot % 2) * 32768
        for s in range(2):
            for t in range(4):
                f = F + (s*4 + t) * 4
                e(f"ds_read_b128 v[{f}:{f+3}], v{base} offset:{so + t*2048 + s*1024}")
        for x in extra: e(x)
        for s in range(2):
            for t in range(4):
                f = F + (s*4 + t) * 4
                e(f"s_waitcnt lgkmcnt({7 - (s*4 + t)})")
                for j in range(2):
                    C = vr(AC + (j*4 + t)*4, 4)
                    A = vr(W2R + ((sg*2 + s)*2 + j)*4, 4)
                    e(f"v_mfma_f32_16x16x32_bf16 {C}, {A}, {vr(f,4)}, {C if (sg or s) else 0}")
    stamp(a, 14)
    e("s_waitcnt vmcnt(0) lgkmcnt(0)")
    e("s_barrier")
    e("v_and_b32 v23, 15, v1\nv_lshrrev_b32 v24, 4, v1")
    e("v_mul_u32_u24 v23, 264, v23\nv_lshl_add_u32 v23, v24, 6, v23")
    e("s_mul_i32 s8, s5, 16896\ns_lshl_b32 s9, s4, 3\ns_add_u32 s8, s8, s9")
    e("v_add_u32 v23, s8, v23")
    for t in range(4):
        if t: e(f"v_add_u32 v23, {16*264}, v23")
        for r in range(4):
            e(f"ds_write2_b32 v23, v{AC + t*4 + r}, v{AC + (4+t)*4 + r} offset0:{4*r} offset1:{4*r+1}")
    e("s_waitcnt lgkmcnt(0)")
    e("s_barrier")
    e("v_mul_u32_u24 v23, 264, v22\nv_lshl_add_u32 v23, v21, 5, v23")
    for kq in range(4):
        for hh in range(4):
            r = 32 + kq*8 + hh*2
            e(f"ds_read_b64 v[{r}:{r+1}], v23 offset:{kq*16896 + hh*8}")
    e(f"v_mul_u32_u24 v24, 1040, v21\nv_lshl_add_u32 v24, v22, 1, v24\nv_add_u32 v24, {L_YT}, v24")
    for i in range(8):
        e(f"ds_read_u16 v{64+i}, v24 offset:{i*128}")
    e("s_mov_b32 s14, 0xffff0000")
    e(f"s_mov_b32 s11, {fbits(-LOG2E)}")
    e("v_mul_f32 v14, v17, v17\nv_mul_f32 v15, v16, v17")
    for q in range(4):
        e(f"v_lshlrev_b32 v{72+2*q}, 16, v{8+q}\nv_and_b32 v{73+2*q}, s14, v{8+q}")
    e("s_waitcnt lgkmcnt(0)")
    for i in range(8): e(f"v_add_f32 v{32+i}, v{32+i}, v{40+i}\nv_add_f32 v{48+i}, v{48+i}, v{56+i}")
    for i in range(8): e(f"v_add_f32 v{32+i}, v{32+i}, v{48+i}")
    for i in range(8): e(f"v_mul_f32 v{32+i}, v14, v{32+i}")
    for i in range(8): e(f"v_mul_f32 v{40+i}, s11, v{32+i}")
    for i in range(8): e(f"v_exp_f32 v{40+i}, v{40+i}")
    for i in range(8): e(f"v_lshlrev_b32 v{64+i}, 16, v{64+i}\nv_fma_f32 v{48+i}, v{72+i}, v17, -v15")
    for i in range(8): e(f"v_add_f32 v{40+i}, 1.0, v{40+i}")
    for i in range(8): e(f"v_rcp_f32 v{40+i}, v{40+i}")
    for i in range(8): e(f"v_mul_f32 v{48+i}, v{48+i}, v{64+i}\nv_mul_f32 v{48+i}, v{48+i}, v{32+i}")
    for i in range(8): e(f"v_fma_f32 v{72+i}, v{48+i}, v{40+i}, v{72+i}")
    for q in range(4): e(f"v_cvt_pk_bf16_f32 v{80+q}, v{72+2*q}, v{73+2*q}")
    e(f"buffer_store_dwordx4 v[80:83], v3, {srd(S_OUT)}, s89 offen")
    stamp(a, 15)

def aux_path(a):
    e = a.e
    a.c("=== AUX ===")
    e("s_sub_u32 s4, s2, 224")
    e("s_lshl_b32 s5, s4, 3\ns_add_u32 s5, s5, s3")
    Lnt = a.label("Lnt")
    e(f"s_cmp_lg_u32 s5, 0\ns_cbranch_scc1 {Lnt}")
    e("s_memrealtime s[8:9]\ns_waitcnt lgkmcnt(0)\ns_or_b32 s8, s8, 1\nv_mov_b32 v2, s8")
    e(f"buffer_store_dword v2, off, {srd(S_DBG)}, 0 sc1")
    e(f"{Lnt}:")
    e("v_lshrrev_b32 v2, 3, v1\nv_and_b32 v3, 7, v1\nv_lshrrev_b32 v4, 4, v1\nv_and_b32 v5, 15, v1")
    e("v_lshlrev_b32 v12, 4, v1")
    e("s_mov_b32 s14, 0xffff0000")
    stats_row_issue(a, 104, 6)
    e("s_and_b32 s8, s4, 7\ns_lshr_b32 s9, s4, 3\ns_lshr_b32 s10, s8, 1\ns_lshl_b32 s10, s10, 2\ns_add_u32 s10, s10, s9")
    e("s_and_b32 s8, s8, 1\ns_mul_i32 s8, s8, 14\ns_add_u32 s12, s8, s10")
    e("s_cmp_ge_u32 s10, 14\ns_cselect_b32 s13, 0x80000000, 0")
    e("v_mul_u32_u24 v7, 3584, v2\nv_lshl_add_u32 v7, v3, 4, v7\nv_or_b32 v7, s13, v7")
    e("s_and_b32 s8, s3, 3\ns_mul_i32 s8, s8, 28672\ns_lshl_b32 s9, s12, 7\ns_add_u32 s8, s8, s9")
    for i in range(14):
        e(f"s_add_u32 s9, s8, {i*114688}")
        e(f"buffer_load_dwordx4 v[{48+4*i}:{51+4*i}], v7, {srd(S_WSEL)}, s9 offen")
    WL = 112
    e("s_mul_hi_u32 s6, s5, 0x24924925\ns_mul_i32 s7, s6, 7\ns_sub_u32 s7, s5, s7")
    e("s_cmp_ge_u32 s5, 196\ns_cselect_b32 s15, 0x80000000, 0")
    e("v_mul_u32_u24 v6, 3584, v4\nv_lshl_add_u32 v6, v5, 3, v6\nv_or_b32 v6, s15, v6")
    e("v_or_b32 v13, s15, v12")
    e("s_mul_i32 s8, s6, 57344\ns_lshl_b32 s9, s7, 7\ns_add_u32 s8, s8, s9")
    for kk in range(2):
        for h in range(2):
            e(f"s_add_u32 s9, s8, {(32*kk + 16*h)*896}")
            for i in range(4):
                r = WL + ((kk*8) + h*4 + i) * 2
                e(f"buffer_load_dwordx2 v[{r}:{r+1}], v6, {srd(S_W2)}, s9 offen offset:{i*896}")
    stamp(a, 1)
    e("s_waitcnt vmcnt(30)")
    for s in stats_row_compute(104, 108): e(s)
    e(f"buffer_load_dword v15, off, {srd(S_DBG)}, 0 sc1")
    C = 16
    for i in range(14):
        e(f"s_waitcnt vmcnt({13 - i + 16 + 2})")
        for q in range(4):
            r = 48 + 4*i + q
            if i == 0: e(f"v_lshlrev_b32 v{C+2*q}, 16, v{r}\nv_and_b32 v{C+2*q+1}, s14, v{r}")
            else: e(f"v_lshlrev_b32 v{24+2*q}, 16, v{r}\nv_and_b32 v{25+2*q}, s14, v{r}")
        if i:
            for q in range(8): e(f"v_add_f32 v{C+q}, v{C+q}, v{24+q}")
    stamp(a, 2)
    e("s_nop 1")
    for q in range(4): e(f"v_permlane32_swap_b32 v{C+q}, v{C+4+q}")
    e("s_nop 1")
    for q in range(4): e(f"v_add_f32 v{C+q}, v{C+q}, v{C+4+q}")
    e("s_nop 1")
    for q in range(2): e(f"v_permlane16_swap_b32 v{C+q}, v{C+2+q}")
    e("s_nop 1")
    for q in range(2): e(f"v_add_f32 v{C+q}, v{C+q}, v{C+2+q}")
    e("s_nop 1")
    for q in range(2): e(f"v_add_f32_dpp v{C+q}, v{C+q}, v{C+q} row_ror:8 row_mask:0xf bank_mask:0xf")
    e("v_lshrrev_b32 v24, 5, v1\nv_bfe_u32 v25, v1, 4, 1\nv_lshlrev_b32 v26, 5, v3\nv_lshl_add_u32 v26, v24, 4, v26\nv_lshl_add_u32 v26, v25, 3, v26")
    e(f"s_lshl_b32 s8, s3, 8\nv_add_u32 v26, s8, v26")
    e(f"ds_write_b64 v26, v[{C}:{C+1}]")
    e("s_waitcnt lgkmcnt(0)\ns_barrier")
    e("s_lshr_b32 s8, s3, 2\ns_lshl_b32 s9, s8, 10\nv_lshlrev_b32 v27, 2, v1\nv_add_u32 v26, s9, v27")
    for q in range(4): e(f"ds_read_b32 v{28+q}, v26 offset:{q*256}")
    e("s_and_b32 s9, s3, 3\ns_cmp_lg_u32 s9, 0\ns_cselect_b32 s9, 0x80000000, s13\nv_or_b32 v27, s9, v27")
    e("s_waitcnt lgkmcnt(0)")
    e("v_add_f32 v28, v28, v29\nv_add_f32 v30, v30, v31\nv_add_f32 v28, v28, v30")
    e(f"s_mul_i32 s8, s8, 7168\ns_lshl_b32 s9, s12, 8\ns_add_u32 s8, s8, s9\ns_add_u32 s8, s8, {WS_CS}")
    e(f"buffer_store_dword v28, v27, {srd(S_WS)}, s8 offen sc1")
    e("s_waitcnt vmcnt(0)")
    token_get(a, 15)
    e("s_barrier")
    Lnp = a.label("Lnp")
    e(f"s_cmp_lg_u32 s3, 0\ns_cbranch_scc1 {Lnp}")
    e(f"s_lshl_b32 s8, s2, 2\ns_add_u32 s8, s8, {WS_F1}")
    e(f"buffer_store_dword v15, off, {srd(S_WS)}, s8 sc1")
    e(f"{Lnp}:")
    stamp(a, 3)
    e("s_mov_b32 s10, 0x05040100\ns_mov_b32 s11, 0x07060302")
    e("s_lshl_b32 s8, s7, 2\ns_mul_i32 s8, s8, 56\ns_lshl_b32 s9, s6, 1\ns_add_u32 s8, s8, s9")
    e(f"s_lshl_b32 s8, s8, 10\ns_add_u32 s8, s8, {WS_W2F}")
    P = 208
    for kk in range(2):
        for mt in range(4):
            d = P + (kk*4 + mt) * 4
            for j in range(4):
                r0 = WL + (kk*8 + 2*j) * 2 + (mt >> 1); r1 = r0 + 2
                e(f"v_perm_b32 v{d+j}, v{r1}, v{r0}, s{10 + (mt & 1)}")
            e(f"s_add_u32 s9, s8, {mt*57344 + kk*1024}")
            e(f"buffer_store_dwordx4 v[{d}:{d+3}], v13, {srd(S_WS)}, s9 offen sc1")
    e("s_waitcnt vmcnt(0)")
    e("s_barrier")
    Lnp = a.label("Lnp")
    e(f"s_cmp_lg_u32 s3, 0\ns_cbranch_scc1 {Lnp}")
    e(f"s_lshl_b32 s8, s4, 2\ns_add_u32 s8, s8, {WS_FW}")
    e(f"buffer_store_dword v15, off, {srd(S_WS)}, s8 sc1")
    e(f"{Lnp}:")
    stamp(a, 4)

def build():
    a = Asm()
    prologue(a)
    a.e("s_cmp_ge_u32 s2, 224\ns_cbranch_scc1 Laux")
    main_path(a)
    stamp_flush(a)
    a.e("s_endpgm")
    a.e("Laux:")
    aux_path(a)
    stamp_flush(a)
    a.e("Lend:")
    a.e("s_endpgm")
    k = NAME + "_kernel"
    out = [f"; @launch grid=(256,1,1) block=(512,1,1) lds={LDS_TOTAL}",
           '.amdgcn_target "amdgcn-amd-amdhsa--gfx950"\n.text', kernel_header(k), a.text(),
           '.section .rodata,"a"', kernel_desc(k, 256, 256)]
    return "\n".join(out) + "\n"

if __name__ == "__main__":
    if "stamps" in sys.argv: STAMPS = True
    if "nosc1" in sys.argv: SCL = ""
    print(build())
```

```python
import sys, struct
from asmlib import *

NAME = "recurrent_scan__ssm_conv_h3__glu_gated_swiglu__prompt"
WS_KV = 0
WS_W2F = 2 << 20
WS_Y = 4 << 20
WS_ST = 6 << 20
WS_CS = (6 << 20) + 65536
WS_FLAG = (6 << 20) + 131072
WS_F1 = WS_FLAG
WS_FK = WS_FLAG + 1024
WS_FW = WS_FLAG + 2048
WS_FY = WS_FLAG + 3072
WS_FH = WS_FLAG + 4096
WS_H = 8 << 20
WS_STAMP = 22 << 20
WS_SIZE = 24 << 20

S_X, S_WSEL, S_WS, S_K, S_V, S_SHK, S_SSMD, S_W2, S_OUT, S_DBG = 44, 48, 52, 56, 60, 64, 72, 76, 80, 84
S_T0 = 96
S_TOK = 42
def srd(b): return f"s[{b}:{b+3}]"
LOG2E = 1.4426950408889634
def fbits(f): return "0x%08x" % struct.unpack("<I", struct.pack("<f", f))[0]

class Opt: pass
O = Opt()
O.dbg = False; O.stamps = False; O.cyc = False; O.spin = 20000; O.scl = ""; O.touch = True; O.ktail = 6

STAMP_REGS = [16,17,18,19,20,21,22,23,26,27,28,29,30,31,32,33,34,35,36,37,38,39]
class Gen(Asm):
    def __init__(self):
        super().__init__()
        self.vm = []
    def x(self, item):
        if isinstance(item, tuple):
            self.e(item[0]); self.vm.extend([item[1]] * (item[2] if len(item) > 2 else 1))
        else: self.e(item)
    def wait_vm(self, tags, extra=""):
        idx = -1
        for t in tags:
            ii = [i for i, v in enumerate(self.vm) if v == t]
            assert ii, t
            idx = max(idx, ii[-1])
        self.e(f"s_waitcnt vmcnt({min(63, len(self.vm) - 1 - idx)}){extra}")
    def vm_reset(self): self.vm = []
    def stamp(self, idx):
        if not O.stamps: return
        self.e(("s_memtime" if O.cyc else "s_memrealtime") + " s[100:101]\ns_waitcnt lgkmcnt(0)")
        self.e(f"s_mov_b32 s{STAMP_REGS[idx]}, s100")
    def stamp_flush(self):
        if not O.stamps: return
        self.e("v_mov_b32 v2, 0")
        for i, r in enumerate(STAMP_REGS): self.e(f"v_writelane_b32 v2, s{r}, {i}")
        self.e(f"s_lshl_b32 s8, s2, 3\ns_add_u32 s8, s8, s3\ns_lshl_b32 s8, s8, 8\ns_add_u32 s8, s8, {WS_STAMP}")
        self.e("v_lshlrev_b32 v3, 2, v1")
        self.e(f"buffer_store_dword v2, v3, {srd(S_WS)}, s8 offen")
        if O.dbg:
            L = self.label("Ldbg")
            self.e(f"s_or_b32 s8, s2, s3\ns_cmp_lg_u32 s8, 0\ns_cbranch_scc1 {L}")
            self.e(f"v_subrev_u32 v2, s{STAMP_REGS[0]}, v2\nv_mov_b32 v4, 0x80000000\nv_cmp_eq_u32 vcc, 0, v1\ns_nop 1\nv_cndmask_b32 v3, v3, v4, vcc")
            self.e(f"buffer_store_dword v2, v3, {srd(S_DBG)}, 0 offen")
            self.e(f"{L}:")
    def interleave(self, main, other, per=None):
        other = list(other)
        if per is None: per = max(1, -(-len(other) // max(1, len(main))))
        for m in main:
            self.x(m)
            for _ in range(per):
                if other: self.x(other.pop(0))
        for o in other: self.x(o)

XRING = 0; WRING = 49152
L_SP = 147456
L_KT = L_SP
L_HA = L_SP
HREG = 5120
L_CS = L_SP + 10240; L_ST = L_CS + 2048
L_UB = WRING + 32768
UREG = 6144
L_YB = WRING + 65536
L_YT = L_SP
LDS_TOTAL = L_SP + 10240 + 3072

def merge(x, y):
    o = []
    for i in range(max(len(x), len(y))):
        if i < len(x): o.append(x[i])
        if i < len(y): o.append(y[i])
    return o

def prologue(a):
    e = a.e
    e("s_cmp_ge_u32 s2, 256\ns_cbranch_scc1 Lend")
    e("s_load_dwordx16 s[16:31], s[0:1], 0")
    e("s_load_dwordx8 s[32:39], s[0:1], 64")
    e("s_load_dwordx2 s[40:41], s[0:1], 96")
    e("v_and_b32 v1, 63, v0\nv_lshrrev_b32 v2, 6, v0\ns_nop 0\nv_readfirstlane_b32 s3, v2")
    e("v_lshlrev_b32 v12, 4, v1\nv_lshlrev_b32 v13, 2, v1\ns_mov_b32 s14, 0xffff0000")
    e("s_waitcnt lgkmcnt(0)")
    def mk(b, p, size):
        e(f"s_mov_b32 s{b}, s{p}\ns_mov_b32 s{b+1}, s{p+1}\ns_mov_b32 s{b+2}, {size}\ns_mov_b32 s{b+3}, 0x20000")
    mk(S_X, 16, 1835008)
    e("s_cmp_ge_u32 s3, 4")
    e(f"s_cselect_b32 s{S_WSEL}, s32, s30\ns_cselect_b32 s{S_WSEL+1}, s33, s31")
    e(f"s_mov_b32 s{S_WSEL+2}, 1605632\ns_mov_b32 s{S_WSEL+3}, 0x20000")
    mk(S_WS, 40, WS_SIZE)
    mk(S_K, 18, 1835008); mk(S_V, 20, 1835008); mk(S_SHK, 22, 3584)
    mk(S_SSMD, 26, 896); mk(S_W2, 34, 1605632); mk(S_OUT, 36, 1835008); mk(S_DBG, 38, 256)
    if O.stamps:
        for r in STAMP_REGS: e(f"s_mov_b32 s{r}, 0")
    a.stamp(0)

def poll_ins(vflag, voff, soff, wide=False):
    if wide: return f"buffer_load_dwordx4 v[{vflag}:{vflag+3}], v{voff}, {srd(S_WS)}, s{soff} offen sc1"
    return f"buffer_load_dword v{vflag}, v{voff}, {srd(S_WS)}, s{soff} offen sc1"

def poll_check(a, vflag, voff, soff, nlanes, wide=False):
    e = a.e
    Lchk = a.label("Lchk"); Lok = a.label("Lok")
    e("s_mov_b32 s9, 0")
    e(f"{Lchk}:")
    if wide:
        for i in range(4): e(f"v_xor_b32 v{vflag+i}, s{S_TOK}, v{vflag+i}")
        e(f"v_or3_b32 v{vflag}, v{vflag}, v{vflag+1}, v{vflag+2}\nv_or_b32 v{vflag}, v{vflag}, v{vflag+3}")
        e(f"v_cmp_ne_u32 vcc, 0, v{vflag}")
    else:
        e(f"v_cmp_ne_u32 vcc, s{S_TOK}, v{vflag}")
    mask = (1 << nlanes) - 1
    if nlanes <= 32: e(f"s_and_b32 s8, vcc_lo, {hex(mask)}")
    else: e(f"s_and_b32 s8, vcc_hi, {hex(mask >> 32)}\ns_or_b32 s8, s8, vcc_lo")
    e(f"s_cmp_eq_u32 s8, 0\ns_cbranch_scc1 {Lok}")
    e(f"s_add_u32 s9, s9, 1\ns_cmp_gt_u32 s9, {O.spin}\ns_cbranch_scc1 {Lok}")
    e("s_sleep 4")
    e(poll_ins(vflag, voff, soff, wide))
    e("s_waitcnt vmcnt(0)")
    e(f"s_branch {Lchk}")
    e(f"{Lok}:")

def token_get(a, vtok):
    e = a.e
    Lt = a.label("Ltok")
    e("s_mov_b32 s9, 0")
    e(f"{Lt}:")
    e(f"v_readfirstlane_b32 s{S_TOK}, v{vtok}")
    e(f"s_cmp_lg_u32 s{S_TOK}, 0\ns_cbranch_scc1 {Lt}_ok")
    e(f"s_add_u32 s9, s9, 1\ns_cmp_gt_u32 s9, {O.spin}\ns_cbranch_scc1 {Lt}_ok")
    e(f"s_sleep 4\nbuffer_load_dword v{vtok}, off, {srd(S_DBG)}, 0 sc1\ns_waitcnt vmcnt(0)\ns_branch {Lt}")
    e(f"{Lt}_ok:")

def flag_store_w0(a, idx_expr_sreg, base, vtmp):
    L = a.label("Lnf")
    a.e(f"s_cmp_lg_u32 s3, 0\ns_cbranch_scc1 {L}")
    a.e(f"s_lshl_b32 s8, s{idx_expr_sreg}, 2\ns_add_u32 s8, s8, {base}\nv_mov_b32 v{vtmp}, s{S_TOK}")
    a.e(f"buffer_store_dword v{vtmp}, off, {srd(S_WS)}, s8 sc1")
    a.e(f"{L}:")

def stats_row_issue(vdst, vtmp):
    return ("s_lshl_b32 s8, s2, 3\ns_add_u32 s8, s8, s3\ns_mul_i32 s8, s8, 896\n"
            f"v_cmp_gt_u32 vcc, 56, v1\nv_mov_b32 v{vtmp}, 0x80000000\ns_nop 0\nv_cndmask_b32 v{vtmp}, v{vtmp}, v12, vcc\n"
            f"buffer_load_dwordx4 v[{vdst}:{vdst+3}], v{vtmp}, {srd(S_X)}, s8 offen", "STL")

def stats_row_compute(vsrc, t):
    o = []
    o.append(f"v_mov_b32 v{t+2}, 0x3f803f80\nv_mov_b32 v{t}, 0\nv_mov_b32 v{t+1}, 0")
    for q in range(4):
        o.append(f"v_dot2_f32_bf16 v{t}, v{vsrc+q}, v{t+2}, v{t}\nv_dot2_f32_bf16 v{t+1}, v{vsrc+q}, v{vsrc+q}, v{t+1}")
    o.append("s_nop 2")
    for pat in ("quad_perm:[1,0,3,2]", "quad_perm:[2,3,0,1]", "row_half_mirror", "row_mirror"):
        o.append(f"v_add_f32_dpp v{t}, v{t}, v{t} {pat} row_mask:0xf bank_mask:0xf\nv_add_f32_dpp v{t+1}, v{t+1}, v{t+1} {pat} row_mask:0xf bank_mask:0xf\ns_nop 0")
    for sw in ("v_permlane16_swap_b32", "v_permlane32_swap_b32"):
        o.append(f"v_mov_b32 v{t+2}, v{t}\nv_mov_b32 v{t+3}, v{t+1}\ns_nop 1\n{sw} v{t}, v{t+2}\n{sw} v{t+1}, v{t+3}\ns_nop 1\nv_add_f32 v{t}, v{t}, v{t+2}\nv_add_f32 v{t+1}, v{t+1}, v{t+3}")
    o.append(f"v_mul_f32 v{t}, {fbits(1.0/448)}, v{t}\nv_mul_f32 v{t+1}, {fbits(1.0/448)}, v{t+1}")
    o.append(f"v_fma_f32 v{t+1}, -v{t}, v{t}, v{t+1}\nv_max_f32 v{t+1}, 0, v{t+1}\nv_add_f32 v{t+1}, {fbits(1e-5)}, v{t+1}\nv_rsq_f32 v{t+1}, v{t+1}")
    o.append((f"s_lshl_b32 s8, s2, 3\ns_add_u32 s8, s8, s3\ns_lshl_b32 s8, s8, 3\ns_add_u32 s8, s8, {WS_ST}\nbuffer_store_dwordx2 v[{t}:{t+1}], off, {srd(S_WS)}, s8 sc1", "STS"))
    return o

ACC = 16; FRG = [80, 112]; W2R = 144
def g1acc(mat, ft, t): return ACC + ((mat*2 + ft)*4 + t) * 4

def main_path(a):
    e = a.e; x = a.x
    a.c("=== MAIN: GEMM1 setup ===")
    e("s_and_b32 s4, s3, 1\ns_lshr_b32 s5, s3, 1")
    e("s_and_b32 s8, s2, 7\ns_lshr_b32 s9, s2, 3")
    e("s_and_b32 s10, s9, 3\ns_lshr_b32 s11, s9, 2")
    e("s_lshr_b32 s6, s8, 1\ns_lshl_b32 s6, s6, 2\ns_add_u32 s6, s6, s10")
    e("s_and_b32 s7, s8, 1\ns_mul_i32 s7, s7, 7\ns_add_u32 s7, s7, s11")
    e("v_lshrrev_b32 v20, 3, v1\nv_and_b32 v21, 7, v1\nv_lshrrev_b32 v22, 4, v1")
    e("s_lshl_b32 s8, s3, 4")
    e("v_add_u32 v23, s8, v20\nv_mul_u32_u24 v23, 896, v23")
    e("v_xor_b32 v24, v21, v22\nv_lshl_add_u32 v2, v24, 4, v23")
    e("v_xor_b32 v24, 4, v24\nv_lshl_add_u32 v3, v24, 4, v23\nv_add_u32 v3, 7168, v3")
    e("s_and_b32 s8, s3, 3\ns_lshl_b32 s8, s8, 4")
    e("v_add_u32 v23, s8, v22\nv_mul_u32_u24 v23, 3584, v23")
    e("v_bfe_u32 v25, v1, 1, 3\nv_xor_b32 v24, v22, v25\nv_and_b32 v26, 1, v1")
    e("v_lshl_or_b32 v27, v24, 1, v26\nv_lshl_add_u32 v4, v27, 4, v23")
    e("v_xor_b32 v24, 4, v24\nv_lshl_or_b32 v27, v24, 1, v26\nv_lshl_add_u32 v5, v27, 4, v23")
    e("s_mul_i32 s88, s6, 114688\ns_lshl_b32 s89, s7, 8")
    e("s_lshl_b32 s90, s3, 11\ns_lshl_b32 s91, s3, 12")
    def dma_x(c):
        return [(f"s_add_u32 m0, s90, {XRING + (c % 3)*16384 + ee*1024}\ns_add_u32 s8, s88, {c*128}\nbuffer_load_dwordx4 v{2+ee}, {srd(S_X)}, s8 offen lds", ("C", c)) for ee in range(2)]
    def dma_w(c):
        return [(f"s_add_u32 m0, s91, {WRING + (c % 3)*32768 + ee*1024}\ns_add_u32 s8, s89, {(64*c + 4*ee)*3584}\nbuffer_load_dwordx4 v{4+(ee>>1)}, {srd(S_WSEL)}, s8 offen lds", ("C", c)) for ee in range(4)]
    for c in range(2):
        for s in dma_x(c) + dma_w(c): x(s)
    e("s_mul_hi_u32 s12, s2, 0x24924925\ns_mul_i32 s13, s12, 7\ns_sub_u32 s13, s2, s13")
    e("v_and_b32 v23, 31, v1\nv_lshrrev_b32 v24, 5, v1")
    e("v_mul_u32_u24 v25, 3584, v24\nv_lshl_add_u32 v25, v23, 2, v25")
    e("s_mul_i32 s8, s12, 57344\ns_lshl_b32 s9, s13, 7\ns_add_u32 s8, s8, s9\ns_mul_i32 s9, s3, 7168\ns_add_u32 s8, s8, s9")
    e("v_add_u32 v194, s8, v25")
    e("v_lshlrev_b32 v195, 4, v23")
    e(f"s_lshl_b32 s8, s3, 4\ns_sub_u32 s8, {L_KT + 120}, s8\nv_mul_u32_u24 v196, 272, v23\nv_lshlrev_b32 v24, 3, v24\nv_sub_u32 v196, v196, v24\nv_add_u32 v196, s8, v196")
    e(f"s_mul_i32 s8, s3, 1088\ns_add_u32 s8, s8, {L_KT}\nv_mul_u32_u24 v202, 136, v20\nv_lshl_add_u32 v202, v21, 4, v202\nv_add_u32 v202, s8, v202")
    e("v_lshlrev_b32 v203, 12, v20\nv_lshl_add_u32 v203, v21, 4, v203")
    e("s_lshl_b32 s15, s13, 18\ns_lshl_b32 s9, s3, 15\ns_add_u32 s15, s15, s9\ns_sub_u32 s9, 31, s12\ns_lshl_b32 s9, s9, 7\ns_add_u32 s15, s15, s9")
    e("s_lshl_b32 s43, s13, 5\ns_add_u32 s43, s43, s12")
    def kv_loads():
        o = [(f"s_lshl_b32 s8, s13, 9\nbuffer_load_dwordx4 v[160:163], v195, {srd(S_SHK)}, s8 offen", "KVL")]
        for i in range(-3, 0):
            o.append((f"v_subrev_u32 v204, {-i*896}, v194\nbuffer_load_dword v{147+i}, v204, {srd(S_K)}, 0 offen", "KVL"))
        for i in range(4):
            o.append((f"buffer_load_dword v{147+i}, v194, {srd(S_K)}, 0 offen offset:{i*896}", "KVL"))
            o.append((f"buffer_load_dword v{152+i}, v194, {srd(S_V)}, 0 offen offset:{i*896}", "KVL"))
        return o
    for s in kv_loads(): x(s)
    Lw2a = a.label("Lw2a")
    e(f"s_cmp_lt_u32 s3, 6\ns_cbranch_scc1 {Lw2a}\ns_cmp_ge_u32 s2, 196\ns_cbranch_scc1 {Lw2a}")
    e("s_lshl_b32 s8, s2, 1\ns_add_u32 s8, s8, s4\ns_mul_hi_u32 s69, s8, 0x24924925\ns_mul_i32 s70, s69, 7\ns_sub_u32 s70, s8, s70")
    e("v_mul_u32_u24 v23, 3584, v22\nv_and_b32 v24, 15, v1\nv_lshl_add_u32 v23, v24, 3, v23")
    e("s_mul_i32 s8, s69, 28672\ns_lshl_b32 s9, s70, 7\ns_add_u32 s8, s8, s9\ns_add_u32 s9, s8, 14336")
    for h in range(2):
        for i in range(4):
            r = 208 + (h*4 + i)*2
            e(f"buffer_load_dwordx2 v[{r}:{r+1}], v23, {srd(S_W2)}, s{8+h} offen offset:{i*896}")
    e(f"{Lw2a}:")
    for s in dma_x(2) + dma_w(2): x(s)
    def w2f_store():
        L = a.label("Lw2b")
        e(f"s_cmp_lt_u32 s3, 6\ns_cbranch_scc1 {L}\ns_cmp_ge_u32 s2, 196\ns_cbranch_scc1 {L}")
        e("s_mov_b32 s10, 0x05040100\ns_mov_b32 s11, 0x07060302")
        e(f"s_mul_i32 s8, s70, 224\ns_add_u32 s8, s8, s69\ns_lshl_b32 s8, s8, 10\ns_add_u32 s8, s8, {WS_W2F}")
        for mt in range(4):
            d = 160 + mt*4
            for j in range(4):
                r0 = 208 + (2*j)*2 + (mt >> 1); r1 = r0 + 2
                e(f"v_perm_b32 v{d+j}, v{r1}, v{r0}, s{10 + (mt & 1)}")
            e(f"s_add_u32 s9, s8, {mt*57344}\nbuffer_store_dwordx4 v[{d}:{d+3}], v12, {srd(S_WS)}, s9 offen sc1")
        e(f"{L}:")
    def kv_compute():
        o = []
        def up(d, s_, hi): return f"v_and_b32 v{d}, s14, v{s_}" if hi else f"v_lshlrev_b32 v{d}, 16, v{s_}"
        for c in range(2):
            for j in range(4): o.append(up(168 + j, 160 + 2*c + (j >> 1), j & 1))
            for i in range(7): o.append(up(172 + i, 144 + i, c))
            for i in range(4): o.append(f"v_mul_f32 v{180+i}, v168, v{175+i}")
            for lag in range(1, 4):
                for i in range(4): o.append(f"v_fmac_f32 v{180+i}, v{168+lag}, v{175+i-lag}")
            for i in range(4): o.append(up(172 + i, 152 + i, c))
            for i in range(4): o.append(f"v_mul_f32 v{180+i}, v{180+i}, v{172+i}")
            d = 186 + 2*c
            o.append(f"v_cvt_pk_bf16_f32 v{d}, v183, v182\nv_cvt_pk_bf16_f32 v{d+1}, v181, v180")
            o.append(f"ds_write_b64 v196, v[{d}:{d+1}] offset:{c*136}")
        return o
    e("v_and_b32 v23, 15, v1\nv_bfe_u32 v25, v1, 1, 3")
    e("s_lshl_b32 s8, s4, 13\nv_lshlrev_b32 v26, 7, v23\nv_add_u32 v26, s8, v26")
    for st in range(2):
        e(f"v_or_b32 v27, {4*st}, v22\nv_xor_b32 v27, v27, v25\nv_lshl_add_u32 v{6+st}, v27, 4, v26")
    e("v_bfe_u32 v25, v1, 2, 2\nv_bfe_u32 v23, v1, 4, 1\nv_lshl_or_b32 v26, v23, 2, v25")
    e("v_lshl_add_u32 v27, v22, 3, v25\nv_lshlrev_b32 v27, 8, v27\nv_and_b32 v28, 3, v1\nv_lshl_add_u32 v27, v28, 3, v27")
    e(f"v_add_u32 v27, {WRING}, v27")
    for ft in range(2):
        e(f"s_lshl_b32 s8, s5, 1\ns_add_u32 s8, s8, {ft}\nv_xor_b32 v28, s8, v26\nv_lshl_add_u32 v{8+ft}, v28, 5, v27")
    def reads(s):
        p = s // 2; st = s % 2; f = FRG[s % 2]; out = []
        for mat in range(2):
            for ft in range(2):
                for t in range(2):
                    r = f + (mat*2 + ft)*4 + 2*t
                    out.append(f"ds_read_b64_tr_b16 v[{r}:{r+1}], v{10+ft} offset:{mat*16384 + (32*st + 4*t)*256}")
                tt = mat*2 + ft
                out.append(f"ds_read_b128 v[{f+16+4*tt}:{f+19+4*tt}], v{6+st} offset:{XRING + (p % 3)*16384 + tt*2048}")
        return out
    def mfmas(s):
        f = FRG[s % 2]; out = []
        for mat in range(2):
            for ft in range(2):
                for t in range(4):
                    C = vr(g1acc(mat, ft, t), 4)
                    out.append(f"v_mfma_f32_16x16x32_bf16 {C}, {vr(f + (mat*2+ft)*4, 4)}, {vr(f+16+4*t, 4)}, {C if s > 0 else 0}")
        return out
    def ha_dma():
        o = ["\n".join([
            "s_lshl_b32 s9, s2, 1\ns_add_u32 s9, s9, s4\ns_lshl_b32 s9, s9, 12",
            f"s_add_u32 s{S_T0}, s24, s9\ns_addc_u32 s{S_T0+1}, s25, 0\ns_mov_b32 s{S_T0+2}, 4096\ns_mov_b32 s{S_T0+3}, 0x20000",
            "s_lshl_b32 s10, s5, 10",
            f"s_mul_i32 s11, s4, {HREG}\ns_add_u32 s11, s11, {L_HA}",
            "v_subrev_u32 v14, 256, v12"])]
        o.append((f"s_add_u32 m0, s11, s10\nv_add_u32 v15, s10, v14\nbuffer_load_dwordx4 v15, {srd(S_T0)}, 0 offen lds", "HA"))
        o.append((f"s_add_u32 m0, s11, 4096\nv_add_u32 v15, 4096, v14\nbuffer_load_dwordx4 v15, {srd(S_T0)}, 0 offen lds", "HA"))
        return o
    def stats_ops(p):
        o = [f"ds_read_b128 v[240:243], v238 offset:{XRING + (p % 3)*16384}\nds_read_b128 v[244:247], v239 offset:{XRING + (p % 3)*16384}"]
        c = []
        for r in range(240, 248):
            c.append(f"v_lshlrev_b32 v248, 16, v{r}\nv_and_b32 v249, s14, v{r}")
            c.append("v_add_f32 v250, v250, v248\nv_add_f32 v251, v251, v249")
            c.append("v_fmac_f32 v252, v248, v248\nv_fmac_f32 v253, v249, v249")
        return o, c
    e("s_and_b32 s8, s2, 7\ns_lshr_b32 s9, s2, 3\ns_mul_hi_u32 s10, s9, 0x24924925")
    e("s_mul_i32 s11, s10, 7\ns_sub_u32 s93, s9, s11\ns_lshl_b32 s92, s8, 2\ns_add_u32 s92, s92, s10")
    e("s_lshl_b32 s8, s93, 2\ns_lshl_b32 s9, s4, 1\ns_add_u32 s8, s8, s9\ns_mul_i32 s8, s8, 56\ns_mul_i32 s9, s5, 14\ns_add_u32 s8, s8, s9")
    e(f"s_lshl_b32 s95, s8, 10\ns_add_u32 s95, s95, {WS_W2F}")
    e("v_lshrrev_b32 v23, 2, v1\nv_and_b32 v24, 3, v1\nv_lshlrev_b32 v25, 7, v23\nv_add_u32 v25, s90, v25")
    e("v_bfe_u32 v26, v1, 3, 1\nv_lshl_or_b32 v24, v24, 1, v26\nv_lshl_add_u32 v238, v24, 4, v25\nv_xor_b32 v239, 16, v238")
    for r in range(250, 254): e(f"v_mov_b32 v{r}, 0")
    e(f"v_lshrrev_b32 v23, 7, v0\nv_mul_u32_u24 v23, {UREG - 2048}, v23\nv_lshl_add_u32 v237, v0, 4, v23\nv_add_u32 v237, {L_UB + 4096}, v237")
    KT = O.ktail
    pend = []
    for p in range(7):
        need = [("C", p)]
        if p == 1: need += ["KVL"]
        if p == 3: need += ["TOK"]
        if p == 4: need += ["KVS"]
        a.wait_vm(need, " lgkmcnt(0)")
        e("s_barrier")
        a.stamp(1 + p)
        e(f"v_add_u32 v10, {(p % 3)*32768}, v8\nv_add_u32 v11, {(p % 3)*32768}, v9")
        ex0 = []; ex1 = []
        if 1 <= p <= 4: ex0 = dma_x(p + 2) + dma_w(p + 2)
        srd_, scomp = stats_ops(p)
        if p == 0:
            ex1 = [(f"buffer_load_dword v197, off, {srd(S_DBG)}, 0 sc1", "TOK")]
        if p == 1:
            ex0 = ex0 + kv_compute()
        if p == 2:
            e("ds_read_b64 v[144:145], v202\nds_read_b64 v[146:147], v202 offset:8")
            for m in pend: x(m)
            pend = []
            e("s_waitcnt lgkmcnt(0)")
            w2f_store()
            x((f"buffer_store_dwordx4 v[144:147], v203, {srd(S_WS)}, s15 offen sc1", "KVS"))
        if p == 3:
            for m in pend: x(m)
            pend = []
            token_get(a, 197)
            ex1 = ha_dma()
        if p == 4:
            flag_store_w0(a, 2, WS_FK, 14)
        if p == 5:
            ex0 = [("\n".join([
                f"s_lshr_b32 s8, s3, 2\ns_mul_i32 s8, s8, 14336\ns_lshl_b32 s9, s7, 10\ns_add_u32 s8, s8, s9\ns_and_b32 s9, s3, 3\ns_lshl_b32 s9, s9, 8\ns_add_u32 s8, s8, s9\ns_add_u32 s8, s8, {WS_CS}",
                f"s_lshl_b32 s10, s3, 8\ns_add_u32 m0, s10, {L_CS}\ns_nop 0",
                f"buffer_load_dword v13, {srd(S_WS)}, s8 offen sc1 lds"]), "CSL")]
            ex0.append("v_mov_b32 v232, 0\nv_mov_b32 v233, 0\nv_mov_b32 v234, 0\nv_mov_b32 v235, 0\nds_write_b128 v237, v[232:235]")
        if p == 6:
            e(f"s_mov_b32 s94, {WS_FK}")
            ex0 = [(poll_ins(144, 12, 94, True), "POLLK")]
        for m in pend: x(m)
        pend = []
        if p == 0:
            for r in reads(0) + srd_: e(r)
        else:
            oth = merge(reads(2*p) + srd_, ex0)
            a.interleave(mfmas(2*p - 1), oth, per=max(2, -(-len(oth) // 16)))
        e("s_waitcnt lgkmcnt(0)")
        mm = mfmas(2*p)
        if KT and p < 6: mm, pend = mm[:16-KT], mm[16-KT:]
        oth = reads(2*p + 1) + merge(scomp, ex1)
        a.interleave(mm, oth, per=max(3, -(-len(oth) // len(mm))))
    e("s_waitcnt lgkmcnt(0)")
    fin = ["v_add_f32 v250, v250, v251\nv_add_f32 v252, v252, v253\ns_nop 0"]
    for pat in ("quad_perm:[1,0,3,2]", "quad_perm:[2,3,0,1]"):
        fin.append(f"v_add_f32_dpp v250, v250, v250 {pat} row_mask:0xf bank_mask:0xf\nv_add_f32_dpp v252, v252, v252 {pat} row_mask:0xf bank_mask:0xf\ns_nop 0")
    fin.append(f"v_mul_f32 v250, {fbits(1.0/448)}, v250\nv_mul_f32 v251, {fbits(1.0/448)}, v252")
    fin.append(f"v_fma_f32 v251, -v250, v250, v251\nv_max_f32 v251, 0, v251\nv_add_f32 v251, {fbits(1e-5)}, v251\nv_rsq_f32 v251, v251")
    fin.append(f"v_lshrrev_b32 v248, 2, v1\ns_lshl_b32 s8, s3, 7\ns_add_u32 s8, s8, {L_ST}\nv_lshl_add_u32 v248, v248, 3, s8\nds_write_b64 v248, v[250:251]")
    a.interleave(mfmas(13), fin, per=1)
    a.stamp(8)
    a.wait_vm(["POLLK"])
    poll_check(a, 144, 12, 94, 56, wide=True)
    e("s_lshl_b32 s9, s2, 1\ns_lshr_b32 s10, s3, 2\ns_add_u32 s9, s9, s10\ns_lshl_b32 s9, s9, 12")
    e(f"s_add_u32 s{S_T0}, s40, s9\ns_addc_u32 s{S_T0+1}, s41, 0\ns_mov_b32 s{S_T0+2}, 4096\ns_mov_b32 s{S_T0+3}, 0x20000")
    e(f"s_mul_i32 s10, s5, {UREG}\ns_lshl_b32 s11, s4, 11\ns_add_u32 s10, s10, s11\ns_add_u32 s10, s10, {L_UB}")
    e("s_and_b32 s9, s5, 1\ns_lshl_b32 s9, s9, 2\ns_sub_u32 s9, 4, s9\ns_add_u32 s11, s11, s9")
    e("v_lshrrev_b32 v14, 4, v1\ns_lshl_b32 s9, s4, 3\nv_or_b32 v14, s9, v14\nv_lshlrev_b32 v14, 4, v14\nv_xor_b32 v14, v14, v12\nv_add_u32 v14, s11, v14")
    e(f"s_mov_b32 m0, s10\nv_xor_b32 v15, 64, v14\nbuffer_load_dwordx4 v14, {srd(S_T0)}, 0 offen sc1 lds")
    e(f"s_add_u32 m0, s10, 1024\nv_add_u32 v15, 1024, v15\nbuffer_load_dwordx4 v15, {srd(S_T0)}, 0 offen sc1 lds")
    if O.touch:
        e(f"s_lshr_b32 s8, s2, 3\ns_mul_i32 s8, s8, 57344\ns_mul_i32 s9, s3, 7168\ns_add_u32 s8, s8, s9\ns_add_u32 s8, s8, {WS_W2F}")
        e("v_lshlrev_b32 v14, 7, v1\nv_cmp_gt_u32 vcc, 56, v1\nv_mov_b32 v15, 0x80000000\ns_nop 0\nv_cndmask_b32 v14, v15, v14, vcc")
        e(f"buffer_load_dword v144, v14, {srd(S_WS)}, s8 offen")
    e("s_waitcnt lgkmcnt(0)")
    e("s_barrier")
    g1_epilogue(a)
    a.stamp(9)
    e("s_barrier")
    conv_loop(a)
    a.stamp(10)
    conv_final(a)
    a.stamp(12)
    gemm2(a)

def g1_epilogue(a):
    e = a.e
    a.c("--- GEMM1 epilogue")
    T = 80; G = 104
    e("v_lshrrev_b32 v2, 4, v1\nv_and_b32 v3, 15, v1")
    e(f"s_lshl_b32 s8, s5, 8\nv_lshl_add_u32 v4, v2, 5, s8\nv_add_u32 v2, {L_CS}, v4")
    for mat in range(2):
        for ft in range(2):
            for hh in range(2):
                r = G + (mat*2 + ft)*8 + hh*4
                e(f"ds_read_b128 v[{r}:{r+3}], v2 offset:{mat*1024 + ft*128 + hh*16}")
    e(f"s_lshl_b32 s8, s4, 9\ns_add_u32 s8, s8, {L_ST}\nv_lshl_add_u32 v3, v3, 3, s8")
    for t in range(4):
        e(f"ds_read_b64 v[{T+16+2*t}:{T+17+2*t}], v3 offset:{t*128}")
    Lns = a.label("Lns")
    e(f"s_cmp_lg_u32 s7, 0\ns_cbranch_scc1 {Lns}")
    e("s_lshl_b32 s8, s5, 7\nv_add_u32 v5, s8, v3\nds_read_b64 v[6:7], v5")
    e(f"s_lshl_b32 s8, s6, 10\ns_add_u32 s8, s8, {WS_ST - L_ST}\ns_waitcnt lgkmcnt(0)")
    e(f"buffer_store_dwordx2 v[6:7], v5, {srd(S_WS)}, s8 offen sc1")
    e(f"{Lns}:")
    e("s_waitcnt lgkmcnt(0)")
    Lchk = a.label("Lcs"); Lok = a.label("Lcsok")
    e("s_mov_b32 s9, 0")
    e(f"{Lchk}:")
    e(f"v_xor_b32 v5, s{S_TOK}, v{G+1}")
    for i in range(1, 16): e(f"v_xor_b32 v6, s{S_TOK}, v{G+1+2*i}\nv_or_b32 v5, v5, v6")
    e(f"v_cmp_ne_u32 vcc, 0, v5\ns_cbranch_vccz {Lok}")
    e(f"s_add_u32 s9, s9, 1\ns_cmp_gt_u32 s9, {O.spin}\ns_cbranch_scc1 {Lok}")
    e(f"s_sleep 4\ns_lshl_b32 s8, s7, 10\ns_add_u32 s8, s8, {WS_CS}\ns_add_u32 s10, s8, 14336")
    for mat in range(2):
        for ft in range(2):
            for hh in range(2):
                r = G + (mat*2 + ft)*8 + hh*4
                e(f"buffer_load_dwordx4 v[{r}:{r+3}], v4, {srd(S_WS)}, s{10 if mat else 8} offen offset:{ft*128 + hh*16} sc1")
    e(f"s_waitcnt vmcnt(0)\ns_branch {Lchk}")
    e(f"{Lok}:")
    for i in range(16): e(f"v_mov_b32 v{T+i}, v{G+2*i}")
    e(f"s_mov_b32 s11, {fbits(-LOG2E)}")
    e("s_lshl_b32 s8, s6, 3\ns_lshl_b32 s9, s4, 2\ns_add_u32 s8, s8, s9\ns_mul_i32 s8, s8, 56\ns_lshl_b32 s9, s7, 2\ns_add_u32 s8, s8, s9\ns_add_u32 s8, s8, s5")
    e(f"s_lshl_b32 s8, s8, 10\ns_add_u32 s8, s8, {WS_H}")
    for t in range(4): e(f"v_mul_f32 v{T+17+2*t}, s11, v{T+17+2*t}")
    E = T + 24
    for t in range(4):
        mean = T + 16 + 2*t; c1 = mean + 1
        regs = [(g1acc(0, ft, t) + r, g1acc(1, ft, t) + r, T + ft*4 + r, T + 8 + ft*4 + r) for ft in range(2) for r in range(4)]
        for (g, u, cg, cu) in regs: e(f"v_fma_f32 v{g}, -v{mean}, v{cg}, v{g}")
        for i, (g, u, cg, cu) in enumerate(regs): e(f"v_mul_f32 v{E+i}, v{c1}, v{g}")
        for i, (g, u, cg, cu) in enumerate(regs): e(f"v_exp_f32 v{E+i}, v{E+i}\nv_fma_f32 v{u}, -v{mean}, v{cu}, v{u}")
        for i, (g, u, cg, cu) in enumerate(regs): e(f"v_add_f32 v{E+i}, 1.0, v{E+i}")
        for i, (g, u, cg, cu) in enumerate(regs): e(f"v_rcp_f32 v{E+i}, v{E+i}\nv_mul_f32 v{g}, v{g}, v{u}")
        for i, (g, u, cg, cu) in enumerate(regs): e(f"v_mul_f32 v{g}, v{g}, v{E+i}")
        P = E + 8 + 4*t
        for q in range(4): e(f"v_cvt_pk_bf16_f32 v{P+q}, v{regs[2*q][0]}, v{regs[2*q+1][0]}")
        e(f"s_add_u32 s9, s8, {t*57344}")
        e(f"buffer_store_dwordx4 v[{P}:{P+3}], v12, {srd(S_WS)}, s9 offen sc1")
    e("s_lshl_b32 s8, s6, 1\ns_add_u32 s8, s8, s4\ns_lshl_b32 s8, s8, 8\ns_lshl_b32 s9, s7, 4\ns_add_u32 s8, s8, s9\ns_lshl_b32 s9, s5, 2\ns_add_u32 s8, s8, s9")
    e(f"s_add_u32 s8, s8, {WS_FH}")
    e(f"v_mov_b32 v2, s{S_TOK}")
    e("s_waitcnt vmcnt(0)")
    e(f"buffer_store_dword v2, off, {srd(S_WS)}, s8 sc1")

CR = 16; CS_ = 52; CACC = 104; CB = [88, 92, 96, 100]
def conv_loop(a):
    e = a.e
    a.c("--- conv loop")
    e("s_bfe_u32 s8, s3, 0x10001\ns_and_b32 s9, s3, 1")
    e("s_lshl_b32 s11, s9, 9\ns_add_u32 s11, s11, 1024\ns_cmp_ge_u32 s3, 4\ns_cselect_b32 s11, s11, 0")
    e("s_cselect_b32 s12, 7, 8")
    e("s_cselect_b64 s[88:89], -1, 0")
    t = 120
    e(f"v_and_b32 v{t}, 15, v1\nv_lshrrev_b32 v{t+1}, 4, v1")
    e(f"v_lshlrev_b32 v{t+2}, s12, v{t+1}\nv_add_u32 v{t+2}, s11, v{t+2}")
    e(f"v_lshl_add_u32 v2, v{t}, 3, v{t+2}\nv_lshlrev_b32 v2, 1, v2")
    e(f"s_mul_i32 s10, s8, {HREG}\ns_add_u32 s10, s10, {L_HA}\nv_add_u32 v2, s10, v2")
    e(f"v_or_b32 v{t+3}, 8, v{t}\nv_cmp_gt_u32 vcc, 8, v{t}\nv_mov_b32 v{t+5}, s9\ns_nop 0")
    e(f"v_cndmask_b32 v{t+4}, 0, 1, vcc")
    e(f"v_cndmask_b32 v{t+3}, v{t}, v{t+3}, s[88:89]\nv_cndmask_b32 v{t+4}, v{t+5}, v{t+4}, s[88:89]")
    e(f"v_sub_u32 v{t+3}, 15, v{t+3}\nv_lshrrev_b32 v{t+5}, 7, v{t+2}\nv_add_u32 v{t+3}, v{t+3}, v{t+5}")
    e(f"v_mul_u32_u24 v{t+4}, {UREG}, v{t+4}")
    e(f"s_mul_i32 s10, s8, {2*UREG}\ns_add_u32 s10, s10, {L_UB}\nv_add_u32 v{t+4}, s10, v{t+4}")
    for k, reg in ((0, 3), (1, 4)):
        e(f"v_add_u32 v{t+5}, {k}, v{t+3}\nv_and_b32 v{t+6}, 15, v{t+5}\nv_lshlrev_b32 v{t+5}, 8, v{t+5}\nv_lshl_or_b32 v{t+5}, v{t+6}, 4, v{t+5}\nv_add_u32 v{reg}, v{t+4}, v{t+5}")
    e(f"s_lshl_b32 s94, s92, 8\ns_add_u32 s94, s94, {WS_FH}")
    R = CR; S = CS_
    queue = []
    NB = 9
    def rdA(blk):
        it, q = divmod(blk, 8)
        outs = []
        if q == 0 and it > 0: outs.append(8)
        e(f"ds_read_b128 v[{R+4*q}:{R+4*q+3}], v2 offset:{16*blk}"); queue.append(("A", it, q))
    def rdA8(it):
        e(f"ds_read_b128 v[{R+32}:{R+35}], v2 offset:{16*(8*it+8)}"); queue.append(("A", it, 8))
    def rdB(st):
        b = CB[st % 4]; tmp = 6 + (st % 2)
        e(f"v_xor_b32 v{tmp}, {16*(st % 16)}, v{3 if st < 16 else 4}\nds_read_b128 v[{b}:{b+3}], v{tmp}"); queue.append(("B", st))
    def wait_for(tags):
        idx = max([i for i, x_ in enumerate(queue) if x_ in tags], default=-1)
        if idx >= 0:
            e(f"s_waitcnt lgkmcnt({len(queue) - 1 - idx})")
            del queue[:idx+1]
    w2 = [f"s_add_u32 s8, s95, {j*57344 + s*1024}\nbuffer_load_dwordx4 v[{W2R+(s*2+j)*4}:{W2R+(s*2+j)*4+3}], v12, {srd(S_WS)}, s8 offen{O.scl}" for s in range(14) for j in range(2)]
    rdA(0); rdB(0); rdA(1); rdA(2); rdB(1); rdA(3); rdB(2)
    Lout = a.label("Lconvout")
    for st in range(32):
        it, q = divmod(st, 8)
        last = st >= 29
        if q <= 3: rdA(8*it + q + 4)
        elif q == 4: rdA8(it)
        elif it < 3:
            if q == 5: rdA(8*it + 8)
            elif q == 6: rdA(8*it + 9); rdA(8*it + 10)
            else: rdA(8*it + 11)
        if st + 3 < 32: rdB(st + 3)
        if st == 12 or st == 27: e(poll_ins(15, 13, 94))
        wait_for([("A", it, q), ("A", it, q+1), ("B", st)])
        if q == 0: e(f"v_alignbit_b32 v{S+2}, v{R+2}, v{R+1}, 16\nv_alignbit_b32 v{S+3}, v{R+3}, v{R+2}, 16")
        for i in range(4):
            k = 4*q + 4 + i
            e(f"v_alignbit_b32 v{S+k}, v{R+k}, v{R+k-1}, 16")
        Bq = vr(CB[st % 4], 4)
        def C(i): return vr(CACC + 4*i, 4)
        def Cin(i): return C(i) if st else "0"
        e(f"v_mfma_f32_16x16x32_bf16 {C(1)}, {vr(R+4*q+2,4)}, {Bq}, {Cin(1)}")
        if w2: e(w2.pop(0))
        e(f"v_mfma_f32_16x16x32_bf16 {C(3)}, {vr(R+4*q+4,4)}, {Bq}, {Cin(3)}")
        e(f"v_mfma_f32_16x16x32_bf16 {C(0)}, {vr(S+4*q+2,4)}, {Bq}, {Cin(0)}")
        if w2: e(w2.pop(0))
        e(f"v_mfma_f32_16x16x32_bf16 {C(2)}, {vr(S+4*q+4,4)}, {Bq}, {Cin(2)}")
        if st == 15: e(f"s_cmp_ge_u32 s3, 4\ns_cbranch_scc1 {Lout}")
    e(f"{Lout}:")
    e("s_waitcnt lgkmcnt(0)")
    e(f"s_lshl_b32 s8, s3, 12\ns_add_u32 s8, s8, {L_YB}")
    e("v_add_u32 v2, s8, v12")
    e("s_nop 5")
    for a2 in range(4): e(f"ds_write_b128 v2, {vr(CACC+4*a2,4)} offset:{a2*1024}")

G2_NS = 4
def g2_issue_h(sg):
    return [(f"s_add_u32 m0, s91, {(sg % G2_NS)*32768 + tt*2048}\ns_add_u32 s8, s88, {tt*57344 + sg*2048}\n"
             f"buffer_load_dwordx4 v12, {srd(S_WS)}, s8 offen{O.scl} lds\nbuffer_load_dwordx4 v12, {srd(S_WS)}, s8 offen offset:1024{O.scl} lds", ("H", sg), 2) for tt in range(2)]

def conv_final(a):
    e = a.e; x = a.x
    a.c("--- conv finalize")
    e("s_lshr_b32 s12, s3, 2\ns_and_b32 s13, s3, 3")
    e("s_lshl_b32 s10, s2, 1\ns_add_u32 s10, s10, s12\ns_lshl_b32 s11, s10, 1")
    e(f"buffer_load_ushort v19, off, {srd(S_SSMD)}, s11")
    e("s_waitcnt vmcnt(0)")
    a.vm_reset()
    poll_check(a, 15, 13, 94, 56)
    a.stamp(13)
    if O.touch:
        e(f"s_mul_i32 s8, s92, 229376\ns_lshl_b32 s9, s93, 15\ns_add_u32 s8, s8, s9\ns_add_u32 s8, s8, s91\ns_add_u32 s8, s8, {WS_H}")
        e("v_lshlrev_b32 v14, 7, v1\nv_cmp_gt_u32 vcc, 32, v1\nv_mov_b32 v15, 0x80000000\ns_nop 0\nv_cndmask_b32 v14, v15, v14, vcc")
        x((f"buffer_load_dword v18, v14, {srd(S_WS)}, s8 offen", "T"))
    e("s_lshl_b32 s8, s92, 2\ns_lshl_b32 s9, s4, 1\ns_add_u32 s8, s8, s9\ns_mul_i32 s8, s8, 56\ns_mul_i32 s9, s5, 14\ns_add_u32 s8, s8, s9")
    e(f"s_lshl_b32 s88, s8, 10\ns_add_u32 s88, s88, {WS_H}")
    for sg in range(2):
        for s in g2_issue_h(sg): x(s)
    e("s_waitcnt lgkmcnt(0)")
    e("s_barrier")
    a.stamp(11)
    e(f"s_lshl_b32 s8, s12, 13\ns_lshl_b32 s11, s13, 8\ns_add_u32 s8, s8, s11\ns_add_u32 s8, s8, {L_YB}")
    e("v_add_u32 v2, s8, v13")
    Y = 32
    JM = [0, 1, 4, 5]
    for b in range(2):
        for a2 in range(4):
            e(f"ds_read_b32 v{Y + JM[a2] + 2*b}, v2 offset:{b*4096 + a2*1024}")
    e("v_lshrrev_b32 v20, 2, v1\nv_and_b32 v21, 3, v1")
    e("v_sub_u32 v22, 15, v20")
    e("s_lshl_b32 s11, s13, 2\ns_sub_u32 s11, 15, s11")
    e("v_sub_u32 v23, s11, v21\nv_xor_b32 v23, v23, v22\nv_lshlrev_b32 v22, 8, v22\nv_lshl_add_u32 v22, v23, 4, v22")
    e(f"s_mul_i32 s11, s12, {2*UREG}\ns_add_u32 s11, s11, {L_UB + UREG}")
    e("v_add_u32 v22, s11, v22")
    e("ds_read_b128 v[60:63], v22")
    e("v_subrev_u32 v3, 128, v2")
    e("s_mov_b32 exec_lo, 0")
    for u in range(2):
        for b in range(2):
            for a2 in range(4):
                e(f"ds_read_b32 v{40 + 8*u + JM[a2] + 2*b}, v{2 if b == 0 else 3} offset:{16384 + u*4096 + a2*1024}")
    e("s_waitcnt lgkmcnt(0)")
    for j in range(8): e(f"v_add_f32 v{40+j}, v{40+j}, v{48+j}\nv_add_f32 v{Y+j}, v{Y+j}, v{40+j}")
    e("s_mov_b32 exec_lo, -1")
    e("v_lshlrev_b32 v19, 16, v19")
    for q in range(4):
        e(f"v_lshlrev_b32 v40, 16, v{60+q}\nv_and_b32 v41, s14, v{60+q}")
        e(f"v_fmac_f32 v{Y+7-2*q}, v19, v40\nv_fmac_f32 v{Y+6-2*q}, v19, v41")
    for q in range(4): e(f"v_cvt_pk_bf16_f32 v{44+q}, v{Y+2*q}, v{Y+2*q+1}")
    e(f"s_lshl_b32 s10, s10, 12\ns_lshl_b32 s11, s13, 6\ns_add_u32 s10, s10, s11\ns_add_u32 s10, s10, {WS_Y}")
    e("v_lshlrev_b32 v20, 8, v20\nv_lshl_add_u32 v20, v21, 4, v20")
    x((f"buffer_store_dwordx4 v[44:47], v20, {srd(S_WS)}, s10 offen sc1", "YST"))

def gemm2(a):
    e = a.e; x = a.x
    a.c("=== GEMM2 ===")
    e("s_waitcnt lgkmcnt(0)")
    e("s_barrier")
    for sg in range(2, G2_NS):
        for s in g2_issue_h(sg): x(s)
    e("v_lshrrev_b32 v20, 3, v1\nv_and_b32 v21, 7, v1")
    e("s_lshl_b32 s8, s3, 3\nv_add_u32 v22, s8, v20")
    e("v_mul_u32_u24 v3, 896, v22\nv_lshl_add_u32 v3, v21, 4, v3")
    e("s_mul_i32 s89, s92, 57344\ns_lshl_b32 s9, s93, 7\ns_add_u32 s89, s89, s9")
    x((f"buffer_load_dwordx4 v[8:11], v3, {srd(S_X)}, s89 offen", "E"))
    e(f"s_lshl_b32 s9, s92, 9\ns_add_u32 s9, s9, {WS_ST}")
    e("v_lshlrev_b32 v4, 3, v22")
    x((f"buffer_load_dwordx2 v[16:17], v4, {srd(S_WS)}, s9 offen sc1", "E"))
    e("s_lshl_b32 s8, s5, 13\nv_add_u32 v5, s8, v12\nv_add_u32 v6, 65536, v5")
    e(f"s_lshl_b32 s94, s93, 7\ns_add_u32 s94, s94, {WS_FY}")
    AC = 32; F = 64
    e("s_mov_b32 s12, 0x05040100\ns_mov_b32 s13, 0x07060302")
    for sg in range(7):
        need = [("H", sg)]
        if sg == 0: need.append("YST")
        if sg == 5: need.append("POLL")
        a.wait_vm(need, " lgkmcnt(0)")
        e("s_barrier")
        if sg == 0: flag_store_w0(a, 2, WS_FY, 2)
        extra = []
        if sg >= 1 and sg - 1 + G2_NS < 7: extra = g2_issue_h(sg - 1 + G2_NS)
        if sg == 4: extra.append((poll_ins(15, 13, 94), "POLL"))
        if sg == 5:
            poll_check(a, 15, 13, 94, 32)
            e("v_lshlrev_b32 v4, 12, v22\nv_lshl_add_u32 v4, v21, 4, v4")
            e(f"s_lshl_b32 s9, s93, 18\ns_lshl_b32 s10, s92, 7\ns_add_u32 s9, s9, s10\ns_add_u32 s9, s9, {WS_Y}")
            e(f"s_mul_i32 s10, s3, 1040\ns_add_u32 m0, s10, {L_YT}\ns_nop 0")
            x((f"buffer_load_dwordx4 v4, {srd(S_WS)}, s9 offen sc1 lds", "E"))
        slot = sg % G2_NS
        base = 5 if slot < 2 else 6
        so = (slot % 2) * 32768
        for s in range(2):
            for t in range(4):
                f = F + (s*4 + t) * 4
                e(f"ds_read_b128 v[{f}:{f+3}], v{base} offset:{so + t*2048 + s*1024}")
        for z in extra: x(z)
        for s in range(2):
            for t in range(4):
                f = F + (s*4 + t) * 4
                e(f"s_waitcnt lgkmcnt({7 - (s*4 + t)})")
                for j in range(2):
                    C = vr(AC + (j*4 + t)*4, 4)
                    A = vr(W2R + ((sg*2 + s)*2 + j)*4, 4)
                    e(f"v_mfma_f32_16x16x32_bf16 {C}, {A}, {vr(f,4)}, {C if (sg or s) else 0}")
    a.stamp(14)
    e("s_waitcnt vmcnt(0) lgkmcnt(0)")
    e("s_barrier")
    e("v_and_b32 v23, 15, v1\nv_lshrrev_b32 v24, 4, v1")
    e("v_mul_u32_u24 v23, 264, v23\nv_lshl_add_u32 v23, v24, 6, v23")
    e("s_mul_i32 s8, s5, 16896\ns_lshl_b32 s9, s4, 3\ns_add_u32 s8, s8, s9")
    e("v_add_u32 v23, s8, v23")
    for t in range(4):
        if t: e(f"v_add_u32 v23, {16*264}, v23")
        for r in range(4):
            e(f"ds_write2_b32 v23, v{AC + t*4 + r}, v{AC + (4+t)*4 + r} offset0:{4*r} offset1:{4*r+1}")
    e("s_waitcnt lgkmcnt(0)")
    e("s_barrier")
    e("v_mul_u32_u24 v23, 264, v22\nv_lshl_add_u32 v23, v21, 5, v23")
    for kq in range(4):
        for hh in range(4):
            r = 32 + kq*8 + hh*2
            e(f"ds_read_b64 v[{r}:{r+1}], v23 offset:{kq*16896 + hh*8}")
    e(f"v_mul_u32_u24 v24, 1040, v21\nv_lshl_add_u32 v24, v22, 1, v24\nv_add_u32 v24, {L_YT}, v24")
    for i in range(8): e(f"ds_read_u16 v{64+i}, v24 offset:{i*128}")
    e(f"s_mov_b32 s11, {fbits(-LOG2E)}")
    e("v_mul_f32 v14, v17, v17\nv_mul_f32 v15, v16, v17")
    for q in range(4): e(f"v_lshlrev_b32 v{72+2*q}, 16, v{8+q}\nv_and_b32 v{73+2*q}, s14, v{8+q}")
    e("s_waitcnt lgkmcnt(0)")
    for i in range(8): e(f"v_add_f32 v{32+i}, v{32+i}, v{40+i}\nv_add_f32 v{48+i}, v{48+i}, v{56+i}")
    for i in range(8): e(f"v_add_f32 v{32+i}, v{32+i}, v{48+i}")
    for i in range(8): e(f"v_mul_f32 v{32+i}, v14, v{32+i}")
    for i in range(8): e(f"v_mul_f32 v{40+i}, s11, v{32+i}")
    for i in range(8): e(f"v_exp_f32 v{40+i}, v{40+i}")
    for i in range(8): e(f"v_lshlrev_b32 v{64+i}, 16, v{64+i}\nv_fma_f32 v{48+i}, v{72+i}, v17, -v15")
    for i in range(8): e(f"v_add_f32 v{40+i}, 1.0, v{40+i}")
    for i in range(8): e(f"v_rcp_f32 v{40+i}, v{40+i}")
    for i in range(8): e(f"v_mul_f32 v{48+i}, v{48+i}, v{64+i}\nv_mul_f32 v{48+i}, v{48+i}, v{32+i}")
    for i in range(8): e(f"v_fma_f32 v{72+i}, v{48+i}, v{40+i}, v{72+i}")
    for q in range(4): e(f"v_cvt_pk_bf16_f32 v{80+q}, v{72+2*q}, v{73+2*q}")
    e(f"buffer_store_dwordx4 v[80:83], v3, {srd(S_OUT)}, s89 offen")
    a.stamp(15)

def aux_path(a):
    e = a.e; x = a.x
    a.c("=== AUX ===")
    a.vm_reset()
    e("s_sub_u32 s4, s2, 224\ns_lshl_b32 s5, s4, 3\ns_add_u32 s5, s5, s3")
    Lnt = a.label("Lnt")
    e(f"s_cmp_lg_u32 s5, 0\ns_cbranch_scc1 {Lnt}")
    e("s_memrealtime s[8:9]\ns_waitcnt lgkmcnt(0)\ns_or_b32 s8, s8, 1\nv_mov_b32 v2, s8")
    e(f"buffer_store_dword v2, off, {srd(S_DBG)}, 0 sc1")
    e(f"{Lnt}:")
    e("v_lshrrev_b32 v2, 3, v1\nv_and_b32 v3, 7, v1\nv_lshrrev_b32 v4, 4, v1\nv_and_b32 v5, 15, v1")
    e("s_and_b32 s8, s4, 7\ns_lshr_b32 s9, s4, 3\ns_lshr_b32 s10, s8, 1\ns_lshl_b32 s10, s10, 2\ns_add_u32 s10, s10, s9")
    e("s_and_b32 s8, s8, 1\ns_mul_i32 s8, s8, 14\ns_add_u32 s12, s8, s10")
    e("s_cmp_ge_u32 s10, 14\ns_cbranch_scc1 Lend")
    e("s_mov_b32 s13, 0")
    e("v_mul_u32_u24 v7, 3584, v2\nv_lshl_add_u32 v7, v3, 4, v7")
    e("s_and_b32 s8, s3, 3\ns_mul_i32 s8, s8, 28672\ns_lshl_b32 s9, s12, 7\ns_add_u32 s8, s8, s9")
    for i in range(14):
        x((f"s_add_u32 s9, s8, {i*114688}\nbuffer_load_dwordx4 v[{48+4*i}:{51+4*i}], v7, {srd(S_WSEL)}, s9 offen", ("CS", i)))
        if i == 6:
            a.wait_vm([("CS", 0)])
            x((f"buffer_load_dword v15, off, {srd(S_DBG)}, 0 sc1", "TOK"))
    C = 16
    for i in range(14):
        a.wait_vm([("CS", i)])
        for q in range(4):
            r = 48 + 4*i + q
            if i == 0: e(f"v_lshlrev_b32 v{C+2*q}, 16, v{r}\nv_and_b32 v{C+2*q+1}, s14, v{r}")
            else: e(f"v_lshlrev_b32 v{24+2*q}, 16, v{r}\nv_and_b32 v{25+2*q}, s14, v{r}")
        if i:
            for q in range(8): e(f"v_add_f32 v{C+q}, v{C+q}, v{24+q}")
    a.stamp(3)
    e("s_nop 1")
    for q in range(4): e(f"v_permlane32_swap_b32 v{C+q}, v{C+4+q}")
    e("s_nop 1")
    for q in range(4): e(f"v_add_f32 v{C+q}, v{C+q}, v{C+4+q}")
    e("s_nop 1")
    for q in range(2): e(f"v_permlane16_swap_b32 v{C+q}, v{C+2+q}")
    e("s_nop 1")
    for q in range(2): e(f"v_add_f32 v{C+q}, v{C+q}, v{C+2+q}")
    e("s_nop 1")
    for q in range(2): e(f"v_add_f32_dpp v{C+q}, v{C+q}, v{C+q} row_ror:8 row_mask:0xf bank_mask:0xf")
    e("v_lshrrev_b32 v24, 5, v1\nv_bfe_u32 v25, v1, 4, 1\nv_lshlrev_b32 v26, 5, v3\nv_lshl_add_u32 v26, v24, 4, v26\nv_lshl_add_u32 v26, v25, 3, v26")
    e("s_lshl_b32 s8, s3, 8\nv_add_u32 v26, s8, v26")
    e(f"ds_write_b64 v26, v[{C}:{C+1}]")
    e("s_waitcnt lgkmcnt(0)\ns_barrier")
    e("s_lshr_b32 s8, s3, 2\ns_lshl_b32 s9, s8, 10\nv_add_u32 v26, s9, v13")
    for q in range(4): e(f"ds_read_b32 v{28+q}, v26 offset:{q*256}")
    e("s_and_b32 s9, s3, 3\ns_cmp_lg_u32 s9, 0\ns_cselect_b32 s9, 0x80000000, 0\nv_lshlrev_b32 v27, 3, v1\nv_or_b32 v27, s9, v27")
    e("s_mov_b32 s10, s8")
    token_get(a, 15)
    e("s_waitcnt lgkmcnt(0)")
    e(f"v_add_f32 v28, v28, v29\nv_add_f32 v30, v30, v31\nv_add_f32 v28, v28, v30\nv_mov_b32 v29, s{S_TOK}")
    e(f"s_mul_i32 s8, s10, 14336\ns_lshl_b32 s9, s12, 9\ns_add_u32 s8, s8, s9\ns_add_u32 s8, s8, {WS_CS}")
    e(f"buffer_store_dwordx2 v[28:29], v27, {srd(S_WS)}, s8 offen sc1")
    a.stamp(4)

def build():
    a = Gen()
    prologue(a)
    a.e("s_cmp_ge_u32 s2, 224\ns_cbranch_scc1 Laux")
    main_path(a)
    a.stamp_flush()
    a.e("s_endpgm")
    a.e("Laux:")
    aux_path(a)
    a.stamp_flush()
    a.e("Lend:")
    a.e("s_endpgm")
    k = NAME + "_kernel"
    out = [f"; @launch grid=(256,1,1) block=(512,1,1) lds={LDS_TOTAL}",
           '.amdgcn_target "amdgcn-amd-amdhsa--gfx950"\n.text', kernel_header(k), a.text(),
           '.section .rodata,"a"', kernel_desc(k, 256, 256)]
    return "\n".join(out) + "\n"

if __name__ == "__main__":
    for arg in sys.argv[1:]:
        if arg == "stamps": O.stamps = True
        elif arg == "cyc": O.cyc = True
        elif arg == "dbg": O.dbg = True
        elif arg == "sc1": O.scl = " sc1"
        elif arg == "notouch": O.touch = False
        elif arg.startswith("kt="): O.ktail = int(arg[3:])
    print(build())
```

```python
import sys, struct
from asmlib import *

NAME = "recurrent_scan__ssm_conv_h3__glu_gated_swiglu__prompt"
WS_KV = 0
WS_W2F = 2 << 20
WS_Y = 4 << 20
WS_ST = 6 << 20
WS_CS = (6 << 20) + 65536
WS_FLAG = (6 << 20) + 131072
WS_F1 = WS_FLAG
WS_FK = WS_FLAG + 65536
WS_FW = WS_FLAG + 2048
WS_FH = WS_FLAG + 32768
WS_FY = WS_FLAG + 16384
WS_H = 8 << 20
HSTR = 114688 + 128
WS_STAMP = 22 << 20
WS_SIZE = 24 << 20

S_X, S_WSEL, S_WS, S_K, S_V, S_SHK, S_SSMD, S_W2, S_OUT, S_DBG = 44, 48, 52, 56, 60, 64, 72, 76, 80, 84
S_T0 = 96
S_TOK = 42
def srd(b): return f"s[{b}:{b+3}]"
LOG2E = 1.4426950408889634
def fbits(f): return "0x%08x" % struct.unpack("<I", struct.pack("<f", f))[0]

class Opt: pass
O = Opt()
O.w6 = 0; O.tlb = True; O.ctouch = True; O.cvs = [0, 3, 6, 8, 10]; O.w4 = 4; O.chk = 8; O.rr = 0; O.rf = 0; O.rs = 0; O.gt = False; O.apace = 1; O.ebar = 1; O.kd = 0; O.kv0 = True; O.fys = 0; O.stamps = False; O.cyc = False; O.spin = 20000; O.scl = ""; O.touch = True; O.ktail = 6

STAMP_REGS = [16,17,18,19,20,21,22,23,26,27,28,29,30,31,32,33,34,35,36,37,38,39]
class Gen(Asm):
    def __init__(self):
        super().__init__()
        self.vm = []
        self.lq = []
    def x(self, item):
        if isinstance(item, tuple):
            self.e(item[0]); self.vm.extend([item[1]] * (item[2] if len(item) > 2 else 1))
        elif isinstance(item, list): self.l(item[0], item[1])
        else:
            self.e(item)
            for ln in item.split("\n"):
                if ln.startswith("ds_"): self.lq.append(None)
    def wait_vm(self, tags, extra=""):
        idx = -1
        for t in tags:
            ii = [i for i, v in enumerate(self.vm) if v == t]
            assert ii, t
            idx = max(idx, ii[-1])
        self.e(f"s_waitcnt vmcnt({min(63, len(self.vm) - 1 - idx)}){extra}")
    def vm_reset(self): self.vm = []
    def l(self, text, tag=None):
        self.e(text); self.lq.append(tag)
    def wait_l(self, tag):
        ii = [i for i, v in enumerate(self.lq) if v == tag]
        if not ii: return
        n = len(self.lq) - 1 - ii[-1]
        self.e(f"s_waitcnt lgkmcnt({min(15, n)})")
        if n <= 15: del self.lq[:ii[-1]+1]
    def stamp(self, idx):
        if not O.stamps: return
        self.e(("s_memtime" if O.cyc else "s_memrealtime") + " s[100:101]\ns_waitcnt lgkmcnt(0)")
        self.e(f"s_mov_b32 s{STAMP_REGS[idx]}, s100")
    def stamp_flush(self):
        if not O.stamps: return
        self.e("v_mov_b32 v2, 0")
        for i, r in enumerate(STAMP_REGS): self.e(f"v_writelane_b32 v2, s{r}, {i}")
        self.e(f"s_lshl_b32 s8, s2, 3\ns_add_u32 s8, s8, s3\ns_lshl_b32 s8, s8, 8\ns_add_u32 s8, s8, {WS_STAMP}")
        self.e("v_lshlrev_b32 v3, 2, v1")
        self.e(f"buffer_store_dword v2, v3, {srd(S_WS)}, s8 offen")
    def interleave(self, main, other, per=None):
        other = list(other)
        if per is None: per = max(1, -(-len(other) // max(1, len(main))))
        for m in main:
            self.x(m)
            for _ in range(per):
                if other: self.x(other.pop(0))
        for o in other: self.x(o)

XRING = 0; WRING = 49152
L_SP = 147456
L_KT = L_SP
L_HA = L_SP
HREG = 5120
L_CS = L_SP + 10240; L_ST = L_CS + 2048; L_C2 = L_ST + 1024; L_LF = L_C2 + 1024
L_UB = WRING + 65536
UREG = 6144
L_YB = WRING + 32768
L_YT = L_SP
LDS_TOTAL = L_SP + 10240 + 4096 + 128

def merge(x, y):
    o = []
    for i in range(max(len(x), len(y))):
        if i < len(x): o.append(x[i])
        if i < len(y): o.append(y[i])
    return o

def prologue(a):
    e = a.e
    e("s_cmp_ge_u32 s2, 256\ns_cbranch_scc1 Lend")
    e("s_load_dwordx16 s[16:31], s[0:1], 0")
    e("s_load_dwordx8 s[32:39], s[0:1], 64")
    e("s_load_dwordx2 s[40:41], s[0:1], 96")
    if O.ctouch:
        e("Lpc0:\ns_getpc_b64 s[8:9]")
        e("v_lshlrev_b32 v3, 7, v0\nv_min_u32 v3, Lcode_end-Lpc0-8, v3")
        e("global_load_dword v227, v3, s[8:9]")
    e("v_and_b32 v1, 63, v0\nv_lshrrev_b32 v2, 6, v0\ns_nop 0\nv_readfirstlane_b32 s3, v2")
    e("v_lshlrev_b32 v12, 4, v1\nv_lshlrev_b32 v13, 2, v1\ns_mov_b32 s14, 0xffff0000")
    e("s_waitcnt lgkmcnt(0)")
    def mk(b, p, size):
        e(f"s_mov_b32 s{b}, s{p}\ns_mov_b32 s{b+1}, s{p+1}\ns_mov_b32 s{b+2}, {size}\ns_mov_b32 s{b+3}, 0x20000")
    mk(S_X, 16, 1835008)
    e("s_cmp_ge_u32 s3, 4")
    e(f"s_cselect_b32 s{S_WSEL}, s32, s30\ns_cselect_b32 s{S_WSEL+1}, s33, s31")
    e(f"s_mov_b32 s{S_WSEL+2}, 1605632\ns_mov_b32 s{S_WSEL+3}, 0x20000")
    mk(S_WS, 40, WS_SIZE)
    mk(S_K, 18, 1835008); mk(S_V, 20, 1835008); mk(S_SHK, 22, 3584)
    mk(S_SSMD, 26, 896); mk(S_W2, 34, 1605632); mk(S_OUT, 36, 1835008); mk(S_DBG, 38, 256)
    if O.stamps:
        for r in STAMP_REGS: e(f"s_mov_b32 s{r}, 0")
    a.stamp(0)

def poll_ins(vflag, voff, soff, wide=False):
    if wide: return f"buffer_load_dwordx4 v[{vflag}:{vflag+3}], v{voff}, {srd(S_WS)}, s{soff} offen sc1"
    return f"buffer_load_dword v{vflag}, v{voff}, {srd(S_WS)}, s{soff} offen sc1"

def poll_check(a, vflag, voff, soff, nlanes, wide=False):
    e = a.e
    Lchk = a.label("Lchk"); Lok = a.label("Lok")
    e("s_mov_b32 s9, 0")
    e(f"{Lchk}:")
    if wide:
        for i in range(4): e(f"v_xor_b32 v{vflag+i}, s{S_TOK}, v{vflag+i}")
        e(f"v_or3_b32 v{vflag}, v{vflag}, v{vflag+1}, v{vflag+2}\nv_or_b32 v{vflag}, v{vflag}, v{vflag+3}")
        e(f"v_cmp_ne_u32 vcc, 0, v{vflag}")
    else:
        e(f"v_cmp_ne_u32 vcc, s{S_TOK}, v{vflag}")
    mask = (1 << nlanes) - 1
    if nlanes <= 32: e(f"s_and_b32 s8, vcc_lo, {hex(mask)}")
    else: e(f"s_and_b32 s8, vcc_hi, {hex(mask >> 32)}\ns_or_b32 s8, s8, vcc_lo")
    e(f"s_cmp_eq_u32 s8, 0\ns_cbranch_scc1 {Lok}")
    e(f"s_add_u32 s9, s9, 1\ns_cmp_gt_u32 s9, {O.spin}\ns_cbranch_scc1 {Lok}")
    e("s_sleep 8")
    e(poll_ins(vflag, voff, soff, wide))
    e("s_waitcnt vmcnt(0)")
    e(f"s_branch {Lchk}")
    e(f"{Lok}:")

def token_get(a, vtok):
    e = a.e
    Lt = a.label("Ltok")
    e("s_mov_b32 s9, 0")
    e(f"{Lt}:")
    e(f"v_readfirstlane_b32 s{S_TOK}, v{vtok}")
    e(f"s_cmp_lg_u32 s{S_TOK}, 0\ns_cbranch_scc1 {Lt}_ok")
    e(f"s_add_u32 s9, s9, 1\ns_cmp_gt_u32 s9, {O.spin}\ns_cbranch_scc1 {Lt}_ok")
    e(f"s_sleep 4\nbuffer_load_dword v{vtok}, off, {srd(S_DBG)}, 0 sc1\ns_waitcnt vmcnt(0)\ns_branch {Lt}")
    e(f"{Lt}_ok:")

def flag_store_w0(a, idx_expr_sreg, base, vtmp):
    L = a.label("Lnf")
    a.e(f"s_cmp_lg_u32 s3, 0\ns_cbranch_scc1 {L}")
    a.e(f"s_lshl_b32 s8, s{idx_expr_sreg}, 2\ns_add_u32 s8, s8, {base}\nv_mov_b32 v{vtmp}, s{S_TOK}")
    a.e(f"buffer_store_dword v{vtmp}, off, {srd(S_WS)}, s8 sc1")
    a.e(f"{L}:")

def stats_row_issue(vdst, vtmp):
    return ("s_lshl_b32 s8, s2, 3\ns_add_u32 s8, s8, s3\ns_mul_i32 s8, s8, 896\n"
            f"v_cmp_gt_u32 vcc, 56, v1\nv_mov_b32 v{vtmp}, 0x80000000\ns_nop 0\nv_cndmask_b32 v{vtmp}, v{vtmp}, v12, vcc\n"
            f"buffer_load_dwordx4 v[{vdst}:{vdst+3}], v{vtmp}, {srd(S_X)}, s8 offen", "STL")

def stats_row_compute(vsrc, t):
    o = []
    o.append(f"v_mov_b32 v{t+2}, 0x3f803f80\nv_mov_b32 v{t}, 0\nv_mov_b32 v{t+1}, 0")
    for q in range(4):
        o.append(f"v_dot2_f32_bf16 v{t}, v{vsrc+q}, v{t+2}, v{t}\nv_dot2_f32_bf16 v{t+1}, v{vsrc+q}, v{vsrc+q}, v{t+1}")
    o.append("s_nop 2")
    for pat in ("quad_perm:[1,0,3,2]", "quad_perm:[2,3,0,1]", "row_half_mirror", "row_mirror"):
        o.append(f"v_add_f32_dpp v{t}, v{t}, v{t} {pat} row_mask:0xf bank_mask:0xf\nv_add_f32_dpp v{t+1}, v{t+1}, v{t+1} {pat} row_mask:0xf bank_mask:0xf\ns_nop 0")
    for sw in ("v_permlane16_swap_b32", "v_permlane32_swap_b32"):
        o.append(f"v_mov_b32 v{t+2}, v{t}\nv_mov_b32 v{t+3}, v{t+1}\ns_nop 1\n{sw} v{t}, v{t+2}\n{sw} v{t+1}, v{t+3}\ns_nop 1\nv_add_f32 v{t}, v{t}, v{t+2}\nv_add_f32 v{t+1}, v{t+1}, v{t+3}")
    o.append(f"v_mul_f32 v{t}, {fbits(1.0/448)}, v{t}\nv_mul_f32 v{t+1}, {fbits(1.0/448)}, v{t+1}")
    o.append(f"v_fma_f32 v{t+1}, -v{t}, v{t}, v{t+1}\nv_max_f32 v{t+1}, 0, v{t+1}\nv_add_f32 v{t+1}, {fbits(1e-5)}, v{t+1}\nv_rsq_f32 v{t+1}, v{t+1}")
    o.append((f"s_lshl_b32 s8, s2, 3\ns_add_u32 s8, s8, s3\ns_lshl_b32 s8, s8, 3\ns_add_u32 s8, s8, {WS_ST}\nbuffer_store_dwordx2 v[{t}:{t+1}], off, {srd(S_WS)}, s8 sc1", "STS"))
    return o

ACC = 16; FRG = [80, 96, 112, 128]; W2R = 144
def g1acc(j, t): return ACC + (2*j + t) * 16

def main_path(a):
    e = a.e; x = a.x
    a.c("=== MAIN: GEMM1 setup ===")
    e("s_and_b32 s4, s3, 1\ns_lshr_b32 s5, s3, 1")
    e("s_and_b32 s8, s2, 7\ns_lshr_b32 s9, s2, 3")
    e("s_and_b32 s10, s9, 3\ns_lshr_b32 s11, s9, 2")
    e("s_lshr_b32 s6, s8, 1\ns_lshl_b32 s6, s6, 2\ns_add_u32 s6, s6, s10")
    e("s_and_b32 s7, s8, 1\ns_mul_i32 s7, s7, 7\ns_add_u32 s7, s7, s11")
    e("v_lshrrev_b32 v20, 3, v1\nv_and_b32 v21, 7, v1\nv_lshrrev_b32 v22, 4, v1")
    e("s_lshl_b32 s8, s3, 4")
    e("v_add_u32 v23, s8, v20\nv_mul_u32_u24 v23, 896, v23")
    e("v_xor_b32 v24, v21, v22\nv_lshl_add_u32 v2, v24, 4, v23")
    e("v_xor_b32 v24, 4, v24\nv_lshl_add_u32 v3, v24, 4, v23\nv_add_u32 v3, 7168, v3")
    e("s_and_b32 s8, s3, 3\ns_lshl_b32 s8, s8, 4")
    e("v_add_u32 v23, s8, v22\nv_mul_u32_u24 v23, 3584, v23")
    e("s_lshr_b32 s9, s3, 2\ns_lshl_b32 s9, s9, 2\nv_or_b32 v24, s9, v22")
    e("v_bfe_u32 v25, v1, 1, 3\nv_xor_b32 v24, v24, v25\nv_and_b32 v26, 1, v1")
    e("v_lshl_or_b32 v27, v24, 1, v26\nv_lshl_add_u32 v4, v27, 4, v23")
    e("s_mul_i32 s88, s6, 114688\ns_lshl_b32 s89, s7, 8")
    e("s_lshl_b32 s90, s3, 11\ns_lshl_b32 s91, s3, 12")
    e(f"s_mul_i32 s70, s10, {O.rr}\ns_mul_i32 s9, s11, {O.rf}\ns_add_u32 s70, s70, s9\ns_mul_hi_u32 s9, s70, 0x24924925\ns_mul_i32 s9, s9, 7\ns_sub_u32 s70, s70, s9")
    def dma_x(c):
        pre = "s_lshl_b32 s71, s70, 7\ns_add_u32 s71, s71, s88\ns_mul_i32 s69, s70, 229376\ns_add_u32 s69, s69, s89\ns_add_u32 s70, s70, 1\ns_cmp_eq_u32 s70, 7\ns_cselect_b32 s70, 0, s70\n"
        return [((pre if ee == 0 else "") + f"s_add_u32 m0, s90, {XRING + (c % 3)*16384 + ee*1024}\ns_nop 0\nbuffer_load_dwordx4 v{2+ee}, {srd(S_X)}, s71 offen lds", ("C", c)) for ee in range(2)]
    def dma_w(c):
        return [(f"s_add_u32 m0, s91, {WRING + (c % 3)*32768 + ee*1024}\ns_add_u32 s8, s69, {4*ee*3584}\nbuffer_load_dwordx4 v4, {srd(S_WSEL)}, s8 offen lds", ("C", c)) for ee in range(4)]
    for c in range(2):
        for s in dma_x(c) + dma_w(c): x(s)
    e("s_mul_hi_u32 s12, s2, 0x24924925\ns_mul_i32 s13, s12, 7\ns_sub_u32 s13, s2, s13")
    e("v_and_b32 v23, 31, v1\nv_lshrrev_b32 v24, 5, v1")
    e("v_mul_u32_u24 v25, 3584, v24\nv_lshl_add_u32 v25, v23, 2, v25")
    e("s_mul_i32 s8, s12, 57344\ns_lshl_b32 s9, s13, 7\ns_add_u32 s8, s8, s9\ns_mul_i32 s9, s3, 7168\ns_add_u32 s8, s8, s9")
    e("v_add_u32 v194, s8, v25")
    e("v_lshlrev_b32 v195, 4, v23")
    for s in dma_x(2) + dma_w(2): x(s)
    def kv_loads():
        o = [(f"s_lshl_b32 s8, s13, 9\nbuffer_load_dwordx4 v[160:163], v195, {srd(S_SHK)}, s8 offen", "KVL")]
        for i in range(-3, 0):
            o.append((f"v_subrev_u32 v204, {-i*896}, v194\nbuffer_load_dword v{147+i}, v204, {srd(S_K)}, 0 offen", "KVL"))
        for i in range(4):
            o.append((f"buffer_load_dword v{147+i}, v194, {srd(S_K)}, 0 offen offset:{i*896}", "KVL"))
            o.append((f"buffer_load_dword v{152+i}, v194, {srd(S_V)}, 0 offen offset:{i*896}", "KVL"))
        return o
    def g1_touch():
        if not O.gt: return []
        o = []
        o.append(("\n".join([
            "s_lshr_b32 s8, s2, 3\ns_lshl_b32 s8, s8, 2\ns_and_b32 s9, s3, 3\ns_add_u32 s8, s8, s9\ns_lshl_b32 s8, s8, 5",
            "v_add_u32 v228, s8, v1\nv_mul_u32_u24 v229, 4682, v228\nv_lshrrev_b32 v229, 16, v229",
            "v_mul_u32_u24 v230, 14, v229\nv_sub_u32 v228, v228, v230",
            "v_mul_u32_u24 v229, 3584, v229\nv_lshl_add_u32 v228, v228, 7, v229",
            "v_cmp_gt_u32 vcc, 32, v1\nv_mov_b32 v230, 0x80000000\ns_and_b32 s9, s2, 1\nv_cndmask_b32 v228, v230, v228, vcc",
            f"s_mul_i32 s9, s9, 1792\ns_add_u32 s9, s9, {192*3584}",
            f"buffer_load_dword v231, v228, {srd(S_WSEL)}, s9 offen"]), "T"))
        o.append(("\n".join([
            "s_lshr_b32 s8, s2, 3\ns_lshl_b32 s8, s8, 3\ns_add_u32 s8, s8, s3\ns_mul_i32 s8, s8, 10",
            "v_add_u32 v228, s8, v1\nv_lshrrev_b32 v229, 2, v228\nv_and_b32 v228, 3, v228",
            "v_cmp_gt_u32 vcc, 512, v229\nv_cmp_gt_u32 s[10:11], 10, v1\nv_mul_u32_u24 v229, 896, v229\nv_lshl_add_u32 v228, v228, 7, v229",
            "s_and_b64 vcc, vcc, s[10:11]\ns_bfe_u32 s9, s2, 0x20001\ns_mul_i32 s9, s9, 458752\nv_cndmask_b32 v228, v230, v228, vcc",
            "s_add_u32 s9, s9, 384",
            f"buffer_load_dword v231, v228, {srd(S_X)}, s9 offen"]), "T"))
        return o
    def w2_touch():
        Lt_ = a.label("Ltw2")
        return "\n".join([f"s_cmp_lg_u32 s3, 7\ns_cbranch_scc1 {Lt_}",
            "s_mul_i32 s8, s2, 7168\nv_lshlrev_b32 v232, 7, v1\nv_cmp_gt_u32 vcc, 56, v1\nv_mov_b32 v233, 0x80000000\ns_nop 0\nv_cndmask_b32 v232, v233, v232, vcc",
            f"buffer_load_dword v233, v232, {srd(S_W2)}, s8 offen", f"{Lt_}:"])
    def w2f_loads():
        L = a.label("Lw2a")
        o = [f"s_cmp_lt_u32 s3, 6\ns_cbranch_scc1 {L}\ns_cmp_ge_u32 s2, 196\ns_cbranch_scc1 {L}",
             "s_lshl_b32 s8, s2, 1\ns_add_u32 s8, s8, s4\ns_mul_hi_u32 s98, s8, 0x24924925\ns_mul_i32 s99, s98, 7\ns_sub_u32 s99, s8, s99",
             "v_bfe_u32 v224, v1, 4, 1\nv_lshrrev_b32 v225, 5, v1\nv_lshl_add_u32 v224, v225, 2, v224\nv_mul_u32_u24 v224, 3584, v224\nv_and_b32 v225, 15, v1\nv_lshl_add_u32 v224, v225, 3, v224",
             "s_mul_i32 s8, s98, 28672\ns_lshl_b32 s9, s99, 7\ns_add_u32 s8, s8, s9\ns_add_u32 s9, s8, 7168"]
        for h in range(2):
            for i in range(4):
                r = 208 + (h*4 + i)*2
                o.append(f"buffer_load_dwordx2 v[{r}:{r+1}], v224, {srd(S_W2)}, s{8+h} offen offset:{i*896}")
        o.append(f"{L}:")
        return "\n".join(o)
    def w2f_store():
        L = a.label("Lw2b")
        e(f"s_cmp_lt_u32 s3, 6\ns_cbranch_scc1 {L}\ns_cmp_ge_u32 s2, 196\ns_cbranch_scc1 {L}")
        e("s_mov_b32 s10, 0x05040100\ns_mov_b32 s11, 0x07060302")
        e(f"s_mul_i32 s8, s99, 224\ns_lshl_b32 s9, s98, 1\ns_add_u32 s8, s8, s9\ns_lshl_b32 s8, s8, 10\ns_add_u32 s8, s8, {WS_W2F}\ns_add_u32 s9, s8, {112*1024}")
        e("v_lshrrev_b32 v224, 4, v1\nv_lshlrev_b32 v224, 9, v224\nv_and_b32 v225, 15, v1\nv_lshl_add_u32 v224, v225, 4, v224")
        for ee in range(4):
            d = 164 + ee*4
            for j in range(4):
                r0 = 208 + (2*j)*2 + (ee >> 1); r1 = r0 + 2
                e(f"v_perm_b32 v{d+j}, v{r1}, v{r0}, s{10 + (ee & 1)}")
            e(f"buffer_store_dwordx4 v[{d}:{d+3}], v224, {srd(S_WS)}, s{8 + (ee >> 1)} offen offset:{(ee & 1)*256} sc1")
        e(f"{L}:")
    if O.kv0:
        for s in kv_loads(): x(s)
    if O.tlb:
        Lt2 = a.label("Ltlb")
        e(f"s_cmp_lg_u32 s3, 7\ns_cbranch_scc1 {Lt2}")
        e(f"buffer_load_dword v220, off, {srd(S_SSMD)}, 0\nbuffer_load_dword v221, off, {srd(S_W2)}, 0\nbuffer_load_dword v222, off, {srd(S_OUT)}, 0")
        e("v_mov_b32 v226, 0\nglobal_load_dword v223, v226, s[24:25]")
        e(f"v_lshlrev_b32 v225, 21, v1\nv_add_u32 v225, {(2<<20) - 128}, v225\nv_subrev_u32 v226, 4, v1\nv_mul_u32_u24 v226, {8*HSTR}, v226\nv_add_u32 v226, {WS_H + 114688}, v226")
        e("v_cmp_gt_u32 vcc, 4, v1\ns_nop 1\nv_cndmask_b32 v225, v226, v225, vcc\nv_cmp_gt_u32 vcc, 12, v1\nv_mov_b32 v226, 0x80000000\ns_nop 0\nv_cndmask_b32 v225, v226, v225, vcc")
        e(f"buffer_load_dword v224, v225, {srd(S_WS)}, 0 offen")
        e(f"{Lt2}:")
    e(f"s_lshl_b32 s8, s3, 4\ns_sub_u32 s8, {L_KT + 120}, s8\nv_mul_u32_u24 v196, 272, v23\nv_lshlrev_b32 v24, 3, v24\nv_sub_u32 v196, v196, v24\nv_add_u32 v196, s8, v196")
    e(f"s_mul_i32 s8, s3, 1088\ns_add_u32 s8, s8, {L_KT}\nv_mul_u32_u24 v202, 136, v20\nv_lshl_add_u32 v202, v21, 4, v202\nv_add_u32 v202, s8, v202")
    e("v_lshlrev_b32 v203, 12, v20\nv_lshl_add_u32 v203, v21, 4, v203")
    e("s_lshl_b32 s15, s13, 18\ns_lshl_b32 s9, s3, 15\ns_add_u32 s15, s15, s9\ns_sub_u32 s9, 31, s12\ns_lshl_b32 s9, s9, 7\ns_add_u32 s15, s15, s9")
    e("s_lshl_b32 s43, s13, 5\ns_add_u32 s43, s43, s12")
    def kv_compute():
        o = []
        def up(d, s_, hi): return f"v_and_b32 v{d}, s14, v{s_}" if hi else f"v_lshlrev_b32 v{d}, 16, v{s_}"
        for c in range(2):
            for j in range(4): o.append(up(168 + j, 160 + 2*c + (j >> 1), j & 1))
            for i in range(7): o.append(up(172 + i, 144 + i, c))
            for i in range(4): o.append(f"v_mul_f32 v{180+i}, v168, v{175+i}")
            for lag in range(1, 4):
                for i in range(4): o.append(f"v_fmac_f32 v{180+i}, v{168+lag}, v{175+i-lag}")
            for i in range(4): o.append(up(172 + i, 152 + i, c))
            for i in range(4): o.append(f"v_mul_f32 v{180+i}, v{180+i}, v{172+i}")
            d = 186 + 2*c
            o.append(f"v_cvt_pk_bf16_f32 v{d}, v183, v182"); o.append(f"v_cvt_pk_bf16_f32 v{d+1}, v181, v180")
            o.append(f"ds_write_b64 v196, v[{d}:{d+1}] offset:{c*136}")
        return o
    e("v_and_b32 v23, 31, v1\nv_lshrrev_b32 v24, 5, v1\nv_bfe_u32 v25, v1, 1, 3")
    e("s_lshl_b32 s8, s4, 13\nv_lshlrev_b32 v26, 7, v23\nv_add_u32 v26, s8, v26")
    for st in range(4):
        e(f"v_or_b32 v27, {2*st}, v24\nv_xor_b32 v27, v27, v25\nv_lshl_add_u32 v{5+st}, v27, 4, v26")
    e("v_bfe_u32 v23, v1, 4, 1\nv_bfe_u32 v25, v1, 2, 2\nv_lshl_or_b32 v26, v23, 2, v25")
    e("v_lshl_add_u32 v27, v24, 3, v25\nv_lshlrev_b32 v27, 8, v27\nv_lshl_add_u32 v27, v23, 14, v27\nv_and_b32 v28, 3, v1\nv_lshl_add_u32 v27, v28, 3, v27")
    e(f"v_add_u32 v27, {WRING}, v27")
    for j in range(2):
        e(f"s_lshl_b32 s8, s5, 1\ns_add_u32 s8, s8, {j}\nv_xor_b32 v28, s8, v26\nv_lshl_add_u32 v{254+j}, v28, 5, v27")
    def reads(s):
        p = s // 4; st = s % 4; f = FRG[s % 4]; out = []
        for j in range(2):
            for t in range(2):
                out.append(f"ds_read_b64_tr_b16 v[{f+4*j+2*t}:{f+4*j+2*t+1}], v{10+j} offset:{(16*st + 4*t)*256}")
            out.append(f"ds_read_b128 v[{f+8+4*j}:{f+11+4*j}], v{5+st} offset:{XRING + (p % 3)*16384 + j*4096}")
        return out
    def mfmas(s):
        f = FRG[s % 4]; out = []
        for j in range(2):
            for t in range(2):
                C = vr(g1acc(j, t), 16)
                out.append(f"v_mfma_f32_32x32x16_bf16 {C}, {vr(f+4*j, 4)}, {vr(f+8+4*t, 4)}, {C if s > 0 else 0}")
        return out
    def ha_dma():
        o = ["\n".join([
            "s_lshl_b32 s9, s2, 1\ns_add_u32 s9, s9, s4\ns_lshl_b32 s9, s9, 12",
            f"s_add_u32 s{S_T0}, s24, s9\ns_addc_u32 s{S_T0+1}, s25, 0\ns_mov_b32 s{S_T0+2}, 4096\ns_mov_b32 s{S_T0+3}, 0x20000",
            "s_lshl_b32 s10, s5, 10",
            f"s_mul_i32 s11, s4, {HREG}\ns_add_u32 s11, s11, {L_HA}",
            "v_subrev_u32 v14, 256, v12"])]
        o.append((f"s_add_u32 m0, s11, s10\nv_add_u32 v15, s10, v14\nbuffer_load_dwordx4 v15, {srd(S_T0)}, 0 offen lds", "HA"))
        o.append((f"s_add_u32 m0, s11, 4096\nv_add_u32 v15, 4096, v14\nbuffer_load_dwordx4 v15, {srd(S_T0)}, 0 offen lds", "HA"))
        return o
    def stats_ops(p): return [], []
    e("s_and_b32 s8, s2, 7\ns_lshr_b32 s9, s2, 3\ns_mul_hi_u32 s10, s9, 0x24924925")
    e("s_mul_i32 s11, s10, 7\ns_sub_u32 s93, s9, s11\ns_lshl_b32 s92, s8, 2\ns_add_u32 s92, s92, s10")
    e(f"s_mul_i32 s8, s93, {O.rs}\ns_add_u32 s8, s8, s3\ns_and_b32 s8, s8, 7\ns_mul_i32 s95, s8, 200704\ns_lshl_b32 s9, s93, 7\ns_add_u32 s95, s95, s9")
    e("v_mul_u32_u24 v9, 896, v20\nv_lshl_add_u32 v9, v21, 4, v9\nv_bfe_u32 v23, v1, 4, 1\nv_lshlrev_b32 v23, 6, v23\nv_xor_b32 v9, v23, v9")
    e(f"v_and_b32 v238, 15, v1\nv_lshlrev_b32 v238, 4, v238\ns_lshl_b32 s8, s6, 11\ns_lshl_b32 s9, s3, 8\ns_add_u32 s8, s8, s9\ns_add_u32 s98, s8, {WS_ST}") if False else None
    e(f"v_lshrrev_b32 v23, 7, v0\nv_mul_u32_u24 v23, {UREG - 2048}, v23\nv_lshl_add_u32 v237, v0, 4, v23\nv_add_u32 v237, {L_UB + 4096}, v237")
    e(f"s_lshr_b32 s8, s3, 2\ns_mul_i32 s8, s8, 14336\ns_lshl_b32 s9, s7, 10\ns_add_u32 s8, s8, s9\ns_and_b32 s9, s3, 3\ns_lshl_b32 s9, s9, 8\ns_add_u32 s8, s8, s9\ns_add_u32 s68, s8, {WS_CS}")
    e("v_lshlrev_b32 v236, 3, v1\nv_and_b32 v236, 255, v236")
    def treads(s): return [[r, ("R", s)] for r in reads(s)]
    kvc = kv_compute()
    def u_dma():
        return ["\n".join([
            "s_lshl_b32 s9, s2, 1\ns_lshr_b32 s10, s3, 2\ns_add_u32 s9, s9, s10\ns_lshl_b32 s9, s9, 12",
            f"s_add_u32 s{S_T0}, s40, s9\ns_addc_u32 s{S_T0+1}, s41, 0\ns_mov_b32 s{S_T0+2}, 4096\ns_mov_b32 s{S_T0+3}, 0x20000",
            f"s_mul_i32 s10, s5, {UREG}\ns_lshl_b32 s11, s4, 11\ns_add_u32 s10, s10, s11\ns_add_u32 s10, s10, {L_UB}",
            "s_and_b32 s9, s5, 1\ns_lshl_b32 s9, s9, 2\ns_sub_u32 s9, 4, s9\ns_add_u32 s11, s11, s9",
            "v_lshrrev_b32 v14, 4, v1\ns_lshl_b32 s9, s4, 3\nv_or_b32 v14, s9, v14\nv_lshlrev_b32 v14, 4, v14\nv_xor_b32 v14, v14, v12\nv_add_u32 v14, s11, v14"]),
            (f"s_mov_b32 m0, s10\nv_xor_b32 v15, 64, v14\nbuffer_load_dwordx4 v14, {srd(S_T0)}, 0 offen sc1 lds", "U"),
            (f"s_add_u32 m0, s10, 1024\nv_add_u32 v15, 1024, v15\nbuffer_load_dwordx4 v15, {srd(S_T0)}, 0 offen sc1 lds", "U")]
    STL = f"s_lshl_b32 s8, s6, 11\ns_lshl_b32 s9, s3, 8\ns_add_u32 s8, s8, s9\ns_add_u32 s8, s8, {WS_ST}\nbuffer_load_dwordx4 v[240:243], v238, {srd(S_WS)}, s8 offen sc1"
    CSL = f"buffer_load_dwordx2 v[234:235], v236, {srd(S_WS)}, s68 offen sc1"
    e("v_and_b32 v238, 15, v1\nv_lshlrev_b32 v238, 4, v238")
    K = O.kd
    def tok_load():
        L = a.label("Ltk")
        return f"s_cmp_lg_u32 s3, 0\ns_cbranch_scc1 {L}\nbuffer_load_dword v197, off, {srd(S_DBG)}, 0 sc1\n{L}:"
    for p in range(7):
        need = [("C", p)]
        if p == 1 + K: need += ["KVL"]
        if p == 4 + K: need += ["KVS"]
        a.wait_vm(need, " lgkmcnt(0)")
        a.lq = []
        e("s_barrier")
        a.stamp(1 + p)
        e(f"v_add_u32 v10, {(p % 3)*32768}, v254\nv_add_u32 v11, {(p % 3)*32768}, v255")
        exA = []; exB = []; exV = []
        if 1 <= p <= 4: exA = dma_x(p + 2) + dma_w(p + 2)
        s0 = 4*p
        post = {}
        if p == 0: exB = ([] if O.kv0 else kv_loads()) + [tok_load()]
        if p == 1 + K: exV = kvc
        if p == 2 and O.touch: exB = [w2_touch()]
        if p == 2 + K: post[3] = "KVST"
        if p == 3: post[1] = "TOKEN"
        if p == 3 + K: exB = ha_dma()
        if p == 4: post[2] = "TOKRD"
        if p == 4 + K: post[3] = "FK"
        if p == 5:
            e(f"s_lshr_b32 s94, s2, 5\ns_lshl_b32 s94, s94, 7\ns_and_b32 s8, s2, 3\ns_lshl_b32 s8, s8, 10\ns_add_u32 s94, s94, s8\ns_add_u32 s94, s94, {WS_FK}")
            exA = [(CSL, "CSL"), (STL, "CSL")] + sum([w2_dma(k, SETA[k]) for k in range(3)], [])
        if p == 6:
            post[O.chk] = "CHK"
            Lk_ = a.label("Lpk")
            exA = [f"s_cmp_lg_u32 s3, 0\ns_cbranch_scc1 {Lk_}\nv_and_b32 v14, 124, v13\n" + poll_ins(15, 14, 94) + f"\n{Lk_}:", "v_mov_b32 v228, 0\nv_mov_b32 v229, 0\nv_mov_b32 v230, 0\nv_mov_b32 v231, 0\nds_write_b128 v237, v[228:231]"] + w2_dma(3, PX2)
        if p == 0:
            for r in treads(0) + treads(1): x(r)
            slots = [[] for _ in range(8)]
            mm = mfmas(0) + mfmas(1)
            rd = treads(2) + treads(3)
            for i in range(4): slots[i] += rd[3*i:3*i+3]
            for i, f_ in enumerate(exB): slots[i*8//len(exB)].append(f_)
            a.wait_l(("R", 0))
            for i, m in enumerate(mm):
                if i == 4: a.wait_l(("R", 1))
                x(m)
                for f_ in slots[i]: x(f_)
        else:
            mm = mfmas(s0-2) + mfmas(s0-1) + mfmas(s0) + mfmas(s0+1)
            slots = [[] for _ in range(16)]
            if p == 4: slots[0] += [f"v_mov_b32 v198, {L_LF + 96}", ["ds_read_b32 v197, v198", "TK"]]
            if p == 2 + K: slots[0] += [["ds_read_b64 v[144:145], v202", "KB"], ["ds_read_b64 v[146:147], v202 offset:8", "KB"]]
            rd = treads(s0) + treads(s0+1)
            for i in range(6): slots[i] += rd[2*i:2*i+2]
            rd = treads(s0+2)
            for i in range(3): slots[6+i] += rd[2*i:2*i+2]
            rd = treads(s0+3)
            for i in range(3): slots[9+i] += rd[2*i:2*i+2]
            startA = 4 if p == 2 + K else 0
            for i, f_ in enumerate(exA): slots[startA + i*((16 if p == 5 else 12)-startA)//max(1, len(exA))].append(f_)
            for i, f_ in enumerate(exV): slots[i*16//len(exV)].append(f_)
            for i, f_ in enumerate(exB): slots[(4 if p == 5 else 12) + i*4//max(1, len(exB))].append(f_)
            for i, m in enumerate(mm):
                if i == 8: a.wait_l(("R", s0))
                if i == 12: a.wait_l(("R", s0+1))
                x(m)
                if post.get(i) == "KVST":
                    a.wait_l("KB")
                    x((f"buffer_store_dwordx4 v[144:147], v203, {srd(S_WS)}, s15 offen sc1", "KVS"))
                if post.get(i) == "TOKEN":
                    L = a.label("Ltk2")
                    e(f"s_cmp_lg_u32 s3, 0\ns_cbranch_scc1 {L}")
                    token_get(a, 197)
                    e(f"v_mov_b32 v198, {L_LF + 96}\nds_write_b32 v198, v197")
                    e(f"{L}:")
                if post.get(i) == "TOKRD":
                    a.wait_l("TK")
                    e(f"v_readfirstlane_b32 s{S_TOK}, v197")
                if post.get(i) == "FK":
                    L = a.label("Lnf")
                    e(f"s_cmp_lg_u32 s3, 0\ns_cbranch_scc1 {L}")
                    e(f"s_lshl_b32 s8, s43, 2\ns_add_u32 s8, s8, {WS_FK}\nv_mov_b32 v14, s{S_TOK}\nv_and_b32 v15, 3, v1\nv_lshlrev_b32 v15, 10, v15")
                    e(f"buffer_store_dword v14, v15, {srd(S_WS)}, s8 offen sc1")
                    e(f"{L}:")
                if post.get(i) == "CHK":
                    a.wait_vm(["CSL"])
                    Lchk = a.label("Lcs"); Lok = a.label("Lcsok")
                    e("s_mov_b32 s10, 0")
                    e(f"{Lchk}:")
                    e(f"v_cmp_ne_u32 vcc, s{S_TOK}, v235\nv_cmp_ne_u32 s[8:9], s{S_TOK}, v242\ns_or_b64 vcc, vcc, s[8:9]\ns_cbranch_vccz {Lok}")
                    e(f"s_add_u32 s10, s10, 1\ns_cmp_gt_u32 s10, {O.spin}\ns_cbranch_scc1 {Lok}")
                    e(f"s_sleep 8\n{CSL}\n{STL}\ns_waitcnt vmcnt(0)\ns_branch {Lchk}")
                    e(f"{Lok}:")
                    x(f"s_lshl_b32 s8, s3, 7\ns_add_u32 s9, s8, {L_C2}\nv_lshrrev_b32 v236, 1, v236\nv_add_u32 v236, s9, v236\nds_write_b32 v236, v234")
                    x(f"s_add_u32 s9, s8, {L_ST}\nv_lshrrev_b32 v238, 1, v238\nv_add_u32 v238, s9, v238\nds_write_b64 v238, v[240:241]")
                for f_ in slots[i]: x(f_)
    Lk2 = a.label("Lpk2")
    e(f"s_cmp_lg_u32 s3, 0\ns_cbranch_scc1 {Lk2}")
    e("s_waitcnt vmcnt(2)")
    poll_check(a, 15, 14, 94, 32)
    e(f"{Lk2}:")
    e("s_waitcnt lgkmcnt(0)")
    e("s_barrier")
    e("v_lshrrev_b32 v2, 5, v1\nv_bfe_u32 v3, v1, 2, 2\nv_lshl_add_u32 v5, v2, 2, v3\nv_lshlrev_b32 v5, 7, v5")
    e("v_bfe_u32 v3, v1, 4, 1\nv_lshl_add_u32 v5, v3, 5, v5\nv_and_b32 v3, 3, v1\nv_lshl_add_u32 v5, v3, 3, v5")
    e("v_bfe_u32 v3, v1, 3, 1\nv_lshl_add_u32 v5, v3, 6, v5")
    e(f"s_add_u32 s8, s91, {WRING}\nv_add_u32 v7, s8, v5\nv_add_u32 v5, s90, v5\nv_xor_b32 v6, 64, v5\nv_xor_b32 v8, 64, v7")
    mm = mfmas(26) + mfmas(27)
    a.wait_vm([("W2", 3)])
    a.interleave(mm[:4], sum([w2_tr(k, SETA[k]) for k in range(3)], []) + w2_tr(3, PX2), per=4)
    Lu2 = a.label("Lu2")
    e(f"s_cmp_ge_u32 s3, 4\ns_cbranch_scc1 {Lu2}")
    e("s_lshl_b32 s9, s2, 1\ns_add_u32 s9, s9, s5\ns_lshl_b32 s9, s9, 12")
    e(f"s_add_u32 s{S_T0}, s40, s9\ns_addc_u32 s{S_T0+1}, s41, 0\ns_mov_b32 s{S_T0+2}, 4096\ns_mov_b32 s{S_T0+3}, 0x20000")
    e(f"s_mul_i32 s10, s3, {UREG}\ns_add_u32 s10, s10, {L_UB}\ns_lshl_b32 s9, s4, 2\ns_sub_u32 s11, 4, s9")
    e("v_lshrrev_b32 v14, 4, v1\nv_lshlrev_b32 v14, 4, v14\nv_xor_b32 v14, v14, v12\nv_add_u32 v14, s11, v14")
    for i in range(4):
        e(f"s_add_u32 m0, s10, {i*1024}\nv_xor_b32 v15, {64*i}, v14\nv_add_u32 v15, {i*1024}, v15\nbuffer_load_dwordx4 v15, {srd(S_T0)}, 0 offen sc1 lds")
    e(f"{Lu2}:")
    a.interleave(mm[4:], sum([w2_dma(4+k, SETC[k]) for k in range(3)], []), per=2)
    e("s_waitcnt lgkmcnt(0)")
    a.w2epi = sum([w2_dma(7+k, SETA[k]) for k in range(3)], []) + w2_dma(10, PX2)
    a.stamp(8)
    g1_epilogue(a)
    a.stamp(9)
    conv_loop(a)
    a.stamp(10)
    gemm2(a)

def pc_base(pc):
    kind, slot, idx = pc
    return ("s90", XRING + slot*16384) if kind == "X" else ("s91", WRING + slot*32768 + idx*2048)
def w2_dma(ks, pc):
    sreg, off = pc_base(pc)
    return [(f"s_add_u32 m0, {sreg}, {off + h*1024}\ns_add_u32 s8, s95, {(2*ks + h)*7168}\nbuffer_load_dwordx4 v9, {srd(S_W2)}, s8 offen lds", ("W2", ks)) for h in range(2)]
def w2_tr(ks, pc):
    kind, slot, idx = pc
    r = W2R + 8*ks
    off = XRING + slot*16384 if kind == "X" else slot*32768 + idx*2048
    b = 5 if kind == "X" else 7
    return [f"ds_read_b64_tr_b16 v[{r+4*mt+2*t}:{r+4*mt+2*t+1}], v{b+mt} offset:{off + t*1024}" for mt in range(2) for t in range(2)]
SETA = [("X", 1, 0), ("W", 1, 0), ("W", 1, 1)]
SETC = [("X", 0, 0), ("W", 0, 0), ("W", 0, 1)]
PX2 = ("X", 2, 0)

def g1_epilogue(a):
    e = a.e; x = a.x
    a.c("--- GEMM1 epilogue")
    T = 80
    e("v_lshrrev_b32 v2, 5, v1\nv_and_b32 v3, 31, v1")
    e(f"s_lshl_b32 s8, s5, 7\ns_add_u32 s8, s8, {L_C2}\nv_lshl_add_u32 v4, v2, 4, s8")
    for j in range(2):
        for mat in range(2):
            for q in range(2):
                r = T + ((j*2 + mat)*2 + q)*4
                e(f"ds_read_b128 v[{r}:{r+3}], v4 offset:{mat*512 + j*64 + q*32}")
    e(f"s_lshl_b32 s8, s4, 9\ns_add_u32 s8, s8, {L_ST}\nv_lshl_add_u32 v3, v3, 3, s8")
    for t in range(2): e(f"ds_read_b64 v[{T+32+2*t}:{T+33+2*t}], v3 offset:{t*256}")
    e(f"s_mov_b32 s11, {fbits(-LOG2E)}")
    e(f"s_lshl_b32 s8, s6, 2\ns_lshl_b32 s9, s4, 1\ns_add_u32 s8, s8, s9\ns_mul_i32 s12, s8, {HSTR}\ns_lshl_b32 s9, s7, 13\ns_add_u32 s12, s12, s9\ns_lshl_b32 s9, s5, 11\ns_add_u32 s12, s12, s9")
    e(f"s_add_u32 s12, s12, {WS_H}\ns_add_u32 s13, s12, {HSTR}")
    e("s_waitcnt lgkmcnt(0)")
    for t in range(2): e(f"v_mul_f32 v{T+36+t}, s11, v{T+33+2*t}")
    kk = 0
    E = T + 40
    for j in range(2):
        for t in range(2):
            A = g1acc(j, t); mean = T + 32 + 2*t; c1 = T + 36 + t
            cg = T + (j*2)*8; cu = cg + 8
            ops = []
            for r in range(8): ops.append(f"v_fma_f32 v{A+r}, -v{mean}, v{cg+r}, v{A+r}")
            for r in range(8): ops.append(f"v_mul_f32 v{E+r}, v{c1}, v{A+r}")
            for r in range(8): ops += [f"v_exp_f32 v{E+r}, v{E+r}", f"v_fma_f32 v{A+8+r}, -v{mean}, v{cu+r}, v{A+8+r}"]
            for r in range(8): ops.append(f"v_add_f32 v{E+r}, 1.0, v{E+r}")
            for r in range(8): ops += [f"v_rcp_f32 v{E+r}, v{E+r}", f"v_mul_f32 v{A+r}, v{A+r}, v{A+8+r}"]
            for r in range(8): ops.append(f"v_mul_f32 v{A+r}, v{A+r}, v{E+r}")
            for q in range(4): ops.append(f"v_cvt_pk_bf16_f32 v{A+8+q}, v{A+2*q}, v{A+2*q+1}")
            for i, o_ in enumerate(ops):
                e(o_)
                if i % 8 == 7 and a.w2epi: x(a.w2epi.pop(0))
            x((f"buffer_store_dwordx4 v[{A+8}:{A+11}], v12, {srd(S_WS)}, s{12+t} offen offset:{j*1024} sc1", "HS"))
    e("s_lshl_b32 s8, s6, 1\ns_add_u32 s8, s8, s4\ns_lshl_b32 s8, s8, 10\ns_lshl_b32 s9, s7, 2\ns_add_u32 s9, s9, s5\ns_mul_hi_u32 s10, s9, 0x24924925\ns_mul_i32 s11, s10, 100\ns_lshl_b32 s9, s9, 2\ns_add_u32 s8, s8, s9\ns_add_u32 s8, s8, s11")
    e(f"s_add_u32 s8, s8, {WS_FH}")
    e(f"v_mov_b32 v2, s{S_TOK}\ns_mov_b32 s12, s8")
    a.wait_vm([("W2", 10)])
    for k in range(3):
        for o_ in w2_tr(4+k, SETC[k]): e(o_)
    for k in range(3):
        for o_ in w2_tr(7+k, SETA[k]): e(o_)
    for o_ in w2_tr(10, PX2): e(o_)
    e("s_waitcnt vmcnt(0) lgkmcnt(0)")
    a.vm_reset()
    e(f"buffer_store_dword v2, off, {srd(S_WS)}, s12 sc1")
    for k in range(3):
        for z in w2_dma(11+k, SETC[k]): e(z[0])
    e(f"s_lshl_b32 s8, s3, 2\ns_add_u32 s8, s8, {L_LF + 64}\nv_mov_b32 v3, s8\nds_write_b32 v3, v2")
    Lw = a.label("Luf"); Lok = a.label("Lufok")
    e(f"s_cmp_lt_u32 s3, 4\ns_cbranch_scc1 {Lok}")
    e(f"s_and_b32 s8, s3, 2\ns_lshl_b32 s8, s8, 2\ns_add_u32 s8, s8, {L_LF + 64}\nv_and_b32 v3, 1, v1\nv_lshl_add_u32 v3, v3, 2, s8\ns_mov_b32 s9, 0")
    e(f"{Lw}:")
    e("ds_read_b32 v4, v3\ns_waitcnt lgkmcnt(0)")
    e(f"v_cmp_ne_u32 vcc, s{S_TOK}, v4\ns_cbranch_vccz {Lok}")
    e(f"s_add_u32 s9, s9, 1\ns_cmp_lt_u32 s9, {O.spin*50}\ns_cbranch_scc1 {Lw}")
    e(f"{Lok}:")

CR = 16; CS_ = 52; CACC = 104; CB = [88, 92, 96, 100]
def conv_loop(a):
    e = a.e
    a.c("--- conv loop")
    e("s_lshl_b32 s10, s2, 1\ns_bfe_u32 s11, s3, 0x10001\ns_add_u32 s10, s10, s11\ns_lshl_b32 s10, s10, 1")
    e(f"buffer_load_ushort v0, off, {srd(S_SSMD)}, s10")
    e("s_bfe_u32 s8, s3, 0x10001\ns_and_b32 s9, s3, 1")
    e("s_lshl_b32 s11, s9, 9\ns_add_u32 s11, s11, 1024\ns_cmp_ge_u32 s3, 4\ns_cselect_b32 s11, s11, 0")
    e("s_cselect_b32 s12, 7, 8")
    e("s_cselect_b64 s[88:89], -1, 0")
    t = 120
    e(f"v_and_b32 v{t}, 15, v1\nv_lshrrev_b32 v{t+1}, 4, v1")
    e(f"v_lshlrev_b32 v{t+2}, s12, v{t+1}\nv_add_u32 v{t+2}, s11, v{t+2}")
    e(f"v_lshl_add_u32 v2, v{t}, 3, v{t+2}\nv_lshlrev_b32 v2, 1, v2")
    e(f"s_mul_i32 s10, s8, {HREG}\ns_add_u32 s10, s10, {L_HA}\nv_add_u32 v2, s10, v2")
    e(f"v_or_b32 v{t+3}, 8, v{t}\nv_cmp_gt_u32 vcc, 8, v{t}\nv_mov_b32 v{t+5}, s9\ns_nop 0")
    e(f"v_cndmask_b32 v{t+4}, 0, 1, vcc")
    e(f"v_cndmask_b32 v{t+3}, v{t}, v{t+3}, s[88:89]\nv_cndmask_b32 v{t+4}, v{t+5}, v{t+4}, s[88:89]")
    e(f"v_sub_u32 v{t+3}, 15, v{t+3}\nv_lshrrev_b32 v{t+5}, 7, v{t+2}\nv_add_u32 v{t+3}, v{t+3}, v{t+5}")
    e(f"v_mul_u32_u24 v{t+4}, {UREG}, v{t+4}")
    e(f"s_mul_i32 s10, s8, {2*UREG}\ns_add_u32 s10, s10, {L_UB}\nv_add_u32 v{t+4}, s10, v{t+4}")
    for k, reg in ((0, 3), (1, 4)):
        e(f"v_add_u32 v{t+5}, {k}, v{t+3}\nv_and_b32 v{t+6}, 15, v{t+5}\nv_lshlrev_b32 v{t+5}, 8, v{t+5}\nv_lshl_or_b32 v{t+5}, v{t+6}, 4, v{t+5}\nv_add_u32 v{reg}, v{t+4}, v{t+5}")
    e(f"s_mul_i32 s8, s93, {O.rs}\ns_add_u32 s8, s8, s3\ns_and_b32 s8, s8, 7\ns_lshl_b32 s94, s92, 10\ns_lshl_b32 s8, s8, 7\ns_add_u32 s94, s94, s8\ns_add_u32 s94, s94, {WS_FH}\nv_and_b32 v14, 28, v13")
    e("s_mov_b64 vcc, s[88:89]")
    R = CR; S = CS_
    queue = []
    NB = 9
    def rdA(blk):
        it, q = divmod(blk, 8)
        outs = []
        if q == 0 and it > 0: outs.append(8)
        e(f"ds_read_b128 v[{R+4*q}:{R+4*q+3}], v2 offset:{16*blk}"); queue.append(("A", it, q))
    def rdA8(it):
        e(f"ds_read_b128 v[{R+32}:{R+35}], v2 offset:{16*(8*it+8)}"); queue.append(("A", it, 8))
    def rdB(st):
        b = CB[st % 4]; tmp = 10 + (st % 2)
        e(f"v_xor_b32 v{tmp}, {16*(st % 16)}, v{3 if st < 16 else 4}\nds_read_b128 v[{b}:{b+3}], v{tmp}"); queue.append(("B", st))
    def wait_for(tags):
        idx = max([i for i, x_ in enumerate(queue) if x_ in tags], default=-1)
        if idx >= 0:
            e(f"s_waitcnt lgkmcnt({len(queue) - 1 - idx})")
            del queue[:idx+1]
    w2 = []
    w2l = []
    rdA(0); rdB(0); rdA(1); rdA(2); rdB(1); rdA(3); rdB(2)
    Lout = a.label("Lconvout")
    for st in range(32):
        it, q = divmod(st, 8)
        last = st >= 29
        if q <= 3: rdA(8*it + q + 4)
        elif q == 4: rdA8(it)
        elif it < 3:
            if q == 5: rdA(8*it + 8)
            elif q == 6: rdA(8*it + 9); rdA(8*it + 10)
            else: rdA(8*it + 11)
        if st + 3 < 32: rdB(st + 3)
        if st == 13:
            Lq = a.label("Lq")
            e(f"s_cbranch_vccz {Lq}\n" + poll_ins(15, 14, 94) + f"\n{Lq}:")
        if st == 29: e(poll_ins(15, 14, 94))
        wait_for([("A", it, q), ("A", it, q+1), ("B", st)])
        if q == 0: e(f"v_alignbit_b32 v{S+2}, v{R+2}, v{R+1}, 16\nv_alignbit_b32 v{S+3}, v{R+3}, v{R+2}, 16")
        for i in range(4):
            k = 4*q + 4 + i
            e(f"v_alignbit_b32 v{S+k}, v{R+k}, v{R+k-1}, 16")
        Bq = vr(CB[st % 4], 4)
        def C(i): return vr(CACC + 4*i, 4)
        def Cin(i): return C(i) if st else "0"
        e(f"v_mfma_f32_16x16x32_bf16 {C(1)}, {vr(R+4*q+2,4)}, {Bq}, {Cin(1)}")
        if w2: e(w2.pop(0))
        e(f"v_mfma_f32_16x16x32_bf16 {C(3)}, {vr(R+4*q+4,4)}, {Bq}, {Cin(3)}")
        e(f"v_mfma_f32_16x16x32_bf16 {C(0)}, {vr(S+4*q+2,4)}, {Bq}, {Cin(0)}")
        if w2 and len(w2) > 15 - st: e(w2.pop(0))
        e(f"v_mfma_f32_16x16x32_bf16 {C(2)}, {vr(S+4*q+4,4)}, {Bq}, {Cin(2)}")
        if w2l and st < 16:
            Lq = a.label("Lq")
            e(f"s_cbranch_vccnz {Lq}\n" + w2l.pop(0) + f"\n{Lq}:")
        elif w2l: e(w2l.pop(0))
        if st == 15:
            e(f"s_cmp_ge_u32 s3, 4\ns_cbranch_scc1 {Lout}")
    e(f"{Lout}:")
    e("s_waitcnt lgkmcnt(0)")
    e(f"s_lshl_b32 s8, s3, 12\ns_add_u32 s8, s8, {L_YB}")
    e("v_add_u32 v2, s8, v12")
    e("s_nop 5")
    for a2 in range(4): e(f"ds_write_b128 v2, {vr(CACC+4*a2,4)} offset:{a2*1024}")
    e(f"s_lshl_b32 s8, s3, 2\ns_add_u32 s8, s8, {L_LF}\nv_mov_b32 v2, s8\nv_mov_b32 v3, s{S_TOK}")
    e("ds_write_b32 v2, v3")

def conv_final(a):
    e = a.e
    a.c("--- conv finalize")
    Lw = a.label("Llf"); Lok = a.label("Llfok")
    e(f"v_and_b32 v2, 7, v1\nv_lshlrev_b32 v2, 2, v2\nv_add_u32 v2, {L_LF}, v2")
    e("s_mov_b32 s12, 0x33\ns_lshl_b32 s13, s5, 1\ns_lshl_b32 s12, s12, s13\ns_mov_b32 s9, 0")
    e(f"{Lw}:")
    e("ds_read_b32 v3, v2\ns_waitcnt lgkmcnt(0)")
    e(f"v_cmp_ne_u32 vcc, s{S_TOK}, v3\ns_and_b32 s8, vcc_lo, s12\ns_cbranch_scc0 {Lok}")
    e(f"s_add_u32 s9, s9, 1\ns_cmp_lt_u32 s9, {O.spin*50}\ns_cbranch_scc1 {Lw}")
    e(f"{Lok}:")
    a.stamp(11)
    e(f"s_lshl_b32 s8, s5, 13\ns_lshl_b32 s11, s4, 9\ns_add_u32 s8, s8, s11\ns_add_u32 s8, s8, {L_YB}")
    e("v_add_u32 v2, s8, v13\nv_subrev_u32 v3, 128, v2")
    JM = [0, 1, 4, 5]
    e("v_lshrrev_b32 v16, 2, v1\nv_and_b32 v17, 3, v1\nv_sub_u32 v18, 15, v16")
    e(f"s_mul_i32 s12, s5, {2*UREG}\ns_add_u32 s12, s12, {L_UB + UREG}")
    for rr in range(2):
        Y = 24 + 28*rr
        for b in range(2):
            for a2 in range(4):
                e(f"ds_read_b32 v{Y + JM[a2] + 2*b}, v2 offset:{b*4096 + a2*1024 + rr*256}")
        e(f"s_lshl_b32 s11, s4, 3\ns_sub_u32 s11, {15 - 4*rr}, s11")
        e(f"v_sub_u32 v19, s11, v17\nv_xor_b32 v19, v19, v18\nv_lshlrev_b32 v20, 8, v18\nv_lshl_add_u32 v19, v19, 4, v20\nv_add_u32 v19, s12, v19")
        e(f"ds_read_b128 v[{Y+24}:{Y+27}], v19")
    e("s_mov_b32 exec_lo, 0")
    for rr in range(2):
        Y = 24 + 28*rr
        for u in range(2):
            for b in range(2):
                for a2 in range(4):
                    e(f"ds_read_b32 v{Y + 8 + 8*u + JM[a2] + 2*b}, v{2 if b == 0 else 3} offset:{16384 + u*4096 + a2*1024 + rr*256}")
    e("s_waitcnt lgkmcnt(0)")
    for rr in range(2):
        Y = 24 + 28*rr
        for j in range(8): e(f"v_add_f32 v{Y+8+j}, v{Y+8+j}, v{Y+16+j}\nv_add_f32 v{Y+j}, v{Y+j}, v{Y+8+j}")
    e("s_mov_b32 exec_lo, -1")
    e(f"s_lshl_b32 s8, s3, 2\ns_add_u32 s8, s8, {L_LF + 48}\nv_mov_b32 v2, s8\nv_mov_b32 v3, s{S_TOK}\nds_write_b32 v2, v3")
    e("v_lshlrev_b32 v0, 16, v0")
    e(f"s_lshl_b32 s10, s2, 1\ns_add_u32 s10, s10, s5\ns_lshl_b32 s10, s10, 12\ns_lshl_b32 s11, s4, 7\ns_add_u32 s10, s10, s11\ns_add_u32 s10, s10, {WS_Y}")
    e("v_lshlrev_b32 v16, 8, v16\nv_lshl_add_u32 v16, v17, 4, v16")
    for rr in range(2):
        Y = 24 + 28*rr
        for q in range(4):
            e(f"v_lshlrev_b32 v{Y+8}, 16, v{Y+24+q}\nv_and_b32 v{Y+9}, s14, v{Y+24+q}")
            e(f"v_fmac_f32 v{Y+7-2*q}, v0, v{Y+8}\nv_fmac_f32 v{Y+6-2*q}, v0, v{Y+9}")
        for q in range(4): e(f"v_cvt_pk_bf16_f32 v{Y+12+q}, v{Y+2*q}, v{Y+2*q+1}")
        e(f"buffer_store_dwordx4 v[{Y+12}:{Y+15}], v16, {srd(S_WS)}, s10 offen offset:{rr*64} sc1")
    e("s_nop 1")

def gemm2(a):
    e = a.e; x = a.x
    a.c("=== GEMM2 (8-way K split, register streams) ===")
    AC = 16; HB = 80; ND = 8
    def hbuf(s): return s if s < 8 else (s - 6 if s < 12 else s - 12)
    e("s_waitcnt vmcnt(0)")
    for k in range(3):
        for o_ in w2_tr(11+k, SETC[k]): e(o_)
    Lup = a.label("Lupper")
    e(f"s_cmp_ge_u32 s3, 4\ns_cbranch_scc1 {Lup}")
    conv_final(a)
    e(f"{Lup}:")
    a.stamp(12)
    poll_check(a, 15, 14, 94, 7)
    a.stamp(13)
    a.vm_reset()
    e(f"s_mul_i32 s8, s93, {O.rs}\ns_add_u32 s8, s8, s3\ns_and_b32 s8, s8, 7\ns_mul_i32 s9, s8, 14336\ns_mul_i32 s88, s92, {2*HSTR}\ns_add_u32 s88, s88, s9")
    e(f"s_add_u32 s88, s88, {WS_H}\ns_add_u32 s89, s88, {HSTR}")
    def hload(s):
        o = []
        for t in range(2):
            r = HB + ((s % ND)*2 + t)*4
            if s*1024 <= 4095: o.append((f"buffer_load_dwordx4 v[{r}:{r+3}], v12, {srd(S_WS)}, s{88+t} offen offset:{s*1024}{O.scl}", ("H", s)))
            else: o.append((f"s_add_u32 s8, s{88+t}, {s*1024}\nbuffer_load_dwordx4 v[{r}:{r+3}], v12, {srd(S_WS)}, s8 offen{O.scl}", ("H", s)))
        return o
    e("s_waitcnt lgkmcnt(0)")
    for s in range(ND):
        for z in hload(s): x(z)
    x((f"s_add_u32 m0, s91, {WRING}\ns_add_u32 s8, s88, 8192\n" + "\n".join(f"buffer_load_dwordx4 v12, {srd(S_WS)}, s8 offen offset:{i*1024}{O.scl} lds" for i in range(4)), "HL", 4))
    for hh in range(2):
        x((f"s_add_u32 m0, s90, {16384*(1+hh)}\ns_add_u32 s8, s89, {8192 + hh*2048}\n" + "\n".join(f"buffer_load_dwordx4 v12, {srd(S_WS)}, s8 offen offset:{i*1024}{O.scl} lds" for i in range(2)), "HL", 2))
    nbase = 0
    e(f"v_add_u32 v6, s90, v12\nv_add_u32 v4, s91, v12")
    e(f"s_lshl_b32 s94, s93, 9\ns_add_u32 s94, s94, {WS_FY}\nv_lshlrev_b32 v14, 3, v1")
    a.lq = []
    def conv(s): return []
    Lpr = a.label("Lpr")
    e(f"s_cmp_lt_u32 s3, 4\ns_cbranch_scc1 {Lpr}\ns_setprio 2\n{Lpr}:")
    for z in conv(0) + conv(1): x(z)
    e("v_lshrrev_b32 v0, 3, v1\nv_and_b32 v2, 7, v1\ns_lshl_b32 s8, s3, 3\nv_add_u32 v0, s8, v0")
    e("v_mul_u32_u24 v3, 896, v0\nv_lshl_add_u32 v3, v2, 4, v3")
    e("s_mul_i32 s43, s92, 57344\ns_lshl_b32 s9, s93, 7\ns_add_u32 s43, s43, s9")
    for s in range(14):
        if not (8 <= s < 12): a.wait_vm([("H", s)])
        else: a.wait_l(("HR", s))
        a.wait_l(("CV", s))
        if s == O.fys:
            L = a.label("Lfy")
            e(f"s_cmp_ge_u32 s3, 4\ns_cbranch_scc1 {L}")
            e(f"s_lshl_b32 s8, s2, 2\ns_add_u32 s8, s8, s3\ns_lshl_b32 s8, s8, 2\ns_add_u32 s8, s8, {WS_FY}\nv_mov_b32 v15, s{S_TOK}")
            e(f"s_waitcnt vmcnt({len(a.vm) - nbase})")
            e(f"buffer_store_dword v15, off, {srd(S_WS)}, s8 sc1")
            e(f"{L}:")
        cv = conv(s + 2) if s + 2 < 14 else []
        k = 0
        for mt in range(2):
            for t in range(2):
                C = vr(AC + (mt*2 + t)*16, 16)
                e(f"v_mfma_f32_32x32x16_bf16 {C}, {vr(W2R + 8*s + 4*mt, 4)}, {vr(HB + (hbuf(s)*2 + t)*4, 4)}, {C if s else 0}")
                for z in cv[2*k:2*k+2]: x(z)
                k += 1
        if s < 2:
            for t in range(2):
                r = HB + (s*2 + t)*4
                x((f"s_add_u32 s8, s{88+t}, {(12+s)*1024}\nbuffer_load_dwordx4 v[{r}:{r+3}], v12, {srd(S_WS)}, s8 offen{O.scl}", ("H", 12+s)))
        if s == 2:
            x((f"buffer_load_dwordx4 v[8:11], v3, {srd(S_X)}, s43 offen", "E"))
            x((f"s_lshl_b32 s70, s92, 10\ns_add_u32 s70, s70, {WS_ST}\nv_lshlrev_b32 v5, 4, v0\nbuffer_load_dwordx4 v[156:159], v5, {srd(S_WS)}, s70 offen sc1", "E"))
        if 5 <= s < 9:
            if s == 5: a.wait_vm(["HL"])
            for t in range(2):
                r = HB + ((s-3)*2 + t)*4
                x([f"ds_read_b128 v[{r}:{r+3}], v4 offset:{WRING + (s-5)*1024}" if t == 0 else f"ds_read_b128 v[{r}:{r+3}], v6 offset:{16384*(1+(s-5)//2) + ((s-5)%2)*1024}", ("HR", s+3)])
    a.stamp(14)
    Llow = a.label("Llow"); Lj = a.label("Lj")
    e(f"s_cmp_lt_u32 s3, 4\ns_cbranch_scc1 {Llow}")
    Lw3 = a.label("Llf3"); Lok3 = a.label("Llf3ok")
    e(f"v_and_b32 v80, 3, v1\nv_lshlrev_b32 v80, 2, v80\nv_add_u32 v80, {L_LF + 48}, v80\ns_mov_b32 s9, 0")
    e(f"{Lw3}:")
    e("ds_read_b32 v81, v80\ns_waitcnt lgkmcnt(0)")
    e(f"v_cmp_ne_u32 vcc, s{S_TOK}, v81\ns_cbranch_vccz {Lok3}")
    e(f"s_add_u32 s9, s9, 1\ns_cmp_lt_u32 s9, {O.spin*50}\ns_cbranch_scc1 {Lw3}")
    e(f"{Lok3}:")
    e(f"s_lshl_b32 s8, s3, 14\ns_add_u32 s8, s8, {81920 - 65536}\nv_add_u32 v80, s8, v12\ns_nop 7")
    for i in range(16): e(f"ds_write_b128 v80, {vr(AC + 4*i, 4)} offset:{i*1024}")
    e(f"s_lshl_b32 s8, s3, 2\ns_add_u32 s8, s8, {L_LF + 16}\nv_mov_b32 v80, s8\nv_mov_b32 v81, s{S_TOK}\nds_write_b32 v80, v81")
    e(f"s_cmp_lg_u32 s3, 4\ns_cbranch_scc1 {Lj}")
    Lchk = a.label("Lfyc"); Lok = a.label("Lfyok")
    e("s_mov_b32 s9, 0")
    e(f"{Lchk}:")
    e(f"buffer_load_dwordx2 v[144:145], v14, {srd(S_WS)}, s94 offen sc1\ns_waitcnt vmcnt(0)")
    e(f"v_xor_b32 v144, s{S_TOK}, v144\nv_xor_b32 v145, s{S_TOK}, v145\nv_or_b32 v144, v144, v145\nv_cmp_ne_u32 vcc, 0, v144\ns_cbranch_vccz {Lok}")
    e(f"s_add_u32 s9, s9, 1\ns_cmp_gt_u32 s9, {O.spin}\ns_cbranch_scc1 {Lok}")
    e(f"s_sleep 8\ns_branch {Lchk}")
    e(f"{Lok}:")
    e("v_lshrrev_b32 v15, 3, v1\nv_lshlrev_b32 v15, 12, v15\nv_lshl_add_u32 v15, v2, 4, v15")
    e(f"s_lshl_b32 s9, s93, 18\ns_lshl_b32 s10, s92, 7\ns_add_u32 s9, s9, s10\ns_add_u32 s9, s9, {WS_Y}")
    for i in range(8):
        e(f"s_mov_b32 m0, {L_YT + i*1040}\ns_add_u32 s10, s9, {i*32768}\nbuffer_load_dwordx4 v15, {srd(S_WS)}, s10 offen sc1 lds")
    e(f"s_branch {Lj}")
    e(f"{Llow}:")
    Lw = a.label("Llf2"); Lok = a.label("Llf2ok")
    e(f"s_lshl_b32 s8, s3, 2\ns_add_u32 s8, s8, {L_LF + 32}\nv_mov_b32 v4, s8\ns_mov_b32 s9, 0")
    e(f"{Lw}:")
    e("ds_read_b32 v5, v4\ns_waitcnt lgkmcnt(0)")
    e(f"v_cmp_ne_u32 vcc, s{S_TOK}, v5\ns_cbranch_vccz {Lok}")
    e(f"s_add_u32 s9, s9, 1\ns_cmp_lt_u32 s9, {O.spin*50}\ns_cbranch_scc1 {Lw}")
    e(f"{Lok}:")
    e("s_lshl_b32 s8, s3, 14\ns_add_u32 s8, s8, 81920\nv_add_u32 v4, s8, v12")
    for i in range(16): e(f"ds_read_b128 v[{80+4*i}:{83+4*i}], v4 offset:{i*1024}")
    for i in range(16):
        e(f"s_waitcnt lgkmcnt({15-i})")
        for r in range(4): e(f"v_add_f32 v{AC+4*i+r}, v{AC+4*i+r}, v{80+4*i+r}")
    e(f"{Lj}:")
    e("s_waitcnt lgkmcnt(0)")
    a.stamp(16)
    e("s_barrier")
    Lnw = a.label("Lnw")
    e(f"s_cmp_ge_u32 s3, 4\ns_cbranch_scc1 {Lnw}")
    e("v_and_b32 v80, 31, v1\nv_lshrrev_b32 v81, 5, v1\nv_mul_u32_u24 v80, 272, v80\nv_lshl_add_u32 v80, v81, 4, v80")
    e("s_mul_i32 s8, s3, 17408\nv_add_u32 v80, s8, v80")
    for mt in range(2):
        for t in range(2):
            for q in range(4):
                e(f"ds_write_b128 v80, {vr(AC + (mt*2+t)*16 + 4*q, 4)} offset:{t*32*272 + mt*128 + q*32}")
    e(f"{Lnw}:")
    e("s_waitcnt vmcnt(0) lgkmcnt(0)")
    e("s_barrier")
    a.stamp(17)
    e(f"v_mul_u32_u24 v82, 1040, v2\nv_lshl_add_u32 v82, v0, 1, v82\nv_add_u32 v82, {L_YT}, v82")
    for i in range(8): e(f"ds_read_u16 v{148+i}, v82 offset:{i*128}")
    e("v_mul_u32_u24 v80, 272, v0\nv_lshl_add_u32 v80, v2, 5, v80")
    for w in range(4):
        for hh in range(2):
            r = 48 + w*8 + hh*4
            e(f"ds_read_b128 v[{r}:{r+3}], v80 offset:{w*17408 + hh*16}")
    e(f"s_mov_b32 s11, {fbits(-LOG2E)}")
    for q in range(4): e(f"v_lshlrev_b32 v{104+2*q}, 16, v{8+q}\nv_and_b32 v{105+2*q}, s14, v{8+q}")
    e("s_waitcnt lgkmcnt(0)")
    for i in range(8): e(f"v_add_f32 v{48+i}, v{48+i}, v{56+i}\nv_add_f32 v{64+i}, v{64+i}, v{72+i}")
    for i in range(8): e(f"v_add_f32 v{32+i}, v{48+i}, v{64+i}")
    e("v_mov_b32 v6, v156\nv_mov_b32 v7, v157")
    e("v_mul_f32 v14, v7, v7\nv_mul_f32 v15, v6, v7")
    for i in range(8): e(f"v_mul_f32 v{32+i}, v14, v{32+i}")
    for i in range(8): e(f"v_mul_f32 v{40+i}, s11, v{32+i}")
    for i in range(8): e(f"v_exp_f32 v{40+i}, v{40+i}\nv_lshlrev_b32 v{96+i}, 16, v{148+i}\nv_fma_f32 v{112+i}, v{104+i}, v7, -v15")
    for i in range(8): e(f"v_add_f32 v{40+i}, 1.0, v{40+i}\nv_mul_f32 v{112+i}, v{112+i}, v{96+i}")
    for i in range(8): e(f"v_rcp_f32 v{40+i}, v{40+i}\nv_mul_f32 v{112+i}, v{112+i}, v{32+i}")
    e("s_nop 0")
    for i in range(8): e(f"v_fma_f32 v{104+i}, v{112+i}, v{40+i}, v{104+i}")
    for q in range(4): e(f"v_cvt_pk_bf16_f32 v{120+q}, v{104+2*q}, v{105+2*q}")
    e(f"buffer_store_dwordx4 v[120:123], v3, {srd(S_OUT)}, s43 offen")
    a.stamp(15)

def aux_path(a):
    e = a.e; x = a.x
    a.c("=== AUX ===")
    a.vm_reset()
    e("s_sub_u32 s4, s2, 224\ns_lshl_b32 s5, s4, 3\ns_add_u32 s5, s5, s3")
    Lnt = a.label("Lnt")
    e(f"s_cmp_lg_u32 s5, 0\ns_cbranch_scc1 {Lnt}")
    e("s_memrealtime s[8:9]\ns_waitcnt lgkmcnt(0)\ns_or_b32 s8, s8, 1\nv_mov_b32 v2, s8")
    e(f"buffer_store_dword v2, off, {srd(S_DBG)}, 0 sc1")
    e(f"{Lnt}:")
    e("v_lshrrev_b32 v2, 3, v1\nv_and_b32 v3, 7, v1\nv_lshrrev_b32 v4, 4, v1\nv_and_b32 v5, 15, v1")
    e("s_and_b32 s8, s4, 7\ns_lshr_b32 s9, s4, 3\ns_lshr_b32 s10, s8, 1\ns_lshl_b32 s10, s10, 2\ns_add_u32 s10, s10, s9")
    e("s_and_b32 s8, s8, 1\ns_mul_i32 s8, s8, 14\ns_add_u32 s12, s8, s10")
    e("s_cmp_ge_u32 s10, 14\ns_cselect_b32 s13, 0x80000000, 0")
    e("v_mul_u32_u24 v7, 3584, v2\nv_lshl_add_u32 v7, v3, 4, v7\nv_or_b32 v7, s13, v7")
    e("s_and_b32 s8, s4, 7\ns_lshl_b32 s8, s8, 8\ns_lshr_b32 s9, s4, 3\ns_lshl_b32 s9, s9, 6\ns_add_u32 s8, s8, s9\ns_lshl_b32 s9, s3, 3\ns_add_u32 s6, s8, s9")
    e("v_mul_u32_u24 v8, 896, v2\nv_lshl_add_u32 v8, v3, 4, v8\ns_mul_i32 s7, s6, 896")
    e("s_and_b32 s8, s3, 3\ns_mul_i32 s8, s8, 28672\ns_lshl_b32 s9, s12, 7\ns_add_u32 s8, s8, s9")
    for i in range(14):
        x((f"s_add_u32 s9, s8, {i*114688}\nbuffer_load_dwordx4 v[{48+4*i}:{51+4*i}], v7, {srd(S_WSEL)}, s9 offen", ("CS", i)))
        if i == O.apace:
            a.wait_vm([("CS", O.apace)])
            x((f"buffer_load_dword v15, off, {srd(S_DBG)}, 0 sc1", "TOK"))
    for j in range(7):
        x((f"buffer_load_dwordx4 v[{104+4*j}:{107+4*j}], v8, {srd(S_X)}, s7 offen offset:{j*128}", "XS"))
    C = 16
    for i in range(14):
        a.wait_vm([("CS", i)])
        for q in range(4):
            r = 48 + 4*i + q
            if i == 0: e(f"v_lshlrev_b32 v{C+2*q}, 16, v{r}\nv_and_b32 v{C+2*q+1}, s14, v{r}")
            else: e(f"v_lshlrev_b32 v{24+2*q}, 16, v{r}\nv_and_b32 v{25+2*q}, s14, v{r}")
        if i:
            for q in range(8): e(f"v_add_f32 v{C+q}, v{C+q}, v{24+q}")
    a.stamp(3)
    e("s_nop 1")
    for q in range(4): e(f"v_permlane32_swap_b32 v{C+q}, v{C+4+q}")
    e("s_nop 1")
    for q in range(4): e(f"v_add_f32 v{C+q}, v{C+q}, v{C+4+q}")
    e("s_nop 1")
    for q in range(2): e(f"v_permlane16_swap_b32 v{C+q}, v{C+2+q}")
    e("s_nop 1")
    for q in range(2): e(f"v_add_f32 v{C+q}, v{C+q}, v{C+2+q}")
    e("s_nop 1")
    for q in range(2): e(f"v_add_f32_dpp v{C+q}, v{C+q}, v{C+q} row_ror:8 row_mask:0xf bank_mask:0xf")
    e("v_lshrrev_b32 v24, 5, v1\nv_bfe_u32 v25, v1, 4, 1\nv_lshlrev_b32 v26, 5, v3\nv_lshl_add_u32 v26, v24, 4, v26\nv_lshl_add_u32 v26, v25, 3, v26")
    e("s_lshl_b32 s8, s3, 8\nv_add_u32 v26, s8, v26")
    e(f"ds_write_b64 v26, v[{C}:{C+1}]")
    e("s_waitcnt lgkmcnt(0)\ns_barrier")
    e("s_lshr_b32 s8, s3, 2\ns_lshl_b32 s9, s8, 10\nv_add_u32 v26, s9, v13")
    for q in range(4): e(f"ds_read_b32 v{28+q}, v26 offset:{q*256}")
    e("s_and_b32 s9, s3, 3\ns_cmp_lg_u32 s9, 0\ns_cselect_b32 s9, 0x80000000, s13\nv_lshlrev_b32 v27, 3, v1\nv_or_b32 v27, s9, v27")
    e("s_mov_b32 s10, s8")
    token_get(a, 15)
    e("s_waitcnt lgkmcnt(0)")
    e(f"v_add_f32 v28, v28, v29\nv_add_f32 v30, v30, v31\nv_add_f32 v28, v28, v30\nv_mov_b32 v29, s{S_TOK}")
    e(f"s_mul_i32 s8, s10, 14336\ns_lshl_b32 s9, s12, 9\ns_add_u32 s8, s8, s9\ns_add_u32 s8, s8, {WS_CS}")
    x((f"buffer_store_dwordx2 v[28:29], v27, {srd(S_WS)}, s8 offen sc1", "CST"))
    a.wait_vm(["XS"])
    e("v_mov_b32 v36, 0x3f803f80\nv_mov_b32 v32, 0\nv_mov_b32 v33, 0\nv_mov_b32 v34, 0\nv_mov_b32 v35, 0")
    for r in range(104, 132):
        e(f"v_dot2_f32_bf16 v{32 + 2*(r&1)}, v{r}, v36, v{32 + 2*(r&1)}\nv_dot2_f32_bf16 v{33 + 2*(r&1)}, v{r}, v{r}, v{33 + 2*(r&1)}")
    e("s_nop 2\nv_add_f32 v32, v32, v34\nv_add_f32 v33, v33, v35\ns_nop 1")
    for pat in ("quad_perm:[1,0,3,2]", "quad_perm:[2,3,0,1]", "row_half_mirror"):
        e(f"v_add_f32_dpp v32, v32, v32 {pat} row_mask:0xf bank_mask:0xf\nv_add_f32_dpp v33, v33, v33 {pat} row_mask:0xf bank_mask:0xf\ns_nop 1")
    e(f"v_mul_f32 v32, {fbits(1.0/448)}, v32\nv_mul_f32 v33, {fbits(1.0/448)}, v33\nv_fma_f32 v33, -v32, v32, v33\nv_max_f32 v33, 0, v33")
    e(f"v_add_f32 v33, {fbits(1e-5)}, v33\nv_rsq_f32 v33, v33\nv_mov_b32 v34, s{S_TOK}\nv_mov_b32 v35, s{S_TOK}")
    e(f"s_lshl_b32 s8, s6, 4\ns_add_u32 s8, s8, {WS_ST}\nv_lshlrev_b32 v26, 4, v2")
    e(f"buffer_store_dwordx4 v[32:35], v26, {srd(S_WS)}, s8 offen sc1")
    a.stamp(4)

def build():
    a = Gen()
    prologue(a)
    a.e("s_cmp_ge_u32 s2, 224\ns_cbranch_scc1 Laux")
    main_path(a)
    a.stamp_flush()
    a.e("s_endpgm")
    a.e("Laux:")
    aux_path(a)
    a.stamp_flush()
    a.e("Lend:")
    a.e("s_endpgm")
    a.e("Lcode_end:")
    k = NAME + "_kernel"
    out = [f"; @launch grid=(256,1,1) block=(512,1,1) lds={LDS_TOTAL}",
           '.amdgcn_target "amdgcn-amd-amdhsa--gfx950"\n.text', kernel_header(k), a.text(),
           '.section .rodata,"a"', kernel_desc(k, 256, 256)]
    return "\n".join(out) + "\n"

if __name__ == "__main__":
    for arg in sys.argv[1:]:
        if arg == "stamps": O.stamps = True
        elif arg == "cyc": O.cyc = True
        elif arg == "noct": O.ctouch = False
        elif arg == "notlb": O.tlb = False
        elif arg == "kd1": O.kd = 1; O.kv0 = False
        elif arg.startswith("rr="): O.rr = int(arg[3:])
        elif arg.startswith("rf="): O.rf = int(arg[3:])
        elif arg.startswith("rs="): O.rs = int(arg[3:])
        elif arg == "nogt": O.gt = False
        elif arg == "kv0": O.kv0 = True; O.kd = 0
        elif arg.startswith("w6="): O.w6 = int(arg[3:])
        elif arg == "sc1": O.scl = " sc1"
        elif arg == "notouch": O.touch = False
        elif arg.startswith("kt="): O.ktail = int(arg[3:])
    print(build())
```

```python
import sys, struct
from asmlib import *

NAME = "recurrent_scan__ssm_conv_h3__glu_gated_swiglu__prompt"
WS_KV = 0
WS_W2F = 2 << 20
WS_Y = 4 << 20
WS_ST = 6 << 20
WS_CS = (6 << 20) + 65536
WS_FLAG = (6 << 20) + 131072
WS_F1 = WS_FLAG
WS_FK = WS_FLAG + 65536
WS_FW = WS_FLAG + 2048
WS_FH = WS_FLAG + 32768
WS_FY = WS_FLAG + 16384
WS_H = 8 << 20
HSTR = 114688 + 128
WS_STAMP = 22 << 20
WS_SIZE = 24 << 20

S_X, S_WSEL, S_WS, S_K, S_V, S_SHK, S_SSMD, S_W2, S_OUT, S_DBG = 44, 48, 52, 56, 60, 64, 72, 76, 80, 84
S_T0 = 96
S_TOK = 42
def srd(b): return f"s[{b}:{b+3}]"
LOG2E = 1.4426950408889634
def fbits(f): return "0x%08x" % struct.unpack("<I", struct.pack("<f", f))[0]

class Opt: pass
O = Opt()
O.w6 = 0; O.fhd = 8; O.g2p = False; O.pk = True; O.ep = True; O.hfirst = False; O.tlb = True; O.ctouch = True; O.cvs = [0, 3, 6, 8, 10]; O.w4 = 4; O.chk = 8; O.rr = 0; O.rf = 0; O.rs = 0; O.gt = False; O.apace = 1; O.ebar = 1; O.kd = 0; O.kv0 = True; O.fys = 0; O.stamps = False; O.cyc = False; O.spin = 20000; O.scl = ""; O.touch = True; O.ktail = 6

STAMP_REGS = [16,17,18,19,20,21,22,23,26,27,28,29,30,31,32,33,34,35,36,37,38,39]
class Gen(Asm):
    def __init__(self):
        super().__init__()
        self.vm = []
        self.lq = []
    def x(self, item):
        if isinstance(item, tuple):
            self.e(item[0]); self.vm.extend([item[1]] * (item[2] if len(item) > 2 else 1))
        elif isinstance(item, list): self.l(item[0], item[1])
        else:
            self.e(item)
            for ln in item.split("\n"):
                if ln.startswith("ds_"): self.lq.append(None)
    def wait_vm(self, tags, extra=""):
        idx = -1
        for t in tags:
            ii = [i for i, v in enumerate(self.vm) if v == t]
            assert ii, t
            idx = max(idx, ii[-1])
        self.e(f"s_waitcnt vmcnt({min(63, len(self.vm) - 1 - idx)}){extra}")
    def vm_reset(self): self.vm = []
    def l(self, text, tag=None):
        self.e(text); self.lq.append(tag)
    def wait_l(self, tag):
        ii = [i for i, v in enumerate(self.lq) if v == tag]
        if not ii: return
        n = len(self.lq) - 1 - ii[-1]
        self.e(f"s_waitcnt lgkmcnt({min(15, n)})")
        if n <= 15: del self.lq[:ii[-1]+1]
    def stamp(self, idx):
        if not O.stamps: return
        self.e(("s_memtime" if O.cyc else "s_memrealtime") + " s[100:101]\ns_waitcnt lgkmcnt(0)")
        self.e(f"s_mov_b32 s{STAMP_REGS[idx]}, s100")
    def stamp_flush(self):
        if not O.stamps: return
        self.e("v_mov_b32 v2, 0")
        for i, r in enumerate(STAMP_REGS): self.e(f"v_writelane_b32 v2, s{r}, {i}")
        self.e(f"s_lshl_b32 s8, s2, 3\ns_add_u32 s8, s8, s3\ns_lshl_b32 s8, s8, 8\ns_add_u32 s8, s8, {WS_STAMP}")
        self.e("v_lshlrev_b32 v3, 2, v1")
        self.e(f"buffer_store_dword v2, v3, {srd(S_WS)}, s8 offen")
    def interleave(self, main, other, per=None):
        other = list(other)
        if per is None: per = max(1, -(-len(other) // max(1, len(main))))
        for m in main:
            self.x(m)
            for _ in range(per):
                if other: self.x(other.pop(0))
        for o in other: self.x(o)

XRING = 0; WRING = 49152
L_SP = 147456
L_KT = L_SP
L_HA = L_SP
HREG = 5120
L_CS = L_SP + 10240; L_ST = L_CS + 2048; L_C2 = L_ST + 1024; L_LF = L_C2 + 1024
L_UB = WRING + 65536
UREG = 6144
L_YB = WRING + 32768
L_YB2 = L_YB
L_YT = L_SP
LDS_TOTAL = L_SP + 10240 + 4096 + 256

def merge(x, y):
    o = []
    for i in range(max(len(x), len(y))):
        if i < len(x): o.append(x[i])
        if i < len(y): o.append(y[i])
    return o

def prologue(a):
    e = a.e
    e("s_cmp_ge_u32 s2, 256\ns_cbranch_scc1 Lend")
    e("s_load_dwordx16 s[16:31], s[0:1], 0")
    e("s_load_dwordx8 s[32:39], s[0:1], 64")
    e("s_load_dwordx2 s[40:41], s[0:1], 96")
    if O.ctouch:
        e("Lpc0:\ns_getpc_b64 s[8:9]")
        e("v_lshlrev_b32 v3, 7, v0\nv_min_u32 v3, Lcode_end-Lpc0-8, v3")
        e("global_load_dword v227, v3, s[8:9]")
    e("v_and_b32 v1, 63, v0\nv_lshrrev_b32 v2, 6, v0\ns_nop 0\nv_readfirstlane_b32 s3, v2")
    e("v_lshlrev_b32 v12, 4, v1\nv_lshlrev_b32 v13, 2, v1\ns_mov_b32 s14, 0xffff0000")
    e("s_waitcnt lgkmcnt(0)")
    e("s_memrealtime s[0:1]")
    def mk(b, p, size):
        e(f"s_mov_b32 s{b}, s{p}\ns_mov_b32 s{b+1}, s{p+1}\ns_mov_b32 s{b+2}, {size}\ns_mov_b32 s{b+3}, 0x20000")
    mk(S_X, 16, 1835008)
    e("s_cmp_ge_u32 s3, 4")
    e(f"s_cselect_b32 s{S_WSEL}, s32, s30\ns_cselect_b32 s{S_WSEL+1}, s33, s31")
    e(f"s_mov_b32 s{S_WSEL+2}, 1605632\ns_mov_b32 s{S_WSEL+3}, 0x20000")
    mk(S_WS, 40, WS_SIZE)
    mk(S_K, 18, 1835008); mk(S_V, 20, 1835008); mk(S_SHK, 22, 3584)
    mk(S_SSMD, 26, 896); mk(S_W2, 34, 1605632); mk(S_OUT, 36, 1835008); mk(S_DBG, 38, 256)
    e("s_waitcnt lgkmcnt(0)")
    if O.stamps:
        for r in STAMP_REGS: e(f"s_mov_b32 s{r}, 0")
    a.stamp(0)

def poll_ins(vflag, voff, soff, wide=False):
    if wide: return f"buffer_load_dwordx4 v[{vflag}:{vflag+3}], v{voff}, {srd(S_WS)}, s{soff} offen sc1"
    return f"buffer_load_dword v{vflag}, v{voff}, {srd(S_WS)}, s{soff} offen sc1"

def poll_check(a, vflag, voff, soff, nlanes, wide=False):
    e = a.e
    Lchk = a.label("Lchk"); Lok = a.label("Lok")
    e("s_mov_b32 s9, 0")
    e(f"{Lchk}:")
    if wide:
        for i in range(4): e(f"v_xor_b32 v{vflag+i}, s{S_TOK}, v{vflag+i}")
        e(f"v_or3_b32 v{vflag}, v{vflag}, v{vflag+1}, v{vflag+2}\nv_or_b32 v{vflag}, v{vflag}, v{vflag+3}")
        e(f"v_cmp_ne_u32 vcc, 0, v{vflag}")
    else:
        e(f"v_cmp_ne_u32 vcc, s{S_TOK}, v{vflag}")
    mask = (1 << nlanes) - 1 if nlanes <= 64 else nlanes
    if nlanes <= 32 or nlanes > 64: e(f"s_and_b32 s8, vcc_lo, {hex(mask)}")
    else: e(f"s_and_b32 s8, vcc_hi, {hex(mask >> 32)}\ns_or_b32 s8, s8, vcc_lo")
    e(f"s_cmp_eq_u32 s8, 0\ns_cbranch_scc1 {Lok}")
    e(f"s_add_u32 s9, s9, 1\ns_cmp_gt_u32 s9, {O.spin}\ns_cbranch_scc1 {Lok}")
    e("s_sleep 8")
    e(poll_ins(vflag, voff, soff, wide))
    e("s_waitcnt vmcnt(0)")
    e(f"s_branch {Lchk}")
    e(f"{Lok}:")

def token_get(a, vtok):
    e = a.e
    Lt = a.label("Ltok")
    e("s_mov_b32 s9, 0")
    e(f"{Lt}:")
    e(f"v_readfirstlane_b32 s{S_TOK}, v{vtok}")
    e(f"s_sub_u32 s8, s0, s{S_TOK}\ns_cmp_lt_i32 s8, 1000\ns_cselect_b32 s8, s{S_TOK}, 0\ns_cmp_gt_u32 s9, 64\ns_cselect_b32 s8, s{S_TOK}, s8")
    e(f"s_cmp_lg_u32 s8, 0\ns_cbranch_scc1 {Lt}_ok")
    e(f"s_add_u32 s9, s9, 1\ns_cmp_gt_u32 s9, {O.spin}\ns_cbranch_scc1 {Lt}_ok")
    e(f"s_sleep 8\nbuffer_load_dword v{vtok}, off, {srd(S_DBG)}, 0 sc1\ns_waitcnt vmcnt(0)\ns_branch {Lt}")
    e(f"{Lt}_ok:")

def flag_store_w0(a, idx_expr_sreg, base, vtmp):
    L = a.label("Lnf")
    a.e(f"s_cmp_lg_u32 s3, 0\ns_cbranch_scc1 {L}")
    a.e(f"s_lshl_b32 s8, s{idx_expr_sreg}, 2\ns_add_u32 s8, s8, {base}\nv_mov_b32 v{vtmp}, s{S_TOK}")
    a.e(f"buffer_store_dword v{vtmp}, off, {srd(S_WS)}, s8 sc1")
    a.e(f"{L}:")

def stats_row_issue(vdst, vtmp):
    return ("s_lshl_b32 s8, s2, 3\ns_add_u32 s8, s8, s3\ns_mul_i32 s8, s8, 896\n"
            f"v_cmp_gt_u32 vcc, 56, v1\nv_mov_b32 v{vtmp}, 0x80000000\ns_nop 0\nv_cndmask_b32 v{vtmp}, v{vtmp}, v12, vcc\n"
            f"buffer_load_dwordx4 v[{vdst}:{vdst+3}], v{vtmp}, {srd(S_X)}, s8 offen", "STL")

def stats_row_compute(vsrc, t):
    o = []
    o.append(f"v_mov_b32 v{t+2}, 0x3f803f80\nv_mov_b32 v{t}, 0\nv_mov_b32 v{t+1}, 0")
    for q in range(4):
        o.append(f"v_dot2_f32_bf16 v{t}, v{vsrc+q}, v{t+2}, v{t}\nv_dot2_f32_bf16 v{t+1}, v{vsrc+q}, v{vsrc+q}, v{t+1}")
    o.append("s_nop 2")
    for pat in ("quad_perm:[1,0,3,2]", "quad_perm:[2,3,0,1]", "row_half_mirror", "row_mirror"):
        o.append(f"v_add_f32_dpp v{t}, v{t}, v{t} {pat} row_mask:0xf bank_mask:0xf\nv_add_f32_dpp v{t+1}, v{t+1}, v{t+1} {pat} row_mask:0xf bank_mask:0xf\ns_nop 0")
    for sw in ("v_permlane16_swap_b32", "v_permlane32_swap_b32"):
        o.append(f"v_mov_b32 v{t+2}, v{t}\nv_mov_b32 v{t+3}, v{t+1}\ns_nop 1\n{sw} v{t}, v{t+2}\n{sw} v{t+1}, v{t+3}\ns_nop 1\nv_add_f32 v{t}, v{t}, v{t+2}\nv_add_f32 v{t+1}, v{t+1}, v{t+3}")
    o.append(f"v_mul_f32 v{t}, {fbits(1.0/448)}, v{t}\nv_mul_f32 v{t+1}, {fbits(1.0/448)}, v{t+1}")
    o.append(f"v_fma_f32 v{t+1}, -v{t}, v{t}, v{t+1}\nv_max_f32 v{t+1}, 0, v{t+1}\nv_add_f32 v{t+1}, {fbits(1e-5)}, v{t+1}\nv_rsq_f32 v{t+1}, v{t+1}")
    o.append((f"s_lshl_b32 s8, s2, 3\ns_add_u32 s8, s8, s3\ns_lshl_b32 s8, s8, 3\ns_add_u32 s8, s8, {WS_ST}\nbuffer_store_dwordx2 v[{t}:{t+1}], off, {srd(S_WS)}, s8 sc1", "STS"))
    return o

ACC = 16; FRG = [80, 96, 112, 128]; W2R = 144
def g1acc(j, t): return ACC + (2*j + t) * 16

def main_path(a):
    e = a.e; x = a.x
    a.c("=== MAIN: GEMM1 setup ===")
    e("s_and_b32 s4, s3, 1\ns_lshr_b32 s5, s3, 1")
    e("s_and_b32 s8, s2, 7\ns_lshr_b32 s9, s2, 3")
    e("s_and_b32 s10, s9, 3\ns_lshr_b32 s11, s9, 2")
    e("s_lshr_b32 s6, s8, 1\ns_lshl_b32 s6, s6, 2\ns_add_u32 s6, s6, s10")
    e("s_and_b32 s7, s8, 1\ns_mul_i32 s7, s7, 7\ns_add_u32 s7, s7, s11")
    e("v_lshrrev_b32 v20, 3, v1\nv_and_b32 v21, 7, v1\nv_lshrrev_b32 v22, 4, v1")
    e("s_lshl_b32 s8, s3, 4")
    e("v_add_u32 v23, s8, v20\nv_mul_u32_u24 v23, 896, v23")
    e("v_xor_b32 v24, v21, v22\nv_lshl_add_u32 v2, v24, 4, v23")
    e("v_xor_b32 v24, 4, v24\nv_lshl_add_u32 v3, v24, 4, v23\nv_add_u32 v3, 7168, v3")
    e("s_and_b32 s8, s3, 3\ns_lshl_b32 s8, s8, 4")
    e("v_add_u32 v23, s8, v22\nv_mul_u32_u24 v23, 3584, v23")
    e("s_lshr_b32 s9, s3, 2\ns_lshl_b32 s9, s9, 2\nv_or_b32 v24, s9, v22")
    e("v_bfe_u32 v25, v1, 1, 3\nv_xor_b32 v24, v24, v25\nv_and_b32 v26, 1, v1")
    e("v_lshl_or_b32 v27, v24, 1, v26\nv_lshl_add_u32 v4, v27, 4, v23")
    e("s_mul_i32 s88, s6, 114688\ns_lshl_b32 s89, s7, 8")
    e("s_lshl_b32 s90, s3, 11\ns_lshl_b32 s91, s3, 12")
    e(f"s_mul_i32 s70, s10, {O.rr}\ns_mul_i32 s9, s11, {O.rf}\ns_add_u32 s70, s70, s9\ns_mul_hi_u32 s9, s70, 0x24924925\ns_mul_i32 s9, s9, 7\ns_sub_u32 s70, s70, s9")
    def dma_x(c):
        pre = "s_lshl_b32 s71, s70, 7\ns_add_u32 s71, s71, s88\ns_mul_i32 s69, s70, 229376\ns_add_u32 s69, s69, s89\ns_add_u32 s70, s70, 1\ns_cmp_eq_u32 s70, 7\ns_cselect_b32 s70, 0, s70\n"
        return [((pre if ee == 0 else "") + f"s_add_u32 m0, s90, {XRING + (c % 3)*16384 + ee*1024}\ns_nop 0\nbuffer_load_dwordx4 v{2+ee}, {srd(S_X)}, s71 offen lds", ("C", c)) for ee in range(2)]
    def dma_w(c):
        return [(f"s_add_u32 m0, s91, {WRING + (c % 3)*32768 + ee*1024}\ns_add_u32 s8, s69, {4*ee*3584}\nbuffer_load_dwordx4 v4, {srd(S_WSEL)}, s8 offen lds", ("C", c)) for ee in range(4)]
    for c in range(2):
        for s in dma_x(c) + dma_w(c): x(s)
    e("s_mul_hi_u32 s12, s2, 0x24924925\ns_mul_i32 s13, s12, 7\ns_sub_u32 s13, s2, s13")
    e("v_and_b32 v23, 31, v1\nv_lshrrev_b32 v24, 5, v1")
    e("v_mul_u32_u24 v25, 3584, v24\nv_lshl_add_u32 v25, v23, 2, v25")
    e("s_mul_i32 s8, s12, 57344\ns_lshl_b32 s9, s13, 7\ns_add_u32 s8, s8, s9\ns_mul_i32 s9, s3, 7168\ns_add_u32 s8, s8, s9")
    e("v_add_u32 v194, s8, v25")
    e("v_lshlrev_b32 v195, 4, v23")
    for s in dma_x(2) + dma_w(2): x(s)
    def kv_loads():
        o = [(f"s_lshl_b32 s8, s13, 9\nbuffer_load_dwordx4 v[160:163], v195, {srd(S_SHK)}, s8 offen", "KVL")]
        for i in range(-3, 0):
            o.append((f"v_subrev_u32 v204, {-i*896}, v194\nbuffer_load_dword v{147+i}, v204, {srd(S_K)}, 0 offen", "KVL"))
        for i in range(4):
            o.append((f"buffer_load_dword v{147+i}, v194, {srd(S_K)}, 0 offen offset:{i*896}", "KVL"))
            o.append((f"buffer_load_dword v{152+i}, v194, {srd(S_V)}, 0 offen offset:{i*896}", "KVL"))
        return o
    def g1_touch():
        if not O.gt: return []
        o = []
        o.append(("\n".join([
            "s_lshr_b32 s8, s2, 3\ns_lshl_b32 s8, s8, 2\ns_and_b32 s9, s3, 3\ns_add_u32 s8, s8, s9\ns_lshl_b32 s8, s8, 5",
            "v_add_u32 v228, s8, v1\nv_mul_u32_u24 v229, 4682, v228\nv_lshrrev_b32 v229, 16, v229",
            "v_mul_u32_u24 v230, 14, v229\nv_sub_u32 v228, v228, v230",
            "v_mul_u32_u24 v229, 3584, v229\nv_lshl_add_u32 v228, v228, 7, v229",
            "v_cmp_gt_u32 vcc, 32, v1\nv_mov_b32 v230, 0x80000000\ns_and_b32 s9, s2, 1\nv_cndmask_b32 v228, v230, v228, vcc",
            f"s_mul_i32 s9, s9, 1792\ns_add_u32 s9, s9, {192*3584}",
            f"buffer_load_dword v231, v228, {srd(S_WSEL)}, s9 offen"]), "T"))
        o.append(("\n".join([
            "s_lshr_b32 s8, s2, 3\ns_lshl_b32 s8, s8, 3\ns_add_u32 s8, s8, s3\ns_mul_i32 s8, s8, 10",
            "v_add_u32 v228, s8, v1\nv_lshrrev_b32 v229, 2, v228\nv_and_b32 v228, 3, v228",
            "v_cmp_gt_u32 vcc, 512, v229\nv_cmp_gt_u32 s[10:11], 10, v1\nv_mul_u32_u24 v229, 896, v229\nv_lshl_add_u32 v228, v228, 7, v229",
            "s_and_b64 vcc, vcc, s[10:11]\ns_bfe_u32 s9, s2, 0x20001\ns_mul_i32 s9, s9, 458752\nv_cndmask_b32 v228, v230, v228, vcc",
            "s_add_u32 s9, s9, 384",
            f"buffer_load_dword v231, v228, {srd(S_X)}, s9 offen"]), "T"))
        return o
    def w2_touch():
        Lt_ = a.label("Ltw2")
        return "\n".join([f"s_cmp_lg_u32 s3, 7\ns_cbranch_scc1 {Lt_}",
            "s_mul_i32 s8, s2, 7168\nv_lshlrev_b32 v232, 7, v1\nv_cmp_gt_u32 vcc, 56, v1\nv_mov_b32 v233, 0x80000000\ns_nop 0\nv_cndmask_b32 v232, v233, v232, vcc",
            f"buffer_load_dword v233, v232, {srd(S_W2)}, s8 offen", f"{Lt_}:"])
    def w2f_loads():
        L = a.label("Lw2a")
        o = [f"s_cmp_lt_u32 s3, 6\ns_cbranch_scc1 {L}\ns_cmp_ge_u32 s2, 196\ns_cbranch_scc1 {L}",
             "s_lshl_b32 s8, s2, 1\ns_add_u32 s8, s8, s4\ns_mul_hi_u32 s98, s8, 0x24924925\ns_mul_i32 s99, s98, 7\ns_sub_u32 s99, s8, s99",
             "v_bfe_u32 v224, v1, 4, 1\nv_lshrrev_b32 v225, 5, v1\nv_lshl_add_u32 v224, v225, 2, v224\nv_mul_u32_u24 v224, 3584, v224\nv_and_b32 v225, 15, v1\nv_lshl_add_u32 v224, v225, 3, v224",
             "s_mul_i32 s8, s98, 28672\ns_lshl_b32 s9, s99, 7\ns_add_u32 s8, s8, s9\ns_add_u32 s9, s8, 7168"]
        for h in range(2):
            for i in range(4):
                r = 208 + (h*4 + i)*2
                o.append(f"buffer_load_dwordx2 v[{r}:{r+1}], v224, {srd(S_W2)}, s{8+h} offen offset:{i*896}")
        o.append(f"{L}:")
        return "\n".join(o)
    def w2f_store():
        L = a.label("Lw2b")
        e(f"s_cmp_lt_u32 s3, 6\ns_cbranch_scc1 {L}\ns_cmp_ge_u32 s2, 196\ns_cbranch_scc1 {L}")
        e("s_mov_b32 s10, 0x05040100\ns_mov_b32 s11, 0x07060302")
        e(f"s_mul_i32 s8, s99, 224\ns_lshl_b32 s9, s98, 1\ns_add_u32 s8, s8, s9\ns_lshl_b32 s8, s8, 10\ns_add_u32 s8, s8, {WS_W2F}\ns_add_u32 s9, s8, {112*1024}")
        e("v_lshrrev_b32 v224, 4, v1\nv_lshlrev_b32 v224, 9, v224\nv_and_b32 v225, 15, v1\nv_lshl_add_u32 v224, v225, 4, v224")
        for ee in range(4):
            d = 164 + ee*4
            for j in range(4):
                r0 = 208 + (2*j)*2 + (ee >> 1); r1 = r0 + 2
                e(f"v_perm_b32 v{d+j}, v{r1}, v{r0}, s{10 + (ee & 1)}")
            e(f"buffer_store_dwordx4 v[{d}:{d+3}], v224, {srd(S_WS)}, s{8 + (ee >> 1)} offen offset:{(ee & 1)*256} sc1")
        e(f"{L}:")
    if O.kv0:
        for s in kv_loads(): x(s)
    if O.tlb:
        Lt2 = a.label("Ltlb")
        e(f"s_cmp_lg_u32 s3, 7\ns_cbranch_scc1 {Lt2}")
        e(f"buffer_load_dword v220, off, {srd(S_SSMD)}, 0\nbuffer_load_dword v221, off, {srd(S_W2)}, 0\nbuffer_load_dword v222, off, {srd(S_OUT)}, 0")
        e("v_mov_b32 v226, 0\nglobal_load_dword v223, v226, s[24:25]")
        e(f"v_lshlrev_b32 v225, 21, v1\nv_add_u32 v225, {(2<<20) - 128}, v225\nv_subrev_u32 v226, 4, v1\nv_mul_u32_u24 v226, {8*HSTR}, v226\nv_add_u32 v226, {WS_H + 114688}, v226")
        e("v_cmp_gt_u32 vcc, 4, v1\ns_nop 1\nv_cndmask_b32 v225, v226, v225, vcc\nv_cmp_gt_u32 vcc, 12, v1\nv_mov_b32 v226, 0x80000000\ns_nop 0\nv_cndmask_b32 v225, v226, v225, vcc")
        e(f"buffer_load_dword v224, v225, {srd(S_WS)}, 0 offen")
        e(f"{Lt2}:")
    e(f"s_lshl_b32 s8, s3, 4\ns_sub_u32 s8, {L_KT + 120}, s8\nv_mul_u32_u24 v196, 272, v23\nv_lshlrev_b32 v24, 3, v24\nv_sub_u32 v196, v196, v24\nv_add_u32 v196, s8, v196")
    e(f"s_mul_i32 s8, s3, 1088\ns_add_u32 s8, s8, {L_KT}\nv_mul_u32_u24 v202, 136, v20\nv_lshl_add_u32 v202, v21, 4, v202\nv_add_u32 v202, s8, v202")
    e("v_lshlrev_b32 v203, 12, v20\nv_lshl_add_u32 v203, v21, 4, v203")
    e("s_lshl_b32 s15, s13, 18\ns_lshl_b32 s9, s3, 15\ns_add_u32 s15, s15, s9\ns_sub_u32 s9, 31, s12\ns_lshl_b32 s9, s9, 7\ns_add_u32 s15, s15, s9")
    e("s_lshl_b32 s43, s13, 5\ns_add_u32 s43, s43, s12")
    def kv_compute():
        o = []
        def up(d, s_, hi): return f"v_and_b32 v{d}, s14, v{s_}" if hi else f"v_lshlrev_b32 v{d}, 16, v{s_}"
        for c in range(2):
            for j in range(4): o.append(up(168 + j, 160 + 2*c + (j >> 1), j & 1))
            for i in range(7): o.append(up(172 + i, 144 + i, c))
            for i in range(4): o.append(f"v_mul_f32 v{180+i}, v168, v{175+i}")
            for lag in range(1, 4):
                for i in range(4): o.append(f"v_fmac_f32 v{180+i}, v{168+lag}, v{175+i-lag}")
            for i in range(4): o.append(up(172 + i, 152 + i, c))
            for i in range(4): o.append(f"v_mul_f32 v{180+i}, v{180+i}, v{172+i}")
            d = 186 + 2*c
            o.append(f"v_cvt_pk_bf16_f32 v{d}, v183, v182"); o.append(f"v_cvt_pk_bf16_f32 v{d+1}, v181, v180")
            o.append(f"ds_write_b64 v196, v[{d}:{d+1}] offset:{c*136}")
        return o
    e("v_and_b32 v23, 31, v1\nv_lshrrev_b32 v24, 5, v1\nv_bfe_u32 v25, v1, 1, 3")
    e("s_lshl_b32 s8, s4, 13\nv_lshlrev_b32 v26, 7, v23\nv_add_u32 v26, s8, v26")
    for st in range(4):
        e(f"v_or_b32 v27, {2*st}, v24\nv_xor_b32 v27, v27, v25\nv_lshl_add_u32 v{5+st}, v27, 4, v26")
    e("v_bfe_u32 v23, v1, 4, 1\nv_bfe_u32 v25, v1, 2, 2\nv_lshl_or_b32 v26, v23, 2, v25")
    e("v_lshl_add_u32 v27, v24, 3, v25\nv_lshlrev_b32 v27, 8, v27\nv_lshl_add_u32 v27, v23, 14, v27\nv_and_b32 v28, 3, v1\nv_lshl_add_u32 v27, v28, 3, v27")
    e(f"v_add_u32 v27, {WRING}, v27")
    for j in range(2):
        e(f"s_lshl_b32 s8, s5, 1\ns_add_u32 s8, s8, {j}\nv_xor_b32 v28, s8, v26\nv_lshl_add_u32 v{254+j}, v28, 5, v27")
    def reads(s):
        p = s // 4; st = s % 4; f = FRG[s % 4]; out = []
        for j in range(2):
            for t in range(2):
                out.append(f"ds_read_b64_tr_b16 v[{f+4*j+2*t}:{f+4*j+2*t+1}], v{10+j} offset:{(16*st + 4*t)*256}")
            out.append(f"ds_read_b128 v[{f+8+4*j}:{f+11+4*j}], v{5+st} offset:{XRING + (p % 3)*16384 + j*4096}")
        return out
    def mfmas(s):
        f = FRG[s % 4]; out = []
        for j in range(2):
            for t in range(2):
                C = vr(g1acc(j, t), 16)
                out.append(f"v_mfma_f32_32x32x16_bf16 {C}, {vr(f+4*j, 4)}, {vr(f+8+4*t, 4)}, {C if s > 0 else 0}")
        return out
    def ha_dma():
        o = ["\n".join([
            "s_lshl_b32 s9, s2, 1\ns_add_u32 s9, s9, s4\ns_lshl_b32 s9, s9, 12",
            f"s_add_u32 s{S_T0}, s24, s9\ns_addc_u32 s{S_T0+1}, s25, 0\ns_mov_b32 s{S_T0+2}, 4096\ns_mov_b32 s{S_T0+3}, 0x20000",
            "s_lshl_b32 s10, s5, 10",
            f"s_mul_i32 s11, s4, {HREG}\ns_add_u32 s11, s11, {L_HA}",
            "v_subrev_u32 v14, 256, v12"])]
        o.append((f"s_add_u32 m0, s11, s10\nv_add_u32 v15, s10, v14\nbuffer_load_dwordx4 v15, {srd(S_T0)}, 0 offen lds", "HA"))
        o.append((f"s_add_u32 m0, s11, 4096\nv_add_u32 v15, 4096, v14\nbuffer_load_dwordx4 v15, {srd(S_T0)}, 0 offen lds", "HA"))
        return o
    def stats_ops(p): return [], []
    e("s_and_b32 s8, s2, 7\ns_lshr_b32 s9, s2, 3\ns_mul_hi_u32 s10, s9, 0x24924925")
    e("s_mul_i32 s11, s10, 7\ns_sub_u32 s93, s9, s11\ns_lshl_b32 s92, s8, 2\ns_add_u32 s92, s92, s10")
    e(f"s_mul_i32 s8, s93, {O.rs}\ns_add_u32 s8, s8, s3\ns_and_b32 s8, s8, 7\ns_mul_i32 s95, s8, 200704\ns_lshl_b32 s9, s93, 7\ns_add_u32 s95, s95, s9")
    e("v_mul_u32_u24 v9, 896, v20\nv_lshl_add_u32 v9, v21, 4, v9\nv_bfe_u32 v23, v1, 4, 1\nv_lshlrev_b32 v23, 6, v23\nv_xor_b32 v9, v23, v9")
    e(f"v_and_b32 v238, 15, v1\nv_lshlrev_b32 v238, 4, v238\ns_lshl_b32 s8, s6, 11\ns_lshl_b32 s9, s3, 8\ns_add_u32 s8, s8, s9\ns_add_u32 s98, s8, {WS_ST}") if False else None
    e(f"v_lshrrev_b32 v23, 7, v0\nv_mul_u32_u24 v23, {UREG - 2048}, v23\nv_lshl_add_u32 v237, v0, 4, v23\nv_add_u32 v237, {L_UB + 4096}, v237")
    e(f"s_lshr_b32 s8, s3, 2\ns_mul_i32 s8, s8, 14336\ns_lshl_b32 s9, s7, 10\ns_add_u32 s8, s8, s9\ns_and_b32 s9, s3, 3\ns_lshl_b32 s9, s9, 8\ns_add_u32 s8, s8, s9\ns_add_u32 s68, s8, {WS_CS}")
    e("v_lshlrev_b32 v236, 3, v1\nv_and_b32 v236, 255, v236")
    def treads(s): return [[r, ("R", s)] for r in reads(s)]
    kvc = kv_compute()
    def u_dma():
        return ["\n".join([
            "s_lshl_b32 s9, s2, 1\ns_lshr_b32 s10, s3, 2\ns_add_u32 s9, s9, s10\ns_lshl_b32 s9, s9, 12",
            f"s_add_u32 s{S_T0}, s40, s9\ns_addc_u32 s{S_T0+1}, s41, 0\ns_mov_b32 s{S_T0+2}, 4096\ns_mov_b32 s{S_T0+3}, 0x20000",
            f"s_mul_i32 s10, s5, {UREG}\ns_lshl_b32 s11, s4, 11\ns_add_u32 s10, s10, s11\ns_add_u32 s10, s10, {L_UB}",
            "s_and_b32 s9, s5, 1\ns_lshl_b32 s9, s9, 2\ns_sub_u32 s9, 4, s9\ns_add_u32 s11, s11, s9",
            "v_lshrrev_b32 v14, 4, v1\ns_lshl_b32 s9, s4, 3\nv_or_b32 v14, s9, v14\nv_lshlrev_b32 v14, 4, v14\nv_xor_b32 v14, v14, v12\nv_add_u32 v14, s11, v14"]),
            (f"s_mov_b32 m0, s10\nv_xor_b32 v15, 64, v14\nbuffer_load_dwordx4 v14, {srd(S_T0)}, 0 offen sc1 lds", "U"),
            (f"s_add_u32 m0, s10, 1024\nv_add_u32 v15, 1024, v15\nbuffer_load_dwordx4 v15, {srd(S_T0)}, 0 offen sc1 lds", "U")]
    STL = f"s_lshl_b32 s8, s6, 11\ns_lshl_b32 s9, s3, 8\ns_add_u32 s8, s8, s9\ns_add_u32 s8, s8, {WS_ST}\nbuffer_load_dwordx4 v[240:243], v238, {srd(S_WS)}, s8 offen sc1"
    CSL = f"buffer_load_dwordx2 v[234:235], v236, {srd(S_WS)}, s68 offen sc1"
    e("v_and_b32 v238, 15, v1\nv_lshlrev_b32 v238, 4, v238")
    K = O.kd
    def tok_load():
        L = a.label("Ltk")
        return f"s_cmp_lg_u32 s3, 0\ns_cbranch_scc1 {L}\nbuffer_load_dword v197, off, {srd(S_DBG)}, 0 sc1\n{L}:"
    for p in range(7):
        need = [("C", p)]
        if p == 1 + K: need += ["KVL"]
        if p == 4 + K: need += ["KVS"]
        a.wait_vm(need, " lgkmcnt(0)")
        a.lq = []
        e("s_barrier")
        a.stamp(1 + p)
        e(f"v_add_u32 v10, {(p % 3)*32768}, v254\nv_add_u32 v11, {(p % 3)*32768}, v255")
        exA = []; exB = []; exV = []
        if 1 <= p <= 4: exA = dma_x(p + 2) + dma_w(p + 2)
        s0 = 4*p
        post = {}
        if p == 0: exB = ([] if O.kv0 else kv_loads()) + [tok_load()]
        if p == 1 + K: exV = kvc
        if p == 2 and O.touch: exB = [w2_touch()]
        if p == 2 + K: post[3] = "KVST"
        if p == 3: post[1] = "TOKEN"
        if p == 3 + K: exB = ha_dma()
        if p == 4: post[2] = "TOKRD"
        if p == 4 + K: post[3] = "FK"
        if p == 5:
            e(f"s_lshr_b32 s94, s2, 5\ns_lshl_b32 s94, s94, 7\ns_and_b32 s8, s2, 3\ns_lshl_b32 s8, s8, 10\ns_add_u32 s94, s94, s8\ns_add_u32 s94, s94, {WS_FK}")
            exA = [(CSL, "CSL"), (STL, "CSL")] + sum([w2_dma(k, SETA[k]) for k in range(3)], [])
        if p == 6:
            post[O.chk] = "CHK"
            Lk_ = a.label("Lpk")
            exA = [f"s_cmp_lg_u32 s3, 0\ns_cbranch_scc1 {Lk_}\nv_and_b32 v14, 124, v13\n" + poll_ins(15, 14, 94) + f"\n{Lk_}:", "v_mov_b32 v228, 0\nv_mov_b32 v229, 0\nv_mov_b32 v230, 0\nv_mov_b32 v231, 0\nds_write_b128 v237, v[228:231]", f"v_mov_b32 v232, {L_LF + 128}\nds_write_b32 v232, v228"] + w2_dma(3, PX2)
        if p == 0:
            for r in treads(0) + treads(1): x(r)
            slots = [[] for _ in range(8)]
            mm = mfmas(0) + mfmas(1)
            rd = treads(2) + treads(3)
            for i in range(4): slots[i] += rd[3*i:3*i+3]
            for i, f_ in enumerate(exB): slots[i*8//len(exB)].append(f_)
            a.wait_l(("R", 0))
            for i, m in enumerate(mm):
                if i == 4: a.wait_l(("R", 1))
                x(m)
                for f_ in slots[i]: x(f_)
        else:
            mm = mfmas(s0-2) + mfmas(s0-1) + mfmas(s0) + mfmas(s0+1)
            slots = [[] for _ in range(16)]
            if p == 4: slots[0] += [f"v_mov_b32 v198, {L_LF + 96}", ["ds_read_b32 v197, v198", "TK"]]
            if p == 2 + K: slots[0] += [["ds_read_b64 v[144:145], v202", "KB"], ["ds_read_b64 v[146:147], v202 offset:8", "KB"]]
            rd = treads(s0) + treads(s0+1)
            for i in range(6): slots[i] += rd[2*i:2*i+2]
            rd = treads(s0+2)
            for i in range(3): slots[6+i] += rd[2*i:2*i+2]
            rd = treads(s0+3)
            for i in range(3): slots[9+i] += rd[2*i:2*i+2]
            startA = 4 if p == 2 + K else 0
            for i, f_ in enumerate(exA): slots[startA + i*((16 if p == 5 else 12)-startA)//max(1, len(exA))].append(f_)
            for i, f_ in enumerate(exV): slots[i*16//len(exV)].append(f_)
            for i, f_ in enumerate(exB): slots[(4 if p == 5 else 12) + i*4//max(1, len(exB))].append(f_)
            for i, m in enumerate(mm):
                if i == 8: a.wait_l(("R", s0))
                if i == 12: a.wait_l(("R", s0+1))
                x(m)
                if post.get(i) == "KVST":
                    a.wait_l("KB")
                    x((f"buffer_store_dwordx4 v[144:147], v203, {srd(S_WS)}, s15 offen sc1", "KVS"))
                if post.get(i) == "TOKEN":
                    L = a.label("Ltk2")
                    e(f"s_cmp_lg_u32 s3, 0\ns_cbranch_scc1 {L}")
                    token_get(a, 197)
                    e(f"v_mov_b32 v198, {L_LF + 96}\nds_write_b32 v198, v197")
                    e(f"{L}:")
                if post.get(i) == "TOKRD":
                    a.wait_l("TK")
                    e(f"v_readfirstlane_b32 s{S_TOK}, v197")
                if post.get(i) == "FK":
                    L = a.label("Lnf")
                    e(f"s_cmp_lg_u32 s3, 0\ns_cbranch_scc1 {L}")
                    e(f"s_lshl_b32 s8, s43, 2\ns_add_u32 s8, s8, {WS_FK}\nv_mov_b32 v14, s{S_TOK}\nv_and_b32 v15, 3, v1\nv_lshlrev_b32 v15, 10, v15")
                    e(f"buffer_store_dword v14, v15, {srd(S_WS)}, s8 offen sc1")
                    e(f"{L}:")
                if post.get(i) == "CHK":
                    a.wait_vm(["CSL"])
                    Lchk = a.label("Lcs"); Lok = a.label("Lcsok")
                    e("s_mov_b32 s10, 0")
                    e(f"{Lchk}:")
                    e(f"v_cmp_ne_u32 vcc, s{S_TOK}, v235\nv_cmp_ne_u32 s[8:9], s{S_TOK}, v242\ns_or_b64 vcc, vcc, s[8:9]\ns_cbranch_vccz {Lok}")
                    e(f"s_add_u32 s10, s10, 1\ns_cmp_gt_u32 s10, {O.spin}\ns_cbranch_scc1 {Lok}")
                    e(f"s_sleep 8\n{CSL}\n{STL}\ns_waitcnt vmcnt(0)\ns_branch {Lchk}")
                    e(f"{Lok}:")
                    x(f"s_lshl_b32 s8, s3, 7\ns_add_u32 s9, s8, {L_C2}\nv_lshrrev_b32 v236, 1, v236\nv_add_u32 v236, s9, v236\nds_write_b32 v236, v234")
                    x(f"s_add_u32 s9, s8, {L_ST}\nv_lshrrev_b32 v238, 1, v238\nv_add_u32 v238, s9, v238\nds_write_b64 v238, v[240:241]")
                for f_ in slots[i]: x(f_)
    Lk2 = a.label("Lpk2")
    e(f"s_cmp_lg_u32 s3, 0\ns_cbranch_scc1 {Lk2}")
    e("s_waitcnt vmcnt(2)")
    poll_check(a, 15, 14, 94, 32)
    e(f"{Lk2}:")
    e("s_waitcnt lgkmcnt(0)")
    e("s_barrier")
    a.stamp(21)
    e("v_lshrrev_b32 v2, 5, v1\nv_bfe_u32 v3, v1, 2, 2\nv_lshl_add_u32 v5, v2, 2, v3\nv_lshlrev_b32 v5, 7, v5")
    e("v_bfe_u32 v3, v1, 4, 1\nv_lshl_add_u32 v5, v3, 5, v5\nv_and_b32 v3, 3, v1\nv_lshl_add_u32 v5, v3, 3, v5")
    e("v_bfe_u32 v3, v1, 3, 1\nv_lshl_add_u32 v5, v3, 6, v5")
    e(f"s_add_u32 s8, s91, {WRING}\nv_add_u32 v7, s8, v5\nv_add_u32 v5, s90, v5\nv_xor_b32 v6, 64, v5\nv_xor_b32 v8, 64, v7")
    mm = mfmas(26) + mfmas(27)
    a.wait_vm([("W2", 3)])
    a.interleave(mm[:4], sum([w2_tr(k, SETA[k]) for k in range(3)], []) + w2_tr(3, PX2), per=4)
    Lu2 = a.label("Lu2")
    e(f"s_cmp_ge_u32 s3, 4\ns_cbranch_scc1 {Lu2}")
    e("s_lshl_b32 s9, s2, 1\ns_add_u32 s9, s9, s5\ns_lshl_b32 s9, s9, 12")
    e(f"s_add_u32 s{S_T0}, s40, s9\ns_addc_u32 s{S_T0+1}, s41, 0\ns_mov_b32 s{S_T0+2}, 4096\ns_mov_b32 s{S_T0+3}, 0x20000")
    e(f"s_mul_i32 s10, s3, {UREG}\ns_add_u32 s10, s10, {L_UB}\ns_lshl_b32 s9, s4, 2\ns_sub_u32 s11, 4, s9")
    e("v_lshrrev_b32 v14, 4, v1\nv_lshlrev_b32 v14, 4, v14\nv_xor_b32 v14, v14, v12\nv_add_u32 v14, s11, v14")
    for i in range(4):
        e(f"s_add_u32 m0, s10, {i*1024}\nv_xor_b32 v15, {64*i}, v14\nv_add_u32 v15, {i*1024}, v15\nbuffer_load_dwordx4 v15, {srd(S_T0)}, 0 offen sc1 lds")
    e("s_lshl_b32 s10, s2, 1\ns_bfe_u32 s11, s3, 0x10001\ns_add_u32 s10, s10, s11\ns_lshl_b32 s10, s10, 1")
    e(f"buffer_load_ushort v0, off, {srd(S_SSMD)}, s10")
    e(f"{Lu2}:")
    a.interleave(mm[4:], sum([w2_dma(4+k, SETC[k]) for k in range(3)], []), per=2)
    e("s_waitcnt lgkmcnt(0)")
    a.w2epi = sum([w2_dma(7+k, SETA[k]) for k in range(3)], []) + w2_dma(10, PX2)
    a.stamp(8)
    g1_epilogue(a)
    a.stamp(9)
    conv_loop(a)
    a.stamp(10)
    gemm2(a)

def pc_base(pc):
    kind, slot, idx = pc
    return ("s90", XRING + slot*16384) if kind == "X" else ("s91", WRING + slot*32768 + idx*2048)
def w2_dma(ks, pc):
    sreg, off = pc_base(pc)
    return [(f"s_add_u32 m0, {sreg}, {off + h*1024}\ns_add_u32 s8, s95, {(2*ks + h)*7168}\nbuffer_load_dwordx4 v9, {srd(S_W2)}, s8 offen lds", ("W2", ks)) for h in range(2)]
def w2_tr(ks, pc):
    kind, slot, idx = pc
    r = W2R + 8*ks
    off = XRING + slot*16384 if kind == "X" else slot*32768 + idx*2048
    b = 5 if kind == "X" else 7
    return [f"ds_read_b64_tr_b16 v[{r+4*mt+2*t}:{r+4*mt+2*t+1}], v{b+mt} offset:{off + t*1024}" for mt in range(2) for t in range(2)]
SETA = [("X", 1, 0), ("W", 1, 0), ("W", 1, 1)]
SETC = [("X", 0, 0), ("W", 0, 0), ("W", 0, 1)]
PX2 = ("X", 2, 0)

def g1_epilogue(a):
    e = a.e; x = a.x
    a.c("--- GEMM1 epilogue")
    if O.ep: e("s_setprio 2")
    T = 80
    e("v_lshrrev_b32 v2, 5, v1\nv_and_b32 v3, 31, v1")
    e(f"s_lshl_b32 s8, s5, 7\ns_add_u32 s8, s8, {L_C2}\nv_lshl_add_u32 v4, v2, 4, s8")
    for j in range(2):
        for mat in range(2):
            for q in range(2):
                r = T + ((j*2 + mat)*2 + q)*4
                e(f"ds_read_b128 v[{r}:{r+3}], v4 offset:{mat*512 + j*64 + q*32}")
    e(f"s_lshl_b32 s8, s4, 9\ns_add_u32 s8, s8, {L_ST}\nv_lshl_add_u32 v3, v3, 3, s8")
    for t in range(2): e(f"ds_read_b64 v[{T+32+2*t}:{T+33+2*t}], v3 offset:{t*256}")
    e(f"s_mov_b32 s11, {fbits(-LOG2E)}")
    e(f"s_lshl_b32 s8, s6, 2\ns_lshl_b32 s9, s4, 1\ns_add_u32 s8, s8, s9\ns_mul_i32 s12, s8, {HSTR}\ns_lshl_b32 s9, s7, 13\ns_add_u32 s12, s12, s9\ns_lshl_b32 s9, s5, 11\ns_add_u32 s12, s12, s9")
    e(f"s_add_u32 s12, s12, {WS_H}\ns_add_u32 s13, s12, {HSTR}")
    e("s_waitcnt lgkmcnt(0)")
    for t in range(2): e(f"v_mul_f32 v{T+36+t}, s11, v{T+33+2*t}")
    kk = 0
    E = T + 40
    for j in range(2):
        for t in range(2):
            A = g1acc(j, t); mean = T + 32 + 2*t; c1 = T + 36 + t
            cg = T + (j*2)*8; cu = cg + 8
            ops = []
            if O.pk:
                c1p = T + 36; sel = "op_sel_hi:[0,1]" if t == 0 else "op_sel:[1,0] op_sel_hi:[1,1]"
                P2 = lambda r: f"v[{r}:{r+1}]"
                for r in range(0, 8, 2): ops.append(f"v_pk_fma_f32 {P2(A+r)}, {P2(mean)}, {P2(cg+r)}, {P2(A+r)} op_sel_hi:[0,1,1] neg_lo:[1,0,0] neg_hi:[1,0,0]")
                for r in range(0, 8, 2): ops.append(f"v_pk_mul_f32 {P2(E+r)}, {P2(c1p)}, {P2(A+r)} {sel}")
                for r in range(0, 8, 2): ops += [f"v_exp_f32 v{E+r}, v{E+r}", f"v_exp_f32 v{E+r+1}, v{E+r+1}", f"v_pk_fma_f32 {P2(A+8+r)}, {P2(mean)}, {P2(cu+r)}, {P2(A+8+r)} op_sel_hi:[0,1,1] neg_lo:[1,0,0] neg_hi:[1,0,0]"]
                for r in range(0, 8, 2): ops.append(f"v_pk_add_f32 {P2(E+r)}, {P2(E+r)}, 1.0 op_sel_hi:[1,0]")
                for r in range(0, 8, 2): ops += [f"v_rcp_f32 v{E+r}, v{E+r}", f"v_rcp_f32 v{E+r+1}, v{E+r+1}", f"v_pk_mul_f32 {P2(A+r)}, {P2(A+r)}, {P2(A+8+r)}"]
                for r in range(0, 8, 2): ops.append(f"v_pk_mul_f32 {P2(A+r)}, {P2(A+r)}, {P2(E+r)}")
            else:
                for r in range(8): ops.append(f"v_fma_f32 v{A+r}, -v{mean}, v{cg+r}, v{A+r}")
                for r in range(8): ops.append(f"v_mul_f32 v{E+r}, v{c1}, v{A+r}")
                for r in range(8): ops += [f"v_exp_f32 v{E+r}, v{E+r}", f"v_fma_f32 v{A+8+r}, -v{mean}, v{cu+r}, v{A+8+r}"]
                for r in range(8): ops.append(f"v_add_f32 v{E+r}, 1.0, v{E+r}")
                for r in range(8): ops += [f"v_rcp_f32 v{E+r}, v{E+r}", f"v_mul_f32 v{A+r}, v{A+r}, v{A+8+r}"]
                for r in range(8): ops.append(f"v_mul_f32 v{A+r}, v{A+r}, v{E+r}")
            for q in range(4): ops.append(f"v_cvt_pk_bf16_f32 v{A+8+q}, v{A+2*q}, v{A+2*q+1}")
            for i, o_ in enumerate(ops):
                e(o_)
                if i % 5 == 4 and a.w2epi: x(a.w2epi.pop(0))
            x((f"buffer_store_dwordx4 v[{A+8}:{A+11}], v12, {srd(S_WS)}, s{12+t} offen offset:{j*1024} sc1", "HS"))
    e("s_lshl_b32 s8, s6, 1\ns_add_u32 s8, s8, s4\ns_lshl_b32 s8, s8, 10\ns_lshl_b32 s9, s7, 2\ns_add_u32 s9, s9, s5\ns_mul_hi_u32 s10, s9, 0x24924925\ns_mul_i32 s11, s10, 100\ns_lshl_b32 s9, s9, 2\ns_add_u32 s8, s8, s9\ns_add_u32 s8, s8, s11")
    e(f"s_add_u32 s8, s8, {WS_FH}")
    e(f"v_mov_b32 v2, s{S_TOK}\ns_mov_b32 s12, s8")
    a.stamp(18)
    a.wait_vm([("W2", 10)])
    a.stamp(19)
    for k in range(3):
        for o_ in w2_tr(4+k, SETC[k]): e(o_)
    for k in range(3):
        for o_ in w2_tr(7+k, SETA[k]): e(o_)
    for o_ in w2_tr(10, PX2): e(o_)
    e("s_waitcnt vmcnt(0) lgkmcnt(0)")
    a.stamp(20)
    a.vm_reset()
    e(f"buffer_store_dword v2, off, {srd(S_WS)}, s12 sc1")
    for k in range(3):
        for z in w2_dma(11+k, SETC[k]): e(z[0])
    e(f"s_lshl_b32 s8, s3, 2\ns_add_u32 s8, s8, {L_LF + 64}\nv_mov_b32 v3, s8\nds_write_b32 v3, v2")

CR = 16; CS_ = 52; CACC = 104; CB = [88, 92, 96, 100]
def conv_loop(a):
    e = a.e
    a.c("--- conv loop")
    if O.ep: e("s_setprio 0")
    e(f"s_mul_i32 s8, s93, {O.rs}\ns_add_u32 s8, s8, s3\ns_and_b32 s8, s8, 7\ns_lshl_b32 s94, s92, 10\ns_lshl_b32 s8, s8, 7\ns_add_u32 s94, s94, s8\ns_add_u32 s94, s94, {WS_FH - 512}\nv_and_b32 v14, 28, v13\nv_bfe_u32 v15, v1, 3, 1\nv_xor_b32 v15, 1, v15\nv_lshl_or_b32 v14, v15, 9, v14")
    Lskip = a.label("Lnoconv"); Lagain = a.label("Lconv2")
    Lup0 = a.label("Lup0")
    e(f"s_cmp_lt_u32 s3, 4\ns_cbranch_scc1 {Lup0}")
    e(f"s_branch {Lskip}")
    e(f"{Lup0}:")
    e("s_mov_b32 s71, s3")
    e(f"{Lagain}:")
    e("s_bfe_u32 s8, s3, 0x10001\ns_and_b32 s9, s3, 1")
    e("s_lshl_b32 s11, s9, 9\ns_add_u32 s11, s11, 1024\ns_cmp_ge_u32 s71, 4\ns_cselect_b32 s11, s11, 0")
    e("s_cselect_b32 s12, 7, 8")
    e("s_cselect_b64 s[88:89], -1, 0")
    t = 120
    e(f"v_and_b32 v{t}, 15, v1\nv_lshrrev_b32 v{t+1}, 4, v1")
    e(f"v_lshlrev_b32 v{t+2}, s12, v{t+1}\nv_add_u32 v{t+2}, s11, v{t+2}")
    e(f"v_lshl_add_u32 v2, v{t}, 3, v{t+2}\nv_lshlrev_b32 v2, 1, v2")
    e(f"s_mul_i32 s10, s8, {HREG}\ns_add_u32 s10, s10, {L_HA}\nv_add_u32 v2, s10, v2")
    e(f"v_or_b32 v{t+3}, 8, v{t}\nv_cmp_gt_u32 vcc, 8, v{t}\nv_mov_b32 v{t+5}, s9\ns_nop 0")
    e(f"v_cndmask_b32 v{t+4}, 0, 1, vcc")
    e(f"v_cndmask_b32 v{t+3}, v{t}, v{t+3}, s[88:89]\nv_cndmask_b32 v{t+4}, v{t+5}, v{t+4}, s[88:89]")
    e(f"v_sub_u32 v{t+3}, 15, v{t+3}\nv_lshrrev_b32 v{t+5}, 7, v{t+2}\nv_add_u32 v{t+3}, v{t+3}, v{t+5}")
    e(f"v_mul_u32_u24 v{t+4}, {UREG}, v{t+4}")
    e(f"s_mul_i32 s10, s8, {2*UREG}\ns_add_u32 s10, s10, {L_UB}\nv_add_u32 v{t+4}, s10, v{t+4}")
    for k, reg in ((0, 3), (1, 4)):
        e(f"v_add_u32 v{t+5}, {k}, v{t+3}\nv_and_b32 v{t+6}, 15, v{t+5}\nv_lshlrev_b32 v{t+5}, 8, v{t+5}\nv_lshl_or_b32 v{t+5}, v{t+6}, 4, v{t+5}\nv_add_u32 v{reg}, v{t+4}, v{t+5}")
    e("s_mov_b64 vcc, s[88:89]")
    R = CR; S = CS_
    queue = []
    NB = 9
    def rdA(blk):
        it, q = divmod(blk, 8)
        outs = []
        if q == 0 and it > 0: outs.append(8)
        e(f"ds_read_b128 v[{R+4*q}:{R+4*q+3}], v2 offset:{16*blk}"); queue.append(("A", it, q))
    def rdA8(it):
        e(f"ds_read_b128 v[{R+32}:{R+35}], v2 offset:{16*(8*it+8)}"); queue.append(("A", it, 8))
    def rdB(st):
        b = CB[st % 4]; tmp = 10 + (st % 2)
        e(f"v_xor_b32 v{tmp}, {16*(st % 16)}, v{3 if st < 16 else 4}\nds_read_b128 v[{b}:{b+3}], v{tmp}"); queue.append(("B", st))
    def wait_for(tags):
        idx = max([i for i, x_ in enumerate(queue) if x_ in tags], default=-1)
        if idx >= 0:
            e(f"s_waitcnt lgkmcnt({len(queue) - 1 - idx})")
            del queue[:idx+1]
    w2 = []
    w2l = []
    w2late = [z[0] for k in range(3) for z in w2_dma(11+k, SETC[k])]
    def al(k): return f"v_alignbit_b32 v{S+k}, v{R+k}, v{R+k-1}, 16"
    def sA(blk):
        it, q = divmod(blk, 8)
        return (f"ds_read_b128 v[{R+4*q}:{R+4*q+3}], v2 offset:{16*blk}", ("A", it, q))
    def sA8(it): return (f"ds_read_b128 v[{R+32}:{R+35}], v2 offset:{16*(8*it+8)}", ("A", it, 8))
    def sB(st):
        b = CB[st % 4]; tmp = 10 + (st % 2)
        return (f"ds_read_b128 v[{b}:{b+3}], v{tmp}", ("B", st))
    def xB(st): return f"v_xor_b32 v{10 + (st % 2)}, {16*(st % 16)}, v{3 if st < 16 else 4}"
    def L_(item): e(item[0]); queue.append(item[1])
    rdA(0); rdA(1); rdB(0); rdA(2); rdB(1); rdA(3); rdB(2); rdA(4)
    wait_for([("A", 0, 0), ("A", 0, 1)])
    for k in range(2, 8): e(al(k))
    Lout = a.label("Lconvout")
    for st in range(32):
        it, q = divmod(st, 8)
        if q < 7: needA = [("A", it, q+2)] ; nxt = [al(4*(q+1) + 4 + i) for i in range(4)]
        else: needA = [("A", it+1, 0), ("A", it+1, 1)] ; nxt = [al(k) for k in range(2, 8)]
        if st == 31: needA = []; nxt = []
        wait_for(needA + [("B", st)])
        lds = []
        if q <= 2: lds.append(sA(8*it + q + 5))
        elif q == 3: lds.append(sA8(it))
        elif it < 3:
            if q == 4: lds += [sA(8*it + 8), sA(8*it + 9)]
            else: lds.append(sA(8*it + 8 + q - 3))
        Bq = vr(CB[st % 4], 4)
        def C(i): return vr(CACC + 4*i, 4)
        def Cin(i): return C(i) if st else "0"
        e(f"v_mfma_f32_16x16x32_bf16 {C(0)}, {vr(S+4*q+2,4)}, {Bq}, {Cin(0)}")
        if st + 3 < 32: e(xB(st + 3))
        for z in lds: L_(z)
        e(f"v_mfma_f32_16x16x32_bf16 {C(2)}, {vr(S+4*q+4,4)}, {Bq}, {Cin(2)}")
        for z in nxt[:2]: e(z)
        e(f"v_mfma_f32_16x16x32_bf16 {C(1)}, {vr(R+4*q+2,4)}, {Bq}, {Cin(1)}")
        for z in nxt[2:4]: e(z)
        e(f"v_mfma_f32_16x16x32_bf16 {C(3)}, {vr(R+4*q+4,4)}, {Bq}, {Cin(3)}")
        for z in nxt[4:]: e(z)
        if st + 3 < 32: L_(sB(st + 3))
        if st == 15:
            e(f"s_cbranch_vccnz {Lout}")
    e(f"{Lout}:")
    e("s_waitcnt lgkmcnt(0)")
    e(f"s_lshl_b32 s8, s71, 12\ns_add_u32 s8, s8, {L_YB2}")
    e("v_add_u32 v2, s8, v12")
    e("s_nop 5")
    for a2 in range(4): e(f"ds_write_b128 v2, {vr(CACC+4*a2,4)} offset:{a2*1024}")
    e(f"s_lshl_b32 s8, s71, 2\ns_add_u32 s8, s8, {L_LF}\nv_mov_b32 v2, s8\nv_mov_b32 v3, s{S_TOK}")
    e("ds_write_b32 v2, v3")
    e(f"s_cmp_ge_u32 s71, 4\ns_cbranch_scc1 {Lskip}")
    e("s_add_u32 s71, s71, 4")
    Lw = a.label("Luf"); Lok = a.label("Lufok")
    e(f"s_and_b32 s8, s3, 2\ns_lshl_b32 s8, s8, 2\ns_add_u32 s8, s8, {L_LF + 64}\nv_and_b32 v3, 1, v1\nv_lshl_add_u32 v3, v3, 2, s8\ns_lshl_b32 s8, s71, 2\ns_add_u32 s8, s8, {L_LF + 64}\nv_writelane_b32 v3, s8, 2\ns_mov_b32 s9, 0")
    e(f"{Lw}:")
    e("ds_read_b32 v4, v3\ns_waitcnt lgkmcnt(0)")
    e(f"v_cmp_ne_u32 vcc, s{S_TOK}, v4\ns_cbranch_vccz {Lok}")
    e(f"s_add_u32 s9, s9, 1\ns_cmp_lt_u32 s9, {O.spin*50}\ns_cbranch_scc1 {Lw}")
    e(f"{Lok}:")
    e(f"s_branch {Lagain}")
    e(f"{Lskip}:")

def conv_final(a):
    e = a.e
    a.c("--- conv finalize")
    Lw = a.label("Llf"); Lok = a.label("Llfok")
    e(f"v_and_b32 v2, 7, v1\nv_lshlrev_b32 v2, 2, v2\nv_add_u32 v2, {L_LF}, v2")
    e("s_mov_b32 s12, 0x33\ns_lshl_b32 s13, s5, 1\ns_lshl_b32 s12, s12, s13\ns_mov_b32 s9, 0")
    e(f"{Lw}:")
    e("ds_read_b32 v3, v2\ns_waitcnt lgkmcnt(0)")
    e(f"v_cmp_ne_u32 vcc, s{S_TOK}, v3\ns_and_b32 s8, vcc_lo, s12\ns_cbranch_scc0 {Lok}")
    e(f"s_add_u32 s9, s9, 1\ns_cmp_lt_u32 s9, {O.spin*50}\ns_cbranch_scc1 {Lw}")
    e(f"{Lok}:")
    a.stamp(11)
    e(f"s_lshl_b32 s8, s5, 13\ns_lshl_b32 s11, s4, 9\ns_add_u32 s8, s8, s11\ns_add_u32 s8, s8, {L_YB}")
    e("v_add_u32 v2, s8, v13\nv_subrev_u32 v3, 128, v2")
    JM = [0, 1, 4, 5]
    e("v_lshrrev_b32 v16, 2, v1\nv_and_b32 v17, 3, v1\nv_sub_u32 v18, 15, v16")
    e(f"s_mul_i32 s12, s5, {2*UREG}\ns_add_u32 s12, s12, {L_UB + UREG}")
    for rr in range(2):
        Y = 24 + 28*rr
        for b in range(2):
            for a2 in range(4):
                e(f"ds_read_b32 v{Y + JM[a2] + 2*b}, v2 offset:{b*4096 + a2*1024 + rr*256}")
        e(f"s_lshl_b32 s11, s4, 3\ns_sub_u32 s11, {15 - 4*rr}, s11")
        e(f"v_sub_u32 v19, s11, v17\nv_xor_b32 v19, v19, v18\nv_lshlrev_b32 v20, 8, v18\nv_lshl_add_u32 v19, v19, 4, v20\nv_add_u32 v19, s12, v19")
        e(f"ds_read_b128 v[{Y+24}:{Y+27}], v19")
    e("s_mov_b32 exec_lo, 0")
    for rr in range(2):
        Y = 24 + 28*rr
        for u in range(2):
            for b in range(2):
                for a2 in range(4):
                    e(f"ds_read_b32 v{Y + 8 + 8*u + JM[a2] + 2*b}, v{2 if b == 0 else 3} offset:{16384 + u*4096 + a2*1024 + rr*256}")
    e("s_waitcnt lgkmcnt(0)")
    for rr in range(2):
        Y = 24 + 28*rr
        for j in range(8): e(f"v_add_f32 v{Y+8+j}, v{Y+8+j}, v{Y+16+j}\nv_add_f32 v{Y+j}, v{Y+j}, v{Y+8+j}")
    e("s_mov_b32 exec_lo, -1")
    e(f"s_lshl_b32 s8, s3, 2\ns_add_u32 s8, s8, {L_LF + 48}\nv_mov_b32 v2, s8\nv_mov_b32 v3, s{S_TOK}\nds_write_b32 v2, v3")
    e("v_lshlrev_b32 v0, 16, v0")
    e(f"s_lshl_b32 s10, s2, 1\ns_add_u32 s10, s10, s5\ns_lshl_b32 s10, s10, 12\ns_lshl_b32 s11, s4, 7\ns_add_u32 s10, s10, s11\ns_add_u32 s10, s10, {WS_Y}")
    e("v_lshlrev_b32 v16, 8, v16\nv_lshl_add_u32 v16, v17, 4, v16")
    for rr in range(2):
        Y = 24 + 28*rr
        for q in range(4):
            e(f"v_lshlrev_b32 v{Y+8}, 16, v{Y+24+q}\nv_and_b32 v{Y+9}, s14, v{Y+24+q}")
            e(f"v_fmac_f32 v{Y+7-2*q}, v0, v{Y+8}\nv_fmac_f32 v{Y+6-2*q}, v0, v{Y+9}")
        for q in range(4): e(f"v_cvt_pk_bf16_f32 v{Y+12+q}, v{Y+2*q}, v{Y+2*q+1}")
        e(f"buffer_store_dwordx4 v[{Y+12}:{Y+15}], v16, {srd(S_WS)}, s10 offen offset:{rr*64} sc1")
    e("s_nop 1")

def gemm2(a):
    e = a.e; x = a.x
    a.c("=== GEMM2 (8-way K split, register streams) ===")
    AC = 16; HB = 80; ND = 8
    def hbuf(s): return s if s < 8 else (s - 6 if s < 12 else s - 12)
    Llo = a.label("Llo"); Lgo = a.label("Lgo")
    e(f"s_cmp_lt_u32 s3, 4\ns_cbranch_scc1 {Llo}")
    e(f"s_sleep {O.fhd}")
    e(poll_ins(15, 14, 94))
    e("s_waitcnt vmcnt(0)")
    for k in range(3):
        for o_ in w2_tr(11+k, SETC[k]): e(o_)
    poll_check(a, 15, 14, 94, 0x7f7f)
    e(f"s_lshl_b32 s8, s3, 2\ns_add_u32 s8, s8, {L_LF + 144 - 16}\nv_mov_b32 v2, s8\nv_mov_b32 v3, s{S_TOK}\nds_write_b32 v2, v3")
    e(f"s_branch {Lgo}")
    e(f"{Llo}:")
    e("s_waitcnt vmcnt(0)")
    for k in range(3):
        for o_ in w2_tr(11+k, SETC[k]): e(o_)
    conv_final(a)
    a.stamp(12)
    Lw4 = a.label("Llf4")
    e(f"s_lshl_b32 s8, s3, 2\ns_add_u32 s8, s8, {L_LF + 144}\nv_mov_b32 v2, s8\ns_mov_b32 s9, 0")
    e(f"{Lw4}:")
    e("ds_read_b32 v3, v2\ns_waitcnt lgkmcnt(0)")
    e(f"v_cmp_ne_u32 vcc, s{S_TOK}, v3\ns_cbranch_vccz {Lgo}")
    e(f"s_add_u32 s9, s9, 1\ns_cmp_lt_u32 s9, {O.spin*500}\ns_cbranch_scc1 {Lw4}")
    e(f"{Lgo}:")
    a.stamp(13)
    a.vm_reset()
    e(f"s_mul_i32 s8, s93, {O.rs}\ns_add_u32 s8, s8, s3\ns_and_b32 s8, s8, 7\ns_mul_i32 s9, s8, 14336\ns_mul_i32 s88, s92, {2*HSTR}\ns_add_u32 s88, s88, s9")
    e(f"s_add_u32 s88, s88, {WS_H}\ns_add_u32 s89, s88, {HSTR}")
    def hload(s):
        o = []
        for t in range(2):
            r = HB + ((s % ND)*2 + t)*4
            if s*1024 <= 4095: o.append((f"buffer_load_dwordx4 v[{r}:{r+3}], v12, {srd(S_WS)}, s{88+t} offen offset:{s*1024}{O.scl}", ("H", s)))
            else: o.append((f"s_add_u32 s8, s{88+t}, {s*1024}\nbuffer_load_dwordx4 v[{r}:{r+3}], v12, {srd(S_WS)}, s8 offen{O.scl}", ("H", s)))
        return o
    e("s_waitcnt lgkmcnt(0)")
    for s in range(ND):
        for z in hload(s): x(z)
    x((f"s_add_u32 m0, s91, {WRING}\ns_add_u32 s8, s88, 8192\n" + "\n".join(f"buffer_load_dwordx4 v12, {srd(S_WS)}, s8 offen offset:{i*1024}{O.scl} lds" for i in range(4)), "HL", 4))
    for hh in range(2):
        x((f"s_add_u32 m0, s90, {16384*(1+hh)}\ns_add_u32 s8, s89, {8192 + hh*2048}\n" + "\n".join(f"buffer_load_dwordx4 v12, {srd(S_WS)}, s8 offen offset:{i*1024}{O.scl} lds" for i in range(2)), "HL", 2))
    nbase = 0
    e(f"v_add_u32 v6, s90, v12\nv_add_u32 v4, s91, v12")
    e(f"s_lshl_b32 s94, s93, 7\ns_and_b32 s8, s92, 7\ns_lshl_b32 s8, s8, 10\ns_add_u32 s94, s94, s8\ns_add_u32 s94, s94, {WS_FY}\nv_and_b32 v14, 124, v13")
    a.lq = []
    def conv(s): return []
    Lpr = a.label("Lpr")
    if O.g2p: e(f"s_cmp_lt_u32 s3, 4\ns_cbranch_scc1 {Lpr}\ns_setprio 2\n{Lpr}:")
    for z in conv(0) + conv(1): x(z)
    e("v_lshrrev_b32 v0, 3, v1\nv_and_b32 v2, 7, v1\ns_lshl_b32 s8, s3, 3\nv_add_u32 v0, s8, v0")
    e("v_mul_u32_u24 v3, 896, v0\nv_lshl_add_u32 v3, v2, 4, v3")
    e("s_mul_i32 s43, s92, 57344\ns_lshl_b32 s9, s93, 7\ns_add_u32 s43, s43, s9")
    for s in range(14):
        if not (8 <= s < 12): a.wait_vm([("H", s)])
        else: a.wait_l(("HR", s))
        a.wait_l(("CV", s))
        if s == O.fys:
            L = a.label("Lfy")
            e(f"s_cmp_ge_u32 s3, 4\ns_cbranch_scc1 {L}")
            e(f"s_waitcnt vmcnt({len(a.vm) - nbase})")
            e(f"v_mov_b32 v15, {L_LF + 128}\nv_mov_b32 v7, 1\ns_mov_b64 exec, 1\nds_add_rtn_u32 v7, v15, v7\ns_mov_b64 exec, -1\ns_waitcnt lgkmcnt(0)")
            e(f"v_readfirstlane_b32 s8, v7\ns_cmp_lg_u32 s8, 3\ns_cbranch_scc1 {L}")
            e(f"s_lshl_b32 s8, s2, 2\ns_add_u32 s8, s8, {WS_FY}\nv_mov_b32 v15, s{S_TOK}\nv_and_b32 v7, 7, v1\nv_lshlrev_b32 v7, 10, v7")
            e(f"buffer_store_dword v15, v7, {srd(S_WS)}, s8 offen sc1")
            e(f"{L}:")
        cv = conv(s + 2) if s + 2 < 14 else []
        k = 0
        for mt in range(2):
            for t in range(2):
                C = vr(AC + (mt*2 + t)*16, 16)
                e(f"v_mfma_f32_32x32x16_bf16 {C}, {vr(W2R + 8*s + 4*mt, 4)}, {vr(HB + (hbuf(s)*2 + t)*4, 4)}, {C if s else 0}")
                for z in cv[2*k:2*k+2]: x(z)
                k += 1
        if s < 2:
            for t in range(2):
                r = HB + (s*2 + t)*4
                x((f"s_add_u32 s8, s{88+t}, {(12+s)*1024}\nbuffer_load_dwordx4 v[{r}:{r+3}], v12, {srd(S_WS)}, s8 offen{O.scl}", ("H", 12+s)))
        if s == 2:
            x((f"buffer_load_dwordx4 v[8:11], v3, {srd(S_X)}, s43 offen", "E"))
            x((f"s_lshl_b32 s70, s92, 10\ns_add_u32 s70, s70, {WS_ST}\nv_lshlrev_b32 v5, 4, v0\nbuffer_load_dwordx4 v[156:159], v5, {srd(S_WS)}, s70 offen sc1", "E"))
        if 5 <= s < 9:
            if s == 5: a.wait_vm(["HL"])
            for t in range(2):
                r = HB + ((s-3)*2 + t)*4
                x([f"ds_read_b128 v[{r}:{r+3}], v4 offset:{WRING + (s-5)*1024}" if t == 0 else f"ds_read_b128 v[{r}:{r+3}], v6 offset:{16384*(1+(s-5)//2) + ((s-5)%2)*1024}", ("HR", s+3)])
    a.stamp(14)
    Llow = a.label("Llow"); Lj = a.label("Lj")
    e(f"s_cmp_lt_u32 s3, 4\ns_cbranch_scc1 {Llow}")
    Lw3 = a.label("Llf3"); Lok3 = a.label("Llf3ok")
    e(f"v_and_b32 v80, 3, v1\nv_lshlrev_b32 v80, 2, v80\nv_add_u32 v80, {L_LF + 48}, v80\ns_mov_b32 s9, 0")
    e(f"{Lw3}:")
    e("ds_read_b32 v81, v80\ns_waitcnt lgkmcnt(0)")
    e(f"v_cmp_ne_u32 vcc, s{S_TOK}, v81\ns_cbranch_vccz {Lok3}")
    e(f"s_add_u32 s9, s9, 1\ns_cmp_lt_u32 s9, {O.spin*50}\ns_cbranch_scc1 {Lw3}")
    e(f"{Lok3}:")
    e(f"s_lshl_b32 s8, s3, 14\ns_add_u32 s8, s8, {81920 - 65536}\nv_add_u32 v80, s8, v12\ns_nop 7")
    for i in range(16): e(f"ds_write_b128 v80, {vr(AC + 4*i, 4)} offset:{i*1024}")
    e(f"s_lshl_b32 s8, s3, 2\ns_add_u32 s8, s8, {L_LF + 16}\nv_mov_b32 v80, s8\nv_mov_b32 v81, s{S_TOK}\nds_write_b32 v80, v81")
    e(f"s_cmp_lg_u32 s3, 4\ns_cbranch_scc1 {Lj}")
    Lchk = a.label("Lfyc"); Lok = a.label("Lfyok")
    e("s_mov_b32 s9, 0")
    e(f"{Lchk}:")
    e(f"s_sleep 12\nbuffer_load_dword v144, v14, {srd(S_WS)}, s94 offen sc1\ns_waitcnt vmcnt(0)")
    e(f"v_cmp_ne_u32 vcc, s{S_TOK}, v144\ns_cbranch_vccz {Lok}")
    e(f"s_add_u32 s9, s9, 1\ns_cmp_gt_u32 s9, {O.spin}\ns_cbranch_scc1 {Lok}")
    e(f"s_branch {Lchk}")
    e(f"{Lok}:")
    e("v_lshrrev_b32 v15, 3, v1\nv_lshlrev_b32 v15, 12, v15\nv_lshl_add_u32 v15, v2, 4, v15")
    e(f"s_lshl_b32 s9, s93, 18\ns_lshl_b32 s10, s92, 7\ns_add_u32 s9, s9, s10\ns_add_u32 s9, s9, {WS_Y}")
    for i in range(8):
        e(f"s_mov_b32 m0, {L_YT + i*1040}\ns_add_u32 s10, s9, {i*32768}\nbuffer_load_dwordx4 v15, {srd(S_WS)}, s10 offen sc1 lds")
    e(f"s_branch {Lj}")
    e(f"{Llow}:")
    Lw = a.label("Llf2"); Lok = a.label("Llf2ok")
    e(f"s_lshl_b32 s8, s3, 2\ns_add_u32 s8, s8, {L_LF + 32}\nv_mov_b32 v4, s8\ns_mov_b32 s9, 0")
    e(f"{Lw}:")
    e("ds_read_b32 v5, v4\ns_waitcnt lgkmcnt(0)")
    e(f"v_cmp_ne_u32 vcc, s{S_TOK}, v5\ns_cbranch_vccz {Lok}")
    e(f"s_add_u32 s9, s9, 1\ns_cmp_lt_u32 s9, {O.spin*50}\ns_cbranch_scc1 {Lw}")
    e(f"{Lok}:")
    e("s_lshl_b32 s8, s3, 14\ns_add_u32 s8, s8, 81920\nv_add_u32 v4, s8, v12")
    for i in range(16): e(f"ds_read_b128 v[{80+4*i}:{83+4*i}], v4 offset:{i*1024}")
    for i in range(16):
        e(f"s_waitcnt lgkmcnt({15-i})")
        for r in range(4): e(f"v_add_f32 v{AC+4*i+r}, v{AC+4*i+r}, v{80+4*i+r}")
    e(f"{Lj}:")
    e("s_waitcnt lgkmcnt(0)")
    a.stamp(16)
    e("s_barrier")
    Lnw = a.label("Lnw")
    e(f"s_cmp_ge_u32 s3, 4\ns_cbranch_scc1 {Lnw}")
    e("v_and_b32 v80, 31, v1\nv_lshrrev_b32 v81, 5, v1\nv_mul_u32_u24 v80, 272, v80\nv_lshl_add_u32 v80, v81, 4, v80")
    e("s_mul_i32 s8, s3, 17408\nv_add_u32 v80, s8, v80")
    for mt in range(2):
        for t in range(2):
            for q in range(4):
                e(f"ds_write_b128 v80, {vr(AC + (mt*2+t)*16 + 4*q, 4)} offset:{t*32*272 + mt*128 + q*32}")
    e(f"{Lnw}:")
    e("s_waitcnt vmcnt(0) lgkmcnt(0)")
    e("s_barrier")
    a.stamp(17)
    e(f"v_mul_u32_u24 v82, 1040, v2\nv_lshl_add_u32 v82, v0, 1, v82\nv_add_u32 v82, {L_YT}, v82")
    for i in range(8): e(f"ds_read_u16 v{148+i}, v82 offset:{i*128}")
    e("v_mul_u32_u24 v80, 272, v0\nv_lshl_add_u32 v80, v2, 5, v80")
    for w in range(4):
        for hh in range(2):
            r = 48 + w*8 + hh*4
            e(f"ds_read_b128 v[{r}:{r+3}], v80 offset:{w*17408 + hh*16}")
    e(f"s_mov_b32 s11, {fbits(-LOG2E)}")
    for q in range(4): e(f"v_lshlrev_b32 v{104+2*q}, 16, v{8+q}\nv_and_b32 v{105+2*q}, s14, v{8+q}")
    e("s_waitcnt lgkmcnt(0)")
    for i in range(8): e(f"v_add_f32 v{48+i}, v{48+i}, v{56+i}\nv_add_f32 v{64+i}, v{64+i}, v{72+i}")
    for i in range(8): e(f"v_add_f32 v{32+i}, v{48+i}, v{64+i}")
    e("v_mov_b32 v6, v156\nv_mov_b32 v7, v157")
    e("v_mul_f32 v14, v7, v7\nv_mul_f32 v15, v6, v7")
    for i in range(8): e(f"v_mul_f32 v{32+i}, v14, v{32+i}")
    for i in range(8): e(f"v_mul_f32 v{40+i}, s11, v{32+i}")
    for i in range(8): e(f"v_exp_f32 v{40+i}, v{40+i}\nv_lshlrev_b32 v{96+i}, 16, v{148+i}\nv_fma_f32 v{112+i}, v{104+i}, v7, -v15")
    for i in range(8): e(f"v_add_f32 v{40+i}, 1.0, v{40+i}\nv_mul_f32 v{112+i}, v{112+i}, v{96+i}")
    for i in range(8): e(f"v_rcp_f32 v{40+i}, v{40+i}\nv_mul_f32 v{112+i}, v{112+i}, v{32+i}")
    e("s_nop 0")
    for i in range(8): e(f"v_fma_f32 v{104+i}, v{112+i}, v{40+i}, v{104+i}")
    for q in range(4): e(f"v_cvt_pk_bf16_f32 v{120+q}, v{104+2*q}, v{105+2*q}")
    e(f"buffer_store_dwordx4 v[120:123], v3, {srd(S_OUT)}, s43 offen")
    a.stamp(15)

def aux_path(a):
    e = a.e; x = a.x
    a.c("=== AUX ===")
    a.vm_reset()
    e("s_sub_u32 s4, s2, 224\ns_lshl_b32 s5, s4, 3\ns_add_u32 s5, s5, s3")
    Lnt = a.label("Lnt")
    e(f"s_cmp_lg_u32 s5, 0\ns_cbranch_scc1 {Lnt}")
    e("s_memrealtime s[8:9]\ns_waitcnt lgkmcnt(0)\ns_or_b32 s8, s8, 1\nv_mov_b32 v2, s8")
    e(f"buffer_store_dword v2, off, {srd(S_DBG)}, 0 sc1")
    e(f"{Lnt}:")
    e("v_lshrrev_b32 v2, 3, v1\nv_and_b32 v3, 7, v1\nv_lshrrev_b32 v4, 4, v1\nv_and_b32 v5, 15, v1")
    e("s_and_b32 s8, s4, 7\ns_lshr_b32 s9, s4, 3\ns_lshr_b32 s10, s8, 1\ns_lshl_b32 s10, s10, 2\ns_add_u32 s10, s10, s9")
    e("s_and_b32 s8, s8, 1\ns_mul_i32 s8, s8, 14\ns_add_u32 s12, s8, s10")
    e("s_cmp_ge_u32 s10, 14\ns_cselect_b32 s13, 0x80000000, 0")
    e("v_mul_u32_u24 v7, 3584, v2\nv_lshl_add_u32 v7, v3, 4, v7\nv_or_b32 v7, s13, v7")
    e("s_and_b32 s8, s4, 7\ns_lshl_b32 s8, s8, 8\ns_lshr_b32 s9, s4, 3\ns_lshl_b32 s9, s9, 6\ns_add_u32 s8, s8, s9\ns_lshl_b32 s9, s3, 3\ns_add_u32 s6, s8, s9")
    e("v_mul_u32_u24 v8, 896, v2\nv_lshl_add_u32 v8, v3, 4, v8\ns_mul_i32 s7, s6, 896")
    e("s_and_b32 s8, s3, 3\ns_mul_i32 s8, s8, 28672\ns_lshl_b32 s9, s12, 7\ns_add_u32 s8, s8, s9")
    for i in range(14):
        x((f"s_add_u32 s9, s8, {i*114688}\nbuffer_load_dwordx4 v[{48+4*i}:{51+4*i}], v7, {srd(S_WSEL)}, s9 offen", ("CS", i)))
        if i == O.apace:
            a.wait_vm([("CS", O.apace)])
            x((f"buffer_load_dword v15, off, {srd(S_DBG)}, 0 sc1", "TOK"))
    for j in range(7):
        x((f"buffer_load_dwordx4 v[{104+4*j}:{107+4*j}], v8, {srd(S_X)}, s7 offen offset:{j*128}", "XS"))
    C = 16
    for i in range(14):
        a.wait_vm([("CS", i)])
        for q in range(4):
            r = 48 + 4*i + q
            if i == 0: e(f"v_lshlrev_b32 v{C+2*q}, 16, v{r}\nv_and_b32 v{C+2*q+1}, s14, v{r}")
            else: e(f"v_lshlrev_b32 v{24+2*q}, 16, v{r}\nv_and_b32 v{25+2*q}, s14, v{r}")
        if i:
            for q in range(8): e(f"v_add_f32 v{C+q}, v{C+q}, v{24+q}")
    a.stamp(3)
    e("s_nop 1")
    for q in range(4): e(f"v_permlane32_swap_b32 v{C+q}, v{C+4+q}")
    e("s_nop 1")
    for q in range(4): e(f"v_add_f32 v{C+q}, v{C+q}, v{C+4+q}")
    e("s_nop 1")
    for q in range(2): e(f"v_permlane16_swap_b32 v{C+q}, v{C+2+q}")
    e("s_nop 1")
    for q in range(2): e(f"v_add_f32 v{C+q}, v{C+q}, v{C+2+q}")
    e("s_nop 1")
    for q in range(2): e(f"v_add_f32_dpp v{C+q}, v{C+q}, v{C+q} row_ror:8 row_mask:0xf bank_mask:0xf")
    e("v_lshrrev_b32 v24, 5, v1\nv_bfe_u32 v25, v1, 4, 1\nv_lshlrev_b32 v26, 5, v3\nv_lshl_add_u32 v26, v24, 4, v26\nv_lshl_add_u32 v26, v25, 3, v26")
    e("s_lshl_b32 s8, s3, 8\nv_add_u32 v26, s8, v26")
    e(f"ds_write_b64 v26, v[{C}:{C+1}]")
    e("s_waitcnt lgkmcnt(0)\ns_barrier")
    e("s_lshr_b32 s8, s3, 2\ns_lshl_b32 s9, s8, 10\nv_add_u32 v26, s9, v13")
    for q in range(4): e(f"ds_read_b32 v{28+q}, v26 offset:{q*256}")
    e("s_and_b32 s9, s3, 3\ns_cmp_lg_u32 s9, 0\ns_cselect_b32 s9, 0x80000000, s13\nv_lshlrev_b32 v27, 3, v1\nv_or_b32 v27, s9, v27")
    e("s_mov_b32 s10, s8")
    token_get(a, 15)
    e("s_waitcnt lgkmcnt(0)")
    e(f"v_add_f32 v28, v28, v29\nv_add_f32 v30, v30, v31\nv_add_f32 v28, v28, v30\nv_mov_b32 v29, s{S_TOK}")
    e(f"s_mul_i32 s8, s10, 14336\ns_lshl_b32 s9, s12, 9\ns_add_u32 s8, s8, s9\ns_add_u32 s8, s8, {WS_CS}")
    x((f"buffer_store_dwordx2 v[28:29], v27, {srd(S_WS)}, s8 offen sc1", "CST"))
    a.wait_vm(["XS"])
    e("v_mov_b32 v36, 0x3f803f80\nv_mov_b32 v32, 0\nv_mov_b32 v33, 0\nv_mov_b32 v34, 0\nv_mov_b32 v35, 0")
    for r in range(104, 132):
        e(f"v_dot2_f32_bf16 v{32 + 2*(r&1)}, v{r}, v36, v{32 + 2*(r&1)}\nv_dot2_f32_bf16 v{33 + 2*(r&1)}, v{r}, v{r}, v{33 + 2*(r&1)}")
    e("s_nop 2\nv_add_f32 v32, v32, v34\nv_add_f32 v33, v33, v35\ns_nop 1")
    for pat in ("quad_perm:[1,0,3,2]", "quad_perm:[2,3,0,1]", "row_half_mirror"):
        e(f"v_add_f32_dpp v32, v32, v32 {pat} row_mask:0xf bank_mask:0xf\nv_add_f32_dpp v33, v33, v33 {pat} row_mask:0xf bank_mask:0xf\ns_nop 1")
    e(f"v_mul_f32 v32, {fbits(1.0/448)}, v32\nv_mul_f32 v33, {fbits(1.0/448)}, v33\nv_fma_f32 v33, -v32, v32, v33\nv_max_f32 v33, 0, v33")
    e(f"v_add_f32 v33, {fbits(1e-5)}, v33\nv_rsq_f32 v33, v33\nv_mov_b32 v34, s{S_TOK}\nv_mov_b32 v35, s{S_TOK}")
    e(f"s_lshl_b32 s8, s6, 4\ns_add_u32 s8, s8, {WS_ST}\nv_lshlrev_b32 v26, 4, v2")
    e(f"buffer_store_dwordx4 v[32:35], v26, {srd(S_WS)}, s8 offen sc1")
    a.stamp(4)

def build():
    a = Gen()
    prologue(a)
    a.e("s_cmp_ge_u32 s2, 224\ns_cbranch_scc1 Laux")
    main_path(a)
    a.stamp_flush()
    a.e("s_endpgm")
    a.e("Laux:")
    aux_path(a)
    a.stamp_flush()
    a.e("Lend:")
    a.e("s_endpgm")
    a.e("Lcode_end:")
    k = NAME + "_kernel"
    out = [f"; @launch grid=(256,1,1) block=(512,1,1) lds={LDS_TOTAL}",
           '.amdgcn_target "amdgcn-amd-amdhsa--gfx950"\n.text', kernel_header(k), a.text(),
           '.section .rodata,"a"', kernel_desc(k, 256, 256)]
    return "\n".join(out) + "\n"

if __name__ == "__main__":
    for arg in sys.argv[1:]:
        if arg == "stamps": O.stamps = True
        elif arg == "cyc": O.cyc = True
        elif arg == "nopk": O.pk = False
        elif arg == "noep": O.ep = False
        elif arg == "hf": O.hfirst = True
        elif arg == "nog2p": O.g2p = False
        elif arg == "noct": O.ctouch = False
        elif arg == "notlb": O.tlb = False
        elif arg == "kd1": O.kd = 1; O.kv0 = False
        elif arg.startswith("rr="): O.rr = int(arg[3:])
        elif arg.startswith("rf="): O.rf = int(arg[3:])
        elif arg.startswith("rs="): O.rs = int(arg[3:])
        elif arg == "nogt": O.gt = False
        elif arg == "kv0": O.kv0 = True; O.kd = 0
        elif arg.startswith("w6="): O.w6 = int(arg[3:])
        elif arg == "sc1": O.scl = " sc1"
        elif arg == "notouch": O.touch = False
        elif arg.startswith("kt="): O.ktail = int(arg[3:])
    print(build())
```

```python
import sys, struct
from asmlib import *

NAME = "recurrent_scan__ssm_conv_h3__glu_gated_swiglu__prompt"
WS_KV = 0
WS_W2F = 2 << 20
WS_Y = 4 << 20
WS_ST = 6 << 20
WS_CS = (6 << 20) + 65536
WS_FLAG = (6 << 20) + 131072
WS_F1 = WS_FLAG
WS_FK = WS_FLAG + 65536
WS_FW = WS_FLAG + 2048
WS_FH = WS_FLAG + 32768
WS_FY = WS_FLAG + 16384
WS_H = 8 << 20
HSTR = 114688 + 128
WS_STAMP = 22 << 20
WS_SIZE = 24 << 20

S_X, S_WSEL, S_WS, S_K, S_V, S_SHK, S_SSMD, S_W2, S_OUT, S_DBG = 44, 48, 52, 56, 60, 64, 72, 76, 80, 84
S_T0 = 96
S_TOK = 42
def srd(b): return f"s[{b}:{b+3}]"
LOG2E = 1.4426950408889634
def fbits(f): return "0x%08x" % struct.unpack("<I", struct.pack("<f", f))[0]

class Opt: pass
O = Opt()
O.w6 = 0; O.wtp = 2; O.gtp = 0; O.fhd = 8; O.g2p = False; O.pk = True; O.ep = True; O.hfirst = False; O.tlb = True; O.ctouch = True; O.cvs = [0, 3, 6, 8, 10]; O.w4 = 4; O.chk = 8; O.rr = 0; O.rf = 0; O.rs = 0; O.gt = False; O.apace = 1; O.ebar = 1; O.kd = 0; O.kv0 = True; O.fys = 0; O.stamps = False; O.cyc = False; O.spin = 20000; O.scl = ""; O.touch = True; O.ktail = 6

STAMP_REGS = [16,17,18,19,20,21,22,23,26,27,28,29,30,31,32,33,34,35,36,37,38,39]
class Gen(Asm):
    def __init__(self):
        super().__init__()
        self.vm = []
        self.lq = []
    def x(self, item):
        if isinstance(item, tuple):
            self.e(item[0]); self.vm.extend([item[1]] * (item[2] if len(item) > 2 else 1))
        elif isinstance(item, list): self.l(item[0], item[1])
        else:
            self.e(item)
            for ln in item.split("\n"):
                if ln.startswith("ds_"): self.lq.append(None)
    def wait_vm(self, tags, extra=""):
        idx = -1
        for t in tags:
            ii = [i for i, v in enumerate(self.vm) if v == t]
            assert ii, t
            idx = max(idx, ii[-1])
        self.e(f"s_waitcnt vmcnt({min(63, len(self.vm) - 1 - idx)}){extra}")
    def vm_reset(self): self.vm = []
    def l(self, text, tag=None):
        self.e(text); self.lq.append(tag)
    def wait_l(self, tag):
        ii = [i for i, v in enumerate(self.lq) if v == tag]
        if not ii: return
        n = len(self.lq) - 1 - ii[-1]
        self.e(f"s_waitcnt lgkmcnt({min(15, n)})")
        if n <= 15: del self.lq[:ii[-1]+1]
    def stamp(self, idx):
        if not O.stamps: return
        self.e(("s_memtime" if O.cyc else "s_memrealtime") + " s[100:101]\ns_waitcnt lgkmcnt(0)")
        self.e(f"s_mov_b32 s{STAMP_REGS[idx]}, s100")
    def stamp_flush(self):
        if not O.stamps: return
        self.e("v_mov_b32 v2, 0")
        for i, r in enumerate(STAMP_REGS): self.e(f"v_writelane_b32 v2, s{r}, {i}")
        self.e(f"s_lshl_b32 s8, s2, 3\ns_add_u32 s8, s8, s3\ns_lshl_b32 s8, s8, 8\ns_add_u32 s8, s8, {WS_STAMP}")
        self.e("v_lshlrev_b32 v3, 2, v1")
        self.e(f"buffer_store_dword v2, v3, {srd(S_WS)}, s8 offen")
    def interleave(self, main, other, per=None):
        other = list(other)
        if per is None: per = max(1, -(-len(other) // max(1, len(main))))
        for m in main:
            self.x(m)
            for _ in range(per):
                if other: self.x(other.pop(0))
        for o in other: self.x(o)

XRING = 0; WRING = 49152
L_SP = 147456
L_KT = L_SP
L_HA = L_SP
HREG = 5120
L_CS = L_SP + 10240; L_ST = L_CS + 2048; L_C2 = L_ST + 1024; L_LF = L_C2 + 1024
L_UB = WRING + 65536
UREG = 6144
L_YB = WRING + 32768
L_YB2 = L_YB
L_YT = L_SP
LDS_TOTAL = L_SP + 10240 + 4096 + 256

def merge(x, y):
    o = []
    for i in range(max(len(x), len(y))):
        if i < len(x): o.append(x[i])
        if i < len(y): o.append(y[i])
    return o

def prologue(a):
    e = a.e
    e("s_cmp_ge_u32 s2, 256\ns_cbranch_scc1 Lend")
    e("s_load_dwordx16 s[16:31], s[0:1], 0")
    e("s_load_dwordx8 s[32:39], s[0:1], 64")
    e("s_load_dwordx2 s[40:41], s[0:1], 96")
    if O.ctouch:
        e("Lpc0:\ns_getpc_b64 s[8:9]")
        e("v_lshlrev_b32 v3, 7, v0\nv_min_u32 v3, Lcode_end-Lpc0-8, v3")
        e("global_load_dword v227, v3, s[8:9]")
    e("v_and_b32 v1, 63, v0\nv_lshrrev_b32 v2, 6, v0\ns_nop 0\nv_readfirstlane_b32 s3, v2")
    e("v_lshlrev_b32 v12, 4, v1\nv_lshlrev_b32 v13, 2, v1\ns_mov_b32 s14, 0xffff0000")
    e("s_waitcnt lgkmcnt(0)")
    e("s_memrealtime s[0:1]")
    def mk(b, p, size):
        e(f"s_mov_b32 s{b}, s{p}\ns_mov_b32 s{b+1}, s{p+1}\ns_mov_b32 s{b+2}, {size}\ns_mov_b32 s{b+3}, 0x20000")
    mk(S_X, 16, 1835008)
    e("s_cmp_ge_u32 s3, 4")
    e(f"s_cselect_b32 s{S_WSEL}, s32, s30\ns_cselect_b32 s{S_WSEL+1}, s33, s31")
    e(f"s_mov_b32 s{S_WSEL+2}, 1605632\ns_mov_b32 s{S_WSEL+3}, 0x20000")
    mk(S_WS, 40, WS_SIZE)
    mk(S_K, 18, 1835008); mk(S_V, 20, 1835008); mk(S_SHK, 22, 3584)
    mk(S_SSMD, 26, 896); mk(S_W2, 34, 1605632); mk(S_OUT, 36, 1835008); mk(S_DBG, 38, 256)
    e("s_waitcnt lgkmcnt(0)")
    if O.stamps:
        for r in STAMP_REGS: e(f"s_mov_b32 s{r}, 0")
    a.stamp(0)

def poll_ins(vflag, voff, soff, wide=False):
    if wide: return f"buffer_load_dwordx4 v[{vflag}:{vflag+3}], v{voff}, {srd(S_WS)}, s{soff} offen sc1"
    return f"buffer_load_dword v{vflag}, v{voff}, {srd(S_WS)}, s{soff} offen sc1"

def poll_check(a, vflag, voff, soff, nlanes, wide=False):
    e = a.e
    Lchk = a.label("Lchk"); Lok = a.label("Lok")
    e("s_mov_b32 s9, 0")
    e(f"{Lchk}:")
    if wide:
        for i in range(4): e(f"v_xor_b32 v{vflag+i}, s{S_TOK}, v{vflag+i}")
        e(f"v_or3_b32 v{vflag}, v{vflag}, v{vflag+1}, v{vflag+2}\nv_or_b32 v{vflag}, v{vflag}, v{vflag+3}")
        e(f"v_cmp_ne_u32 vcc, 0, v{vflag}")
    else:
        e(f"v_cmp_ne_u32 vcc, s{S_TOK}, v{vflag}")
    mask = (1 << nlanes) - 1 if nlanes <= 64 else nlanes
    if nlanes <= 32 or nlanes > 64: e(f"s_and_b32 s8, vcc_lo, {hex(mask)}")
    else: e(f"s_and_b32 s8, vcc_hi, {hex(mask >> 32)}\ns_or_b32 s8, s8, vcc_lo")
    e(f"s_cmp_eq_u32 s8, 0\ns_cbranch_scc1 {Lok}")
    e(f"s_add_u32 s9, s9, 1\ns_cmp_gt_u32 s9, {O.spin}\ns_cbranch_scc1 {Lok}")
    e("s_sleep 8")
    e(poll_ins(vflag, voff, soff, wide))
    e("s_waitcnt vmcnt(0)")
    e(f"s_branch {Lchk}")
    e(f"{Lok}:")

def token_get(a, vtok):
    e = a.e
    Lt = a.label("Ltok")
    e("s_mov_b32 s9, 0")
    e(f"{Lt}:")
    e(f"v_readfirstlane_b32 s{S_TOK}, v{vtok}")
    e(f"s_sub_u32 s8, s0, s{S_TOK}\ns_cmp_lt_i32 s8, 1000\ns_cselect_b32 s8, s{S_TOK}, 0\ns_cmp_gt_u32 s9, 64\ns_cselect_b32 s8, s{S_TOK}, s8")
    e(f"s_cmp_lg_u32 s8, 0\ns_cbranch_scc1 {Lt}_ok")
    e(f"s_add_u32 s9, s9, 1\ns_cmp_gt_u32 s9, {O.spin}\ns_cbranch_scc1 {Lt}_ok")
    e(f"s_sleep 8\nbuffer_load_dword v{vtok}, off, {srd(S_DBG)}, 0 sc1\ns_waitcnt vmcnt(0)\ns_branch {Lt}")
    e(f"{Lt}_ok:")

def flag_store_w0(a, idx_expr_sreg, base, vtmp):
    L = a.label("Lnf")
    a.e(f"s_cmp_lg_u32 s3, 0\ns_cbranch_scc1 {L}")
    a.e(f"s_lshl_b32 s8, s{idx_expr_sreg}, 2\ns_add_u32 s8, s8, {base}\nv_mov_b32 v{vtmp}, s{S_TOK}")
    a.e(f"buffer_store_dword v{vtmp}, off, {srd(S_WS)}, s8 sc1")
    a.e(f"{L}:")

def stats_row_issue(vdst, vtmp):
    return ("s_lshl_b32 s8, s2, 3\ns_add_u32 s8, s8, s3\ns_mul_i32 s8, s8, 896\n"
            f"v_cmp_gt_u32 vcc, 56, v1\nv_mov_b32 v{vtmp}, 0x80000000\ns_nop 0\nv_cndmask_b32 v{vtmp}, v{vtmp}, v12, vcc\n"
            f"buffer_load_dwordx4 v[{vdst}:{vdst+3}], v{vtmp}, {srd(S_X)}, s8 offen", "STL")

def stats_row_compute(vsrc, t):
    o = []
    o.append(f"v_mov_b32 v{t+2}, 0x3f803f80\nv_mov_b32 v{t}, 0\nv_mov_b32 v{t+1}, 0")
    for q in range(4):
        o.append(f"v_dot2_f32_bf16 v{t}, v{vsrc+q}, v{t+2}, v{t}\nv_dot2_f32_bf16 v{t+1}, v{vsrc+q}, v{vsrc+q}, v{t+1}")
    o.append("s_nop 2")
    for pat in ("quad_perm:[1,0,3,2]", "quad_perm:[2,3,0,1]", "row_half_mirror", "row_mirror"):
        o.append(f"v_add_f32_dpp v{t}, v{t}, v{t} {pat} row_mask:0xf bank_mask:0xf\nv_add_f32_dpp v{t+1}, v{t+1}, v{t+1} {pat} row_mask:0xf bank_mask:0xf\ns_nop 0")
    for sw in ("v_permlane16_swap_b32", "v_permlane32_swap_b32"):
        o.append(f"v_mov_b32 v{t+2}, v{t}\nv_mov_b32 v{t+3}, v{t+1}\ns_nop 1\n{sw} v{t}, v{t+2}\n{sw} v{t+1}, v{t+3}\ns_nop 1\nv_add_f32 v{t}, v{t}, v{t+2}\nv_add_f32 v{t+1}, v{t+1}, v{t+3}")
    o.append(f"v_mul_f32 v{t}, {fbits(1.0/448)}, v{t}\nv_mul_f32 v{t+1}, {fbits(1.0/448)}, v{t+1}")
    o.append(f"v_fma_f32 v{t+1}, -v{t}, v{t}, v{t+1}\nv_max_f32 v{t+1}, 0, v{t+1}\nv_add_f32 v{t+1}, {fbits(1e-5)}, v{t+1}\nv_rsq_f32 v{t+1}, v{t+1}")
    o.append((f"s_lshl_b32 s8, s2, 3\ns_add_u32 s8, s8, s3\ns_lshl_b32 s8, s8, 3\ns_add_u32 s8, s8, {WS_ST}\nbuffer_store_dwordx2 v[{t}:{t+1}], off, {srd(S_WS)}, s8 sc1", "STS"))
    return o

ACC = 16; FRG = [80, 96, 112, 128]; W2R = 144
def g1acc(j, t): return ACC + (2*j + t) * 16

def main_path(a):
    e = a.e; x = a.x
    a.c("=== MAIN: GEMM1 setup ===")
    e("s_and_b32 s4, s3, 1\ns_lshr_b32 s5, s3, 1")
    e("s_and_b32 s8, s2, 7\ns_lshr_b32 s9, s2, 3")
    e("s_and_b32 s10, s9, 3\ns_lshr_b32 s11, s9, 2")
    e("s_lshr_b32 s6, s8, 1\ns_lshl_b32 s6, s6, 2\ns_add_u32 s6, s6, s10")
    e("s_and_b32 s7, s8, 1\ns_mul_i32 s7, s7, 7\ns_add_u32 s7, s7, s11")
    e("v_lshrrev_b32 v20, 3, v1\nv_and_b32 v21, 7, v1\nv_lshrrev_b32 v22, 4, v1")
    e("s_lshl_b32 s8, s3, 4")
    e("v_add_u32 v23, s8, v20\nv_mul_u32_u24 v23, 896, v23")
    e("v_xor_b32 v24, v21, v22\nv_lshl_add_u32 v2, v24, 4, v23")
    e("v_xor_b32 v24, 4, v24\nv_lshl_add_u32 v3, v24, 4, v23\nv_add_u32 v3, 7168, v3")
    e("s_and_b32 s8, s3, 3\ns_lshl_b32 s8, s8, 4")
    e("v_add_u32 v23, s8, v22\nv_mul_u32_u24 v23, 3584, v23")
    e("s_lshr_b32 s9, s3, 2\ns_lshl_b32 s9, s9, 2\nv_or_b32 v24, s9, v22")
    e("v_bfe_u32 v25, v1, 1, 3\nv_xor_b32 v24, v24, v25\nv_and_b32 v26, 1, v1")
    e("v_lshl_or_b32 v27, v24, 1, v26\nv_lshl_add_u32 v4, v27, 4, v23")
    e("s_mul_i32 s88, s6, 114688\ns_lshl_b32 s89, s7, 8")
    e("s_lshl_b32 s90, s3, 11\ns_lshl_b32 s91, s3, 12")
    e(f"s_mul_i32 s70, s10, {O.rr}\ns_mul_i32 s9, s11, {O.rf}\ns_add_u32 s70, s70, s9\ns_mul_hi_u32 s9, s70, 0x24924925\ns_mul_i32 s9, s9, 7\ns_sub_u32 s70, s70, s9")
    def dma_x(c):
        pre = "s_lshl_b32 s71, s70, 7\ns_add_u32 s71, s71, s88\ns_mul_i32 s69, s70, 229376\ns_add_u32 s69, s69, s89\ns_add_u32 s70, s70, 1\ns_cmp_eq_u32 s70, 7\ns_cselect_b32 s70, 0, s70\n"
        return [((pre if ee == 0 else "") + f"s_add_u32 m0, s90, {XRING + (c % 3)*16384 + ee*1024}\ns_nop 0\nbuffer_load_dwordx4 v{2+ee}, {srd(S_X)}, s71 offen lds", ("C", c)) for ee in range(2)]
    def dma_w(c):
        return [(f"s_add_u32 m0, s91, {WRING + (c % 3)*32768 + ee*1024}\ns_add_u32 s8, s69, {4*ee*3584}\nbuffer_load_dwordx4 v4, {srd(S_WSEL)}, s8 offen lds", ("C", c)) for ee in range(4)]
    for c in range(2):
        for s in dma_x(c) + dma_w(c): x(s)
    e("s_mul_hi_u32 s12, s2, 0x24924925\ns_mul_i32 s13, s12, 7\ns_sub_u32 s13, s2, s13")
    e("v_and_b32 v23, 31, v1\nv_lshrrev_b32 v24, 5, v1")
    e("v_mul_u32_u24 v25, 3584, v24\nv_lshl_add_u32 v25, v23, 2, v25")
    e("s_mul_i32 s8, s12, 57344\ns_lshl_b32 s9, s13, 7\ns_add_u32 s8, s8, s9\ns_mul_i32 s9, s3, 7168\ns_add_u32 s8, s8, s9")
    e("v_add_u32 v194, s8, v25")
    e("v_lshlrev_b32 v195, 4, v23")
    for s in dma_x(2) + dma_w(2): x(s)
    def kv_loads():
        o = [(f"s_lshl_b32 s8, s13, 9\nbuffer_load_dwordx4 v[160:163], v195, {srd(S_SHK)}, s8 offen", "KVL")]
        for i in range(-3, 0):
            o.append((f"v_subrev_u32 v204, {-i*896}, v194\nbuffer_load_dword v{147+i}, v204, {srd(S_K)}, 0 offen", "KVL"))
        for i in range(4):
            o.append((f"buffer_load_dword v{147+i}, v194, {srd(S_K)}, 0 offen offset:{i*896}", "KVL"))
            o.append((f"buffer_load_dword v{152+i}, v194, {srd(S_V)}, 0 offen offset:{i*896}", "KVL"))
        return o
    def g1_touch():
        if not O.gt: return []
        o = []
        o.append(("\n".join([
            "s_lshr_b32 s8, s2, 3\ns_lshl_b32 s8, s8, 2\ns_and_b32 s9, s3, 3\ns_add_u32 s8, s8, s9\ns_lshl_b32 s8, s8, 5",
            "v_add_u32 v228, s8, v1\nv_mul_u32_u24 v229, 4682, v228\nv_lshrrev_b32 v229, 16, v229",
            "v_mul_u32_u24 v230, 14, v229\nv_sub_u32 v228, v228, v230",
            "v_mul_u32_u24 v229, 3584, v229\nv_lshl_add_u32 v228, v228, 7, v229",
            "v_cmp_gt_u32 vcc, 32, v1\nv_mov_b32 v230, 0x80000000\ns_and_b32 s9, s2, 1\nv_cndmask_b32 v228, v230, v228, vcc",
            f"s_mul_i32 s9, s9, 1792\ns_add_u32 s9, s9, {192*3584}",
            f"buffer_load_dword v231, v228, {srd(S_WSEL)}, s9 offen"]), "T"))
        o.append(("\n".join([
            "s_lshr_b32 s8, s2, 3\ns_lshl_b32 s8, s8, 3\ns_add_u32 s8, s8, s3\ns_mul_i32 s8, s8, 10",
            "v_add_u32 v228, s8, v1\nv_lshrrev_b32 v229, 2, v228\nv_and_b32 v228, 3, v228",
            "v_cmp_gt_u32 vcc, 512, v229\nv_cmp_gt_u32 s[10:11], 10, v1\nv_mul_u32_u24 v229, 896, v229\nv_lshl_add_u32 v228, v228, 7, v229",
            "s_and_b64 vcc, vcc, s[10:11]\ns_bfe_u32 s9, s2, 0x20001\ns_mul_i32 s9, s9, 458752\nv_cndmask_b32 v228, v230, v228, vcc",
            "s_add_u32 s9, s9, 384",
            f"buffer_load_dword v231, v228, {srd(S_X)}, s9 offen"]), "T"))
        return o
    def w2_touch():
        Lt_ = a.label("Ltw2")
        return "\n".join([f"s_cmp_lg_u32 s3, 7\ns_cbranch_scc1 {Lt_}",
            "s_mul_i32 s8, s2, 7168\nv_lshlrev_b32 v232, 7, v1\nv_cmp_gt_u32 vcc, 56, v1\nv_mov_b32 v233, 0x80000000\ns_nop 0\nv_cndmask_b32 v232, v233, v232, vcc",
            f"buffer_load_dword v233, v232, {srd(S_W2)}, s8 offen", f"{Lt_}:"])
    def w2f_loads():
        L = a.label("Lw2a")
        o = [f"s_cmp_lt_u32 s3, 6\ns_cbranch_scc1 {L}\ns_cmp_ge_u32 s2, 196\ns_cbranch_scc1 {L}",
             "s_lshl_b32 s8, s2, 1\ns_add_u32 s8, s8, s4\ns_mul_hi_u32 s98, s8, 0x24924925\ns_mul_i32 s99, s98, 7\ns_sub_u32 s99, s8, s99",
             "v_bfe_u32 v224, v1, 4, 1\nv_lshrrev_b32 v225, 5, v1\nv_lshl_add_u32 v224, v225, 2, v224\nv_mul_u32_u24 v224, 3584, v224\nv_and_b32 v225, 15, v1\nv_lshl_add_u32 v224, v225, 3, v224",
             "s_mul_i32 s8, s98, 28672\ns_lshl_b32 s9, s99, 7\ns_add_u32 s8, s8, s9\ns_add_u32 s9, s8, 7168"]
        for h in range(2):
            for i in range(4):
                r = 208 + (h*4 + i)*2
                o.append(f"buffer_load_dwordx2 v[{r}:{r+1}], v224, {srd(S_W2)}, s{8+h} offen offset:{i*896}")
        o.append(f"{L}:")
        return "\n".join(o)
    def w2f_store():
        L = a.label("Lw2b")
        e(f"s_cmp_lt_u32 s3, 6\ns_cbranch_scc1 {L}\ns_cmp_ge_u32 s2, 196\ns_cbranch_scc1 {L}")
        e("s_mov_b32 s10, 0x05040100\ns_mov_b32 s11, 0x07060302")
        e(f"s_mul_i32 s8, s99, 224\ns_lshl_b32 s9, s98, 1\ns_add_u32 s8, s8, s9\ns_lshl_b32 s8, s8, 10\ns_add_u32 s8, s8, {WS_W2F}\ns_add_u32 s9, s8, {112*1024}")
        e("v_lshrrev_b32 v224, 4, v1\nv_lshlrev_b32 v224, 9, v224\nv_and_b32 v225, 15, v1\nv_lshl_add_u32 v224, v225, 4, v224")
        for ee in range(4):
            d = 164 + ee*4
            for j in range(4):
                r0 = 208 + (2*j)*2 + (ee >> 1); r1 = r0 + 2
                e(f"v_perm_b32 v{d+j}, v{r1}, v{r0}, s{10 + (ee & 1)}")
            e(f"buffer_store_dwordx4 v[{d}:{d+3}], v224, {srd(S_WS)}, s{8 + (ee >> 1)} offen offset:{(ee & 1)*256} sc1")
        e(f"{L}:")
    if O.kv0:
        for s in kv_loads(): x(s)
    if O.tlb:
        Lt2 = a.label("Ltlb")
        e(f"s_cmp_lg_u32 s3, 7\ns_cbranch_scc1 {Lt2}")
        e(f"buffer_load_dword v220, off, {srd(S_SSMD)}, 0\nbuffer_load_dword v221, off, {srd(S_W2)}, 0\nbuffer_load_dword v222, off, {srd(S_OUT)}, 0")
        e("v_mov_b32 v226, 0\nglobal_load_dword v223, v226, s[24:25]")
        e(f"v_lshlrev_b32 v225, 21, v1\nv_add_u32 v225, {(2<<20) - 128}, v225\nv_subrev_u32 v226, 4, v1\nv_mul_u32_u24 v226, {8*HSTR}, v226\nv_add_u32 v226, {WS_H + 114688}, v226")
        e("v_cmp_gt_u32 vcc, 4, v1\ns_nop 1\nv_cndmask_b32 v225, v226, v225, vcc\nv_cmp_gt_u32 vcc, 12, v1\nv_mov_b32 v226, 0x80000000\ns_nop 0\nv_cndmask_b32 v225, v226, v225, vcc")
        e(f"buffer_load_dword v224, v225, {srd(S_WS)}, 0 offen")
        e(f"{Lt2}:")
    e(f"s_lshl_b32 s8, s3, 4\ns_sub_u32 s8, {L_KT + 120}, s8\nv_mul_u32_u24 v196, 272, v23\nv_lshlrev_b32 v24, 3, v24\nv_sub_u32 v196, v196, v24\nv_add_u32 v196, s8, v196")
    e(f"s_mul_i32 s8, s3, 1088\ns_add_u32 s8, s8, {L_KT}\nv_mul_u32_u24 v202, 136, v20\nv_lshl_add_u32 v202, v21, 4, v202\nv_add_u32 v202, s8, v202")
    e("v_lshlrev_b32 v203, 12, v20\nv_lshl_add_u32 v203, v21, 4, v203")
    e("s_lshl_b32 s15, s13, 18\ns_lshl_b32 s9, s3, 15\ns_add_u32 s15, s15, s9\ns_sub_u32 s9, 31, s12\ns_lshl_b32 s9, s9, 7\ns_add_u32 s15, s15, s9")
    e("s_lshl_b32 s43, s13, 5\ns_add_u32 s43, s43, s12")
    def kv_compute():
        o = []
        def up(d, s_, hi): return f"v_and_b32 v{d}, s14, v{s_}" if hi else f"v_lshlrev_b32 v{d}, 16, v{s_}"
        for c in range(2):
            for j in range(4): o.append(up(168 + j, 160 + 2*c + (j >> 1), j & 1))
            for i in range(7): o.append(up(172 + i, 144 + i, c))
            for i in range(4): o.append(f"v_mul_f32 v{180+i}, v168, v{175+i}")
            for lag in range(1, 4):
                for i in range(4): o.append(f"v_fmac_f32 v{180+i}, v{168+lag}, v{175+i-lag}")
            for i in range(4): o.append(up(172 + i, 152 + i, c))
            for i in range(4): o.append(f"v_mul_f32 v{180+i}, v{180+i}, v{172+i}")
            d = 186 + 2*c
            o.append(f"v_cvt_pk_bf16_f32 v{d}, v183, v182"); o.append(f"v_cvt_pk_bf16_f32 v{d+1}, v181, v180")
            o.append(f"ds_write_b64 v196, v[{d}:{d+1}] offset:{c*136}")
        return o
    e("v_and_b32 v23, 31, v1\nv_lshrrev_b32 v24, 5, v1\nv_bfe_u32 v25, v1, 1, 3")
    e("s_lshl_b32 s8, s4, 13\nv_lshlrev_b32 v26, 7, v23\nv_add_u32 v26, s8, v26")
    for st in range(4):
        e(f"v_or_b32 v27, {2*st}, v24\nv_xor_b32 v27, v27, v25\nv_lshl_add_u32 v{5+st}, v27, 4, v26")
    e("v_bfe_u32 v23, v1, 4, 1\nv_bfe_u32 v25, v1, 2, 2\nv_lshl_or_b32 v26, v23, 2, v25")
    e("v_lshl_add_u32 v27, v24, 3, v25\nv_lshlrev_b32 v27, 8, v27\nv_lshl_add_u32 v27, v23, 14, v27\nv_and_b32 v28, 3, v1\nv_lshl_add_u32 v27, v28, 3, v27")
    e(f"v_add_u32 v27, {WRING}, v27")
    for j in range(2):
        e(f"s_lshl_b32 s8, s5, 1\ns_add_u32 s8, s8, {j}\nv_xor_b32 v28, s8, v26\nv_lshl_add_u32 v{254+j}, v28, 5, v27")
    def reads(s):
        p = s // 4; st = s % 4; f = FRG[s % 4]; out = []
        for j in range(2):
            for t in range(2):
                out.append(f"ds_read_b64_tr_b16 v[{f+4*j+2*t}:{f+4*j+2*t+1}], v{10+j} offset:{(16*st + 4*t)*256}")
            out.append(f"ds_read_b128 v[{f+8+4*j}:{f+11+4*j}], v{5+st} offset:{XRING + (p % 3)*16384 + j*4096}")
        return out
    def mfmas(s):
        f = FRG[s % 4]; out = []
        for j in range(2):
            for t in range(2):
                C = vr(g1acc(j, t), 16)
                out.append(f"v_mfma_f32_32x32x16_bf16 {C}, {vr(f+4*j, 4)}, {vr(f+8+4*t, 4)}, {C if s > 0 else 0}")
        return out
    def ha_dma():
        o = ["\n".join([
            "s_lshl_b32 s9, s2, 1\ns_add_u32 s9, s9, s4\ns_lshl_b32 s9, s9, 12",
            f"s_add_u32 s{S_T0}, s24, s9\ns_addc_u32 s{S_T0+1}, s25, 0\ns_mov_b32 s{S_T0+2}, 4096\ns_mov_b32 s{S_T0+3}, 0x20000",
            "s_lshl_b32 s10, s5, 10",
            f"s_mul_i32 s11, s4, {HREG}\ns_add_u32 s11, s11, {L_HA}",
            "v_subrev_u32 v14, 256, v12"])]
        o.append((f"s_add_u32 m0, s11, s10\nv_add_u32 v15, s10, v14\nbuffer_load_dwordx4 v15, {srd(S_T0)}, 0 offen lds", "HA"))
        o.append((f"s_add_u32 m0, s11, 4096\nv_add_u32 v15, 4096, v14\nbuffer_load_dwordx4 v15, {srd(S_T0)}, 0 offen lds", "HA"))
        return o
    def stats_ops(p): return [], []
    e("s_and_b32 s8, s2, 7\ns_lshr_b32 s9, s2, 3\ns_mul_hi_u32 s10, s9, 0x24924925")
    e("s_mul_i32 s11, s10, 7\ns_sub_u32 s93, s9, s11\ns_lshl_b32 s92, s8, 2\ns_add_u32 s92, s92, s10")
    e(f"s_mul_i32 s8, s93, {O.rs}\ns_add_u32 s8, s8, s3\ns_and_b32 s8, s8, 7\ns_mul_i32 s95, s8, 200704\ns_lshl_b32 s9, s93, 7\ns_add_u32 s95, s95, s9")
    e("v_mul_u32_u24 v9, 896, v20\nv_lshl_add_u32 v9, v21, 4, v9\nv_bfe_u32 v23, v1, 4, 1\nv_lshlrev_b32 v23, 6, v23\nv_xor_b32 v9, v23, v9")
    e(f"v_and_b32 v238, 15, v1\nv_lshlrev_b32 v238, 4, v238\ns_lshl_b32 s8, s6, 11\ns_lshl_b32 s9, s3, 8\ns_add_u32 s8, s8, s9\ns_add_u32 s98, s8, {WS_ST}") if False else None
    e(f"v_lshrrev_b32 v23, 7, v0\nv_mul_u32_u24 v23, {UREG - 2048}, v23\nv_lshl_add_u32 v237, v0, 4, v23\nv_add_u32 v237, {L_UB + 4096}, v237")
    e(f"s_lshr_b32 s8, s3, 2\ns_mul_i32 s8, s8, 14336\ns_lshl_b32 s9, s7, 10\ns_add_u32 s8, s8, s9\ns_and_b32 s9, s3, 3\ns_lshl_b32 s9, s9, 8\ns_add_u32 s8, s8, s9\ns_add_u32 s68, s8, {WS_CS}")
    e("v_lshlrev_b32 v236, 3, v1\nv_and_b32 v236, 255, v236")
    def treads(s): return [[r, ("R", s)] for r in reads(s)]
    kvc = kv_compute()
    def u_dma():
        return ["\n".join([
            "s_lshl_b32 s9, s2, 1\ns_lshr_b32 s10, s3, 2\ns_add_u32 s9, s9, s10\ns_lshl_b32 s9, s9, 12",
            f"s_add_u32 s{S_T0}, s40, s9\ns_addc_u32 s{S_T0+1}, s41, 0\ns_mov_b32 s{S_T0+2}, 4096\ns_mov_b32 s{S_T0+3}, 0x20000",
            f"s_mul_i32 s10, s5, {UREG}\ns_lshl_b32 s11, s4, 11\ns_add_u32 s10, s10, s11\ns_add_u32 s10, s10, {L_UB}",
            "s_and_b32 s9, s5, 1\ns_lshl_b32 s9, s9, 2\ns_sub_u32 s9, 4, s9\ns_add_u32 s11, s11, s9",
            "v_lshrrev_b32 v14, 4, v1\ns_lshl_b32 s9, s4, 3\nv_or_b32 v14, s9, v14\nv_lshlrev_b32 v14, 4, v14\nv_xor_b32 v14, v14, v12\nv_add_u32 v14, s11, v14"]),
            (f"s_mov_b32 m0, s10\nv_xor_b32 v15, 64, v14\nbuffer_load_dwordx4 v14, {srd(S_T0)}, 0 offen sc1 lds", "U"),
            (f"s_add_u32 m0, s10, 1024\nv_add_u32 v15, 1024, v15\nbuffer_load_dwordx4 v15, {srd(S_T0)}, 0 offen sc1 lds", "U")]
    STL = f"s_lshl_b32 s8, s6, 11\ns_lshl_b32 s9, s3, 8\ns_add_u32 s8, s8, s9\ns_add_u32 s8, s8, {WS_ST}\nbuffer_load_dwordx4 v[240:243], v238, {srd(S_WS)}, s8 offen sc1"
    CSL = f"buffer_load_dwordx2 v[234:235], v236, {srd(S_WS)}, s68 offen sc1"
    e("v_and_b32 v238, 15, v1\nv_lshlrev_b32 v238, 4, v238")
    K = O.kd
    def tok_load():
        L = a.label("Ltk")
        return f"s_cmp_lg_u32 s3, 0\ns_cbranch_scc1 {L}\nbuffer_load_dword v197, off, {srd(S_DBG)}, 0 sc1\n{L}:"
    for p in range(7):
        need = [("C", p)]
        if p == 1 + K: need += ["KVL"]
        if p == 4 + K: need += ["KVS"]
        a.wait_vm(need, " lgkmcnt(0)")
        a.lq = []
        e("s_barrier")
        a.stamp(1 + p)
        e(f"v_add_u32 v10, {(p % 3)*32768}, v254\nv_add_u32 v11, {(p % 3)*32768}, v255")
        exA = []; exB = []; exV = []
        if 1 <= p <= 4: exA = dma_x(p + 2) + dma_w(p + 2)
        s0 = 4*p
        post = {}
        if p == 0: exB = ([] if O.kv0 else kv_loads()) + [tok_load()]
        if p == 1 + K: exV = kvc
        if p == O.wtp and O.touch: exB = exB + [w2_touch()]
        if p == O.gtp and O.gt: exB = exB + g1_touch()
        if p == 2 + K: post[3] = "KVST"
        if p == 3: post[1] = "TOKEN"
        if p == 3 + K: exB = ha_dma()
        if p == 4: post[2] = "TOKRD"
        if p == 4 + K: post[3] = "FK"
        if p == 5:
            e(f"s_lshr_b32 s94, s2, 5\ns_lshl_b32 s94, s94, 7\ns_and_b32 s8, s2, 3\ns_lshl_b32 s8, s8, 10\ns_add_u32 s94, s94, s8\ns_add_u32 s94, s94, {WS_FK}")
            exA = [(CSL, "CSL"), (STL, "CSL")] + sum([w2_dma(k, SETA[k]) for k in range(3)], [])
        if p == 6:
            post[O.chk] = "CHK"
            Lk_ = a.label("Lpk")
            exA = [f"s_cmp_lg_u32 s3, 0\ns_cbranch_scc1 {Lk_}\nv_and_b32 v14, 124, v13\n" + poll_ins(15, 14, 94) + f"\n{Lk_}:", "v_mov_b32 v228, 0\nv_mov_b32 v229, 0\nv_mov_b32 v230, 0\nv_mov_b32 v231, 0\nds_write_b128 v237, v[228:231]", f"v_mov_b32 v232, {L_LF + 128}\nds_write_b32 v232, v228"] + w2_dma(3, PX2)
        if p == 0:
            for r in treads(0) + treads(1): x(r)
            slots = [[] for _ in range(8)]
            mm = mfmas(0) + mfmas(1)
            rd = treads(2) + treads(3)
            for i in range(4): slots[i] += rd[3*i:3*i+3]
            for i, f_ in enumerate(exB): slots[i*8//len(exB)].append(f_)
            a.wait_l(("R", 0))
            for i, m in enumerate(mm):
                if i == 4: a.wait_l(("R", 1))
                x(m)
                for f_ in slots[i]: x(f_)
        else:
            mm = mfmas(s0-2) + mfmas(s0-1) + mfmas(s0) + mfmas(s0+1)
            slots = [[] for _ in range(16)]
            if p == 4: slots[0] += [f"v_mov_b32 v198, {L_LF + 96}", ["ds_read_b32 v197, v198", "TK"]]
            if p == 2 + K: slots[0] += [["ds_read_b64 v[144:145], v202", "KB"], ["ds_read_b64 v[146:147], v202 offset:8", "KB"]]
            rd = treads(s0) + treads(s0+1)
            for i in range(6): slots[i] += rd[2*i:2*i+2]
            rd = treads(s0+2)
            for i in range(3): slots[6+i] += rd[2*i:2*i+2]
            rd = treads(s0+3)
            for i in range(3): slots[9+i] += rd[2*i:2*i+2]
            startA = 4 if p == 2 + K else 0
            for i, f_ in enumerate(exA): slots[startA + i*((16 if p == 5 else 12)-startA)//max(1, len(exA))].append(f_)
            for i, f_ in enumerate(exV): slots[i*16//len(exV)].append(f_)
            for i, f_ in enumerate(exB): slots[(4 if p == 5 else 12) + i*4//max(1, len(exB))].append(f_)
            for i, m in enumerate(mm):
                if i == 8: a.wait_l(("R", s0))
                if i == 12: a.wait_l(("R", s0+1))
                x(m)
                if post.get(i) == "KVST":
                    a.wait_l("KB")
                    x((f"buffer_store_dwordx4 v[144:147], v203, {srd(S_WS)}, s15 offen sc1", "KVS"))
                if post.get(i) == "TOKEN":
                    L = a.label("Ltk2")
                    e(f"s_cmp_lg_u32 s3, 0\ns_cbranch_scc1 {L}")
                    token_get(a, 197)
                    e(f"v_mov_b32 v198, {L_LF + 96}\nds_write_b32 v198, v197")
                    e(f"{L}:")
                if post.get(i) == "TOKRD":
                    a.wait_l("TK")
                    e(f"v_readfirstlane_b32 s{S_TOK}, v197")
                if post.get(i) == "FK":
                    L = a.label("Lnf")
                    e(f"s_cmp_lg_u32 s3, 0\ns_cbranch_scc1 {L}")
                    e(f"s_lshl_b32 s8, s43, 2\ns_add_u32 s8, s8, {WS_FK}\nv_mov_b32 v14, s{S_TOK}\nv_and_b32 v15, 3, v1\nv_lshlrev_b32 v15, 10, v15")
                    e(f"buffer_store_dword v14, v15, {srd(S_WS)}, s8 offen sc1")
                    e(f"{L}:")
                if post.get(i) == "CHK":
                    a.wait_vm(["CSL"])
                    Lchk = a.label("Lcs"); Lok = a.label("Lcsok")
                    e("s_mov_b32 s10, 0")
                    e(f"{Lchk}:")
                    e(f"v_cmp_ne_u32 vcc, s{S_TOK}, v235\nv_cmp_ne_u32 s[8:9], s{S_TOK}, v242\ns_or_b64 vcc, vcc, s[8:9]\ns_cbranch_vccz {Lok}")
                    e(f"s_add_u32 s10, s10, 1\ns_cmp_gt_u32 s10, {O.spin}\ns_cbranch_scc1 {Lok}")
                    e(f"s_sleep 8\n{CSL}\n{STL}\ns_waitcnt vmcnt(0)\ns_branch {Lchk}")
                    e(f"{Lok}:")
                    x(f"s_lshl_b32 s8, s3, 7\ns_add_u32 s9, s8, {L_C2}\nv_lshrrev_b32 v236, 1, v236\nv_add_u32 v236, s9, v236\nds_write_b32 v236, v234")
                    x(f"s_add_u32 s9, s8, {L_ST}\nv_lshrrev_b32 v238, 1, v238\nv_add_u32 v238, s9, v238\nds_write_b64 v238, v[240:241]")
                for f_ in slots[i]: x(f_)
    Lk2 = a.label("Lpk2")
    e(f"s_cmp_lg_u32 s3, 0\ns_cbranch_scc1 {Lk2}")
    e("s_waitcnt vmcnt(2)")
    poll_check(a, 15, 14, 94, 32)
    e(f"{Lk2}:")
    e("s_waitcnt lgkmcnt(0)")
    e("s_barrier")
    a.stamp(21)
    e("v_lshrrev_b32 v2, 5, v1\nv_bfe_u32 v3, v1, 2, 2\nv_lshl_add_u32 v5, v2, 2, v3\nv_lshlrev_b32 v5, 7, v5")
    e("v_bfe_u32 v3, v1, 4, 1\nv_lshl_add_u32 v5, v3, 5, v5\nv_and_b32 v3, 3, v1\nv_lshl_add_u32 v5, v3, 3, v5")
    e("v_bfe_u32 v3, v1, 3, 1\nv_lshl_add_u32 v5, v3, 6, v5")
    e(f"s_add_u32 s8, s91, {WRING}\nv_add_u32 v7, s8, v5\nv_add_u32 v5, s90, v5\nv_xor_b32 v6, 64, v5\nv_xor_b32 v8, 64, v7")
    mm = mfmas(26) + mfmas(27)
    a.wait_vm([("W2", 3)])
    a.interleave(mm[:4], sum([w2_tr(k, SETA[k]) for k in range(3)], []) + w2_tr(3, PX2), per=4)
    Lu2 = a.label("Lu2")
    e(f"s_cmp_ge_u32 s3, 4\ns_cbranch_scc1 {Lu2}")
    e("s_lshl_b32 s9, s2, 1\ns_add_u32 s9, s9, s5\ns_lshl_b32 s9, s9, 12")
    e(f"s_add_u32 s{S_T0}, s40, s9\ns_addc_u32 s{S_T0+1}, s41, 0\ns_mov_b32 s{S_T0+2}, 4096\ns_mov_b32 s{S_T0+3}, 0x20000")
    e(f"s_mul_i32 s10, s3, {UREG}\ns_add_u32 s10, s10, {L_UB}\ns_lshl_b32 s9, s4, 2\ns_sub_u32 s11, 4, s9")
    e("v_lshrrev_b32 v14, 4, v1\nv_lshlrev_b32 v14, 4, v14\nv_xor_b32 v14, v14, v12\nv_add_u32 v14, s11, v14")
    for i in range(4):
        e(f"s_add_u32 m0, s10, {i*1024}\nv_xor_b32 v15, {64*i}, v14\nv_add_u32 v15, {i*1024}, v15\nbuffer_load_dwordx4 v15, {srd(S_T0)}, 0 offen sc1 lds")
    e("s_lshl_b32 s10, s2, 1\ns_bfe_u32 s11, s3, 0x10001\ns_add_u32 s10, s10, s11\ns_lshl_b32 s10, s10, 1")
    e(f"buffer_load_ushort v0, off, {srd(S_SSMD)}, s10")
    e(f"{Lu2}:")
    a.interleave(mm[4:], sum([w2_dma(4+k, SETC[k]) for k in range(3)], []), per=2)
    e("s_waitcnt lgkmcnt(0)")
    a.w2epi = sum([w2_dma(7+k, SETA[k]) for k in range(3)], []) + w2_dma(10, PX2)
    a.stamp(8)
    g1_epilogue(a)
    a.stamp(9)
    conv_loop(a)
    a.stamp(10)
    gemm2(a)

def pc_base(pc):
    kind, slot, idx = pc
    return ("s90", XRING + slot*16384) if kind == "X" else ("s91", WRING + slot*32768 + idx*2048)
def w2_dma(ks, pc):
    sreg, off = pc_base(pc)
    return [(f"s_add_u32 m0, {sreg}, {off + h*1024}\ns_add_u32 s8, s95, {(2*ks + h)*7168}\nbuffer_load_dwordx4 v9, {srd(S_W2)}, s8 offen lds", ("W2", ks)) for h in range(2)]
def w2_tr(ks, pc):
    kind, slot, idx = pc
    r = W2R + 8*ks
    off = XRING + slot*16384 if kind == "X" else slot*32768 + idx*2048
    b = 5 if kind == "X" else 7
    return [f"ds_read_b64_tr_b16 v[{r+4*mt+2*t}:{r+4*mt+2*t+1}], v{b+mt} offset:{off + t*1024}" for mt in range(2) for t in range(2)]
SETA = [("X", 1, 0), ("W", 1, 0), ("W", 1, 1)]
SETC = [("X", 0, 0), ("W", 0, 0), ("W", 0, 1)]
PX2 = ("X", 2, 0)

def g1_epilogue(a):
    e = a.e; x = a.x
    a.c("--- GEMM1 epilogue")
    if O.ep: e("s_setprio 2")
    T = 80
    e("v_lshrrev_b32 v2, 5, v1\nv_and_b32 v3, 31, v1")
    e(f"s_lshl_b32 s8, s5, 7\ns_add_u32 s8, s8, {L_C2}\nv_lshl_add_u32 v4, v2, 4, s8")
    for j in range(2):
        for mat in range(2):
            for q in range(2):
                r = T + ((j*2 + mat)*2 + q)*4
                e(f"ds_read_b128 v[{r}:{r+3}], v4 offset:{mat*512 + j*64 + q*32}")
    e(f"s_lshl_b32 s8, s4, 9\ns_add_u32 s8, s8, {L_ST}\nv_lshl_add_u32 v3, v3, 3, s8")
    for t in range(2): e(f"ds_read_b64 v[{T+32+2*t}:{T+33+2*t}], v3 offset:{t*256}")
    e(f"s_mov_b32 s11, {fbits(-LOG2E)}")
    e(f"s_lshl_b32 s8, s6, 2\ns_lshl_b32 s9, s4, 1\ns_add_u32 s8, s8, s9\ns_mul_i32 s12, s8, {HSTR}\ns_lshl_b32 s9, s7, 13\ns_add_u32 s12, s12, s9\ns_lshl_b32 s9, s5, 11\ns_add_u32 s12, s12, s9")
    e(f"s_add_u32 s12, s12, {WS_H}\ns_add_u32 s13, s12, {HSTR}")
    e("s_waitcnt lgkmcnt(0)")
    for t in range(2): e(f"v_mul_f32 v{T+36+t}, s11, v{T+33+2*t}")
    kk = 0
    E = T + 40
    for j in range(2):
        for t in range(2):
            A = g1acc(j, t); mean = T + 32 + 2*t; c1 = T + 36 + t
            cg = T + (j*2)*8; cu = cg + 8
            ops = []
            if O.pk:
                c1p = T + 36; sel = "op_sel_hi:[0,1]" if t == 0 else "op_sel:[1,0] op_sel_hi:[1,1]"
                P2 = lambda r: f"v[{r}:{r+1}]"
                for r in range(0, 8, 2): ops.append(f"v_pk_fma_f32 {P2(A+r)}, {P2(mean)}, {P2(cg+r)}, {P2(A+r)} op_sel_hi:[0,1,1] neg_lo:[1,0,0] neg_hi:[1,0,0]")
                for r in range(0, 8, 2): ops.append(f"v_pk_mul_f32 {P2(E+r)}, {P2(c1p)}, {P2(A+r)} {sel}")
                for r in range(0, 8, 2): ops += [f"v_exp_f32 v{E+r}, v{E+r}", f"v_exp_f32 v{E+r+1}, v{E+r+1}", f"v_pk_fma_f32 {P2(A+8+r)}, {P2(mean)}, {P2(cu+r)}, {P2(A+8+r)} op_sel_hi:[0,1,1] neg_lo:[1,0,0] neg_hi:[1,0,0]"]
                for r in range(0, 8, 2): ops.append(f"v_pk_add_f32 {P2(E+r)}, {P2(E+r)}, 1.0 op_sel_hi:[1,0]")
                for r in range(0, 8, 2): ops += [f"v_rcp_f32 v{E+r}, v{E+r}", f"v_rcp_f32 v{E+r+1}, v{E+r+1}", f"v_pk_mul_f32 {P2(A+r)}, {P2(A+r)}, {P2(A+8+r)}"]
                for r in range(0, 8, 2): ops.append(f"v_pk_mul_f32 {P2(A+r)}, {P2(A+r)}, {P2(E+r)}")
            else:
                for r in range(8): ops.append(f"v_fma_f32 v{A+r}, -v{mean}, v{cg+r}, v{A+r}")
                for r in range(8): ops.append(f"v_mul_f32 v{E+r}, v{c1}, v{A+r}")
                for r in range(8): ops += [f"v_exp_f32 v{E+r}, v{E+r}", f"v_fma_f32 v{A+8+r}, -v{mean}, v{cu+r}, v{A+8+r}"]
                for r in range(8): ops.append(f"v_add_f32 v{E+r}, 1.0, v{E+r}")
                for r in range(8): ops += [f"v_rcp_f32 v{E+r}, v{E+r}", f"v_mul_f32 v{A+r}, v{A+r}, v{A+8+r}"]
                for r in range(8): ops.append(f"v_mul_f32 v{A+r}, v{A+r}, v{E+r}")
            for q in range(4): ops.append(f"v_cvt_pk_bf16_f32 v{A+8+q}, v{A+2*q}, v{A+2*q+1}")
            for i, o_ in enumerate(ops):
                e(o_)
                if i % 5 == 4 and a.w2epi: x(a.w2epi.pop(0))
            x((f"buffer_store_dwordx4 v[{A+8}:{A+11}], v12, {srd(S_WS)}, s{12+t} offen offset:{j*1024} sc1", "HS"))
    e("s_lshl_b32 s8, s6, 1\ns_add_u32 s8, s8, s4\ns_lshl_b32 s8, s8, 10\ns_lshl_b32 s9, s7, 2\ns_add_u32 s9, s9, s5\ns_mul_hi_u32 s10, s9, 0x24924925\ns_mul_i32 s11, s10, 100\ns_lshl_b32 s9, s9, 2\ns_add_u32 s8, s8, s9\ns_add_u32 s8, s8, s11")
    e(f"s_add_u32 s8, s8, {WS_FH}")
    e(f"v_mov_b32 v2, s{S_TOK}\ns_mov_b32 s12, s8")
    a.stamp(18)
    a.wait_vm([("W2", 10)])
    a.stamp(19)
    for k in range(3):
        for o_ in w2_tr(4+k, SETC[k]): e(o_)
    for k in range(3):
        for o_ in w2_tr(7+k, SETA[k]): e(o_)
    for o_ in w2_tr(10, PX2): e(o_)
    e("s_waitcnt vmcnt(0) lgkmcnt(0)")
    a.stamp(20)
    a.vm_reset()
    e(f"buffer_store_dword v2, off, {srd(S_WS)}, s12 sc1")
    for k in range(3):
        for z in w2_dma(11+k, SETC[k]): e(z[0])
    e(f"s_lshl_b32 s8, s3, 2\ns_add_u32 s8, s8, {L_LF + 64}\nv_mov_b32 v3, s8\nds_write_b32 v3, v2")

CR = 16; CS_ = 52; CACC = 104; CB = [88, 92, 96, 100]
def conv_loop(a):
    e = a.e
    a.c("--- conv loop")
    if O.ep: e("s_setprio 0")
    e(f"s_mul_i32 s8, s93, {O.rs}\ns_add_u32 s8, s8, s3\ns_and_b32 s8, s8, 7\ns_lshl_b32 s94, s92, 10\ns_lshl_b32 s8, s8, 7\ns_add_u32 s94, s94, s8\ns_add_u32 s94, s94, {WS_FH - 512}\nv_and_b32 v14, 28, v13\nv_bfe_u32 v15, v1, 3, 1\nv_xor_b32 v15, 1, v15\nv_lshl_or_b32 v14, v15, 9, v14")
    Lskip = a.label("Lnoconv"); Lagain = a.label("Lconv2")
    Lup0 = a.label("Lup0")
    e(f"s_cmp_lt_u32 s3, 4\ns_cbranch_scc1 {Lup0}")
    e(f"s_branch {Lskip}")
    e(f"{Lup0}:")
    e("s_mov_b32 s71, s3")
    e(f"{Lagain}:")
    e("s_bfe_u32 s8, s3, 0x10001\ns_and_b32 s9, s3, 1")
    e("s_lshl_b32 s11, s9, 9\ns_add_u32 s11, s11, 1024\ns_cmp_ge_u32 s71, 4\ns_cselect_b32 s11, s11, 0")
    e("s_cselect_b32 s12, 7, 8")
    e("s_cselect_b64 s[88:89], -1, 0")
    t = 120
    e(f"v_and_b32 v{t}, 15, v1\nv_lshrrev_b32 v{t+1}, 4, v1")
    e(f"v_lshlrev_b32 v{t+2}, s12, v{t+1}\nv_add_u32 v{t+2}, s11, v{t+2}")
    e(f"v_lshl_add_u32 v2, v{t}, 3, v{t+2}\nv_lshlrev_b32 v2, 1, v2")
    e(f"s_mul_i32 s10, s8, {HREG}\ns_add_u32 s10, s10, {L_HA}\nv_add_u32 v2, s10, v2")
    e(f"v_or_b32 v{t+3}, 8, v{t}\nv_cmp_gt_u32 vcc, 8, v{t}\nv_mov_b32 v{t+5}, s9\ns_nop 0")
    e(f"v_cndmask_b32 v{t+4}, 0, 1, vcc")
    e(f"v_cndmask_b32 v{t+3}, v{t}, v{t+3}, s[88:89]\nv_cndmask_b32 v{t+4}, v{t+5}, v{t+4}, s[88:89]")
    e(f"v_sub_u32 v{t+3}, 15, v{t+3}\nv_lshrrev_b32 v{t+5}, 7, v{t+2}\nv_add_u32 v{t+3}, v{t+3}, v{t+5}")
    e(f"v_mul_u32_u24 v{t+4}, {UREG}, v{t+4}")
    e(f"s_mul_i32 s10, s8, {2*UREG}\ns_add_u32 s10, s10, {L_UB}\nv_add_u32 v{t+4}, s10, v{t+4}")
    for k, reg in ((0, 3), (1, 4)):
        e(f"v_add_u32 v{t+5}, {k}, v{t+3}\nv_and_b32 v{t+6}, 15, v{t+5}\nv_lshlrev_b32 v{t+5}, 8, v{t+5}\nv_lshl_or_b32 v{t+5}, v{t+6}, 4, v{t+5}\nv_add_u32 v{reg}, v{t+4}, v{t+5}")
    e("s_mov_b64 vcc, s[88:89]")
    R = CR; S = CS_
    queue = []
    NB = 9
    def rdA(blk):
        it, q = divmod(blk, 8)
        outs = []
        if q == 0 and it > 0: outs.append(8)
        e(f"ds_read_b128 v[{R+4*q}:{R+4*q+3}], v2 offset:{16*blk}"); queue.append(("A", it, q))
    def rdA8(it):
        e(f"ds_read_b128 v[{R+32}:{R+35}], v2 offset:{16*(8*it+8)}"); queue.append(("A", it, 8))
    def rdB(st):
        b = CB[st % 4]; tmp = 10 + (st % 2)
        e(f"v_xor_b32 v{tmp}, {16*(st % 16)}, v{3 if st < 16 else 4}\nds_read_b128 v[{b}:{b+3}], v{tmp}"); queue.append(("B", st))
    def wait_for(tags):
        idx = max([i for i, x_ in enumerate(queue) if x_ in tags], default=-1)
        if idx >= 0:
            e(f"s_waitcnt lgkmcnt({len(queue) - 1 - idx})")
            del queue[:idx+1]
    w2 = []
    w2l = []
    w2late = [z[0] for k in range(3) for z in w2_dma(11+k, SETC[k])]
    def al(k): return f"v_alignbit_b32 v{S+k}, v{R+k}, v{R+k-1}, 16"
    def sA(blk):
        it, q = divmod(blk, 8)
        return (f"ds_read_b128 v[{R+4*q}:{R+4*q+3}], v2 offset:{16*blk}", ("A", it, q))
    def sA8(it): return (f"ds_read_b128 v[{R+32}:{R+35}], v2 offset:{16*(8*it+8)}", ("A", it, 8))
    def sB(st):
        b = CB[st % 4]; tmp = 10 + (st % 2)
        return (f"ds_read_b128 v[{b}:{b+3}], v{tmp}", ("B", st))
    def xB(st): return f"v_xor_b32 v{10 + (st % 2)}, {16*(st % 16)}, v{3 if st < 16 else 4}"
    def L_(item): e(item[0]); queue.append(item[1])
    rdA(0); rdA(1); rdB(0); rdA(2); rdB(1); rdA(3); rdB(2); rdA(4)
    wait_for([("A", 0, 0), ("A", 0, 1)])
    for k in range(2, 8): e(al(k))
    Lout = a.label("Lconvout")
    for st in range(32):
        it, q = divmod(st, 8)
        if q < 7: needA = [("A", it, q+2)] ; nxt = [al(4*(q+1) + 4 + i) for i in range(4)]
        else: needA = [("A", it+1, 0), ("A", it+1, 1)] ; nxt = [al(k) for k in range(2, 8)]
        if st == 31: needA = []; nxt = []
        wait_for(needA + [("B", st)])
        lds = []
        if q <= 2: lds.append(sA(8*it + q + 5))
        elif q == 3: lds.append(sA8(it))
        elif it < 3:
            if q == 4: lds += [sA(8*it + 8), sA(8*it + 9)]
            else: lds.append(sA(8*it + 8 + q - 3))
        Bq = vr(CB[st % 4], 4)
        def C(i): return vr(CACC + 4*i, 4)
        def Cin(i): return C(i) if st else "0"
        e(f"v_mfma_f32_16x16x32_bf16 {C(0)}, {vr(S+4*q+2,4)}, {Bq}, {Cin(0)}")
        if st + 3 < 32: e(xB(st + 3))
        for z in lds: L_(z)
        e(f"v_mfma_f32_16x16x32_bf16 {C(2)}, {vr(S+4*q+4,4)}, {Bq}, {Cin(2)}")
        for z in nxt[:2]: e(z)
        e(f"v_mfma_f32_16x16x32_bf16 {C(1)}, {vr(R+4*q+2,4)}, {Bq}, {Cin(1)}")
        for z in nxt[2:4]: e(z)
        e(f"v_mfma_f32_16x16x32_bf16 {C(3)}, {vr(R+4*q+4,4)}, {Bq}, {Cin(3)}")
        for z in nxt[4:]: e(z)
        if st + 3 < 32: L_(sB(st + 3))
        if st == 15:
            e(f"s_cbranch_vccnz {Lout}")
    e(f"{Lout}:")
    e("s_waitcnt lgkmcnt(0)")
    e(f"s_lshl_b32 s8, s71, 12\ns_add_u32 s8, s8, {L_YB2}")
    e("v_add_u32 v2, s8, v12")
    e("s_nop 5")
    for a2 in range(4): e(f"ds_write_b128 v2, {vr(CACC+4*a2,4)} offset:{a2*1024}")
    e(f"s_lshl_b32 s8, s71, 2\ns_add_u32 s8, s8, {L_LF}\nv_mov_b32 v2, s8\nv_mov_b32 v3, s{S_TOK}")
    e("ds_write_b32 v2, v3")
    e(f"s_cmp_ge_u32 s71, 4\ns_cbranch_scc1 {Lskip}")
    e("s_add_u32 s71, s71, 4")
    Lw = a.label("Luf"); Lok = a.label("Lufok")
    e(f"s_and_b32 s8, s3, 2\ns_lshl_b32 s8, s8, 2\ns_add_u32 s8, s8, {L_LF + 64}\nv_and_b32 v3, 1, v1\nv_lshl_add_u32 v3, v3, 2, s8\ns_lshl_b32 s8, s71, 2\ns_add_u32 s8, s8, {L_LF + 64}\nv_writelane_b32 v3, s8, 2\ns_mov_b32 s9, 0")
    e(f"{Lw}:")
    e("ds_read_b32 v4, v3\ns_waitcnt lgkmcnt(0)")
    e(f"v_cmp_ne_u32 vcc, s{S_TOK}, v4\ns_cbranch_vccz {Lok}")
    e(f"s_add_u32 s9, s9, 1\ns_cmp_lt_u32 s9, {O.spin*50}\ns_cbranch_scc1 {Lw}")
    e(f"{Lok}:")
    e(f"s_branch {Lagain}")
    e(f"{Lskip}:")

def conv_final(a):
    e = a.e
    a.c("--- conv finalize")
    Lw = a.label("Llf"); Lok = a.label("Llfok")
    e(f"v_and_b32 v2, 7, v1\nv_lshlrev_b32 v2, 2, v2\nv_add_u32 v2, {L_LF}, v2")
    e("s_mov_b32 s12, 0x33\ns_lshl_b32 s13, s5, 1\ns_lshl_b32 s12, s12, s13\ns_mov_b32 s9, 0")
    e(f"{Lw}:")
    e("ds_read_b32 v3, v2\ns_waitcnt lgkmcnt(0)")
    e(f"v_cmp_ne_u32 vcc, s{S_TOK}, v3\ns_and_b32 s8, vcc_lo, s12\ns_cbranch_scc0 {Lok}")
    e(f"s_add_u32 s9, s9, 1\ns_cmp_lt_u32 s9, {O.spin*50}\ns_cbranch_scc1 {Lw}")
    e(f"{Lok}:")
    a.stamp(11)
    e(f"s_lshl_b32 s8, s5, 13\ns_lshl_b32 s11, s4, 9\ns_add_u32 s8, s8, s11\ns_add_u32 s8, s8, {L_YB}")
    e("v_add_u32 v2, s8, v13\nv_subrev_u32 v3, 128, v2")
    JM = [0, 1, 4, 5]
    e("v_lshrrev_b32 v16, 2, v1\nv_and_b32 v17, 3, v1\nv_sub_u32 v18, 15, v16")
    e(f"s_mul_i32 s12, s5, {2*UREG}\ns_add_u32 s12, s12, {L_UB + UREG}")
    for rr in range(2):
        Y = 24 + 28*rr
        for b in range(2):
            for a2 in range(4):
                e(f"ds_read_b32 v{Y + JM[a2] + 2*b}, v2 offset:{b*4096 + a2*1024 + rr*256}")
        e(f"s_lshl_b32 s11, s4, 3\ns_sub_u32 s11, {15 - 4*rr}, s11")
        e(f"v_sub_u32 v19, s11, v17\nv_xor_b32 v19, v19, v18\nv_lshlrev_b32 v20, 8, v18\nv_lshl_add_u32 v19, v19, 4, v20\nv_add_u32 v19, s12, v19")
        e(f"ds_read_b128 v[{Y+24}:{Y+27}], v19")
    e("s_mov_b32 exec_lo, 0")
    for rr in range(2):
        Y = 24 + 28*rr
        for u in range(2):
            for b in range(2):
                for a2 in range(4):
                    e(f"ds_read_b32 v{Y + 8 + 8*u + JM[a2] + 2*b}, v{2 if b == 0 else 3} offset:{16384 + u*4096 + a2*1024 + rr*256}")
    e("s_waitcnt lgkmcnt(0)")
    for rr in range(2):
        Y = 24 + 28*rr
        for j in range(8): e(f"v_add_f32 v{Y+8+j}, v{Y+8+j}, v{Y+16+j}\nv_add_f32 v{Y+j}, v{Y+j}, v{Y+8+j}")
    e("s_mov_b32 exec_lo, -1")
    e(f"s_lshl_b32 s8, s3, 2\ns_add_u32 s8, s8, {L_LF + 48}\nv_mov_b32 v2, s8\nv_mov_b32 v3, s{S_TOK}\nds_write_b32 v2, v3")
    e("v_lshlrev_b32 v0, 16, v0")
    e(f"s_lshl_b32 s10, s2, 1\ns_add_u32 s10, s10, s5\ns_lshl_b32 s10, s10, 12\ns_lshl_b32 s11, s4, 7\ns_add_u32 s10, s10, s11\ns_add_u32 s10, s10, {WS_Y}")
    e("v_lshlrev_b32 v16, 8, v16\nv_lshl_add_u32 v16, v17, 4, v16")
    for rr in range(2):
        Y = 24 + 28*rr
        for q in range(4):
            e(f"v_lshlrev_b32 v{Y+8}, 16, v{Y+24+q}\nv_and_b32 v{Y+9}, s14, v{Y+24+q}")
            e(f"v_fmac_f32 v{Y+7-2*q}, v0, v{Y+8}\nv_fmac_f32 v{Y+6-2*q}, v0, v{Y+9}")
        for q in range(4): e(f"v_cvt_pk_bf16_f32 v{Y+12+q}, v{Y+2*q}, v{Y+2*q+1}")
        e(f"buffer_store_dwordx4 v[{Y+12}:{Y+15}], v16, {srd(S_WS)}, s10 offen offset:{rr*64} sc1")
    e("s_nop 1")

def gemm2(a):
    e = a.e; x = a.x
    a.c("=== GEMM2 (8-way K split, register streams) ===")
    AC = 16; HB = 80; ND = 8
    def hbuf(s): return s if s < 8 else (s - 6 if s < 12 else s - 12)
    Llo = a.label("Llo"); Lgo = a.label("Lgo")
    e(f"s_cmp_lt_u32 s3, 4\ns_cbranch_scc1 {Llo}")
    e(f"s_sleep {O.fhd}")
    e(poll_ins(15, 14, 94))
    e("s_waitcnt vmcnt(0)")
    for k in range(3):
        for o_ in w2_tr(11+k, SETC[k]): e(o_)
    poll_check(a, 15, 14, 94, 0x7f7f)
    e(f"s_lshl_b32 s8, s3, 2\ns_add_u32 s8, s8, {L_LF + 144 - 16}\nv_mov_b32 v2, s8\nv_mov_b32 v3, s{S_TOK}\nds_write_b32 v2, v3")
    e(f"s_branch {Lgo}")
    e(f"{Llo}:")
    e("s_waitcnt vmcnt(0)")
    for k in range(3):
        for o_ in w2_tr(11+k, SETC[k]): e(o_)
    conv_final(a)
    a.stamp(12)
    Lw4 = a.label("Llf4")
    e(f"s_lshl_b32 s8, s3, 2\ns_add_u32 s8, s8, {L_LF + 144}\nv_mov_b32 v2, s8\ns_mov_b32 s9, 0")
    e(f"{Lw4}:")
    e("ds_read_b32 v3, v2\ns_waitcnt lgkmcnt(0)")
    e(f"v_cmp_ne_u32 vcc, s{S_TOK}, v3\ns_cbranch_vccz {Lgo}")
    e(f"s_add_u32 s9, s9, 1\ns_cmp_lt_u32 s9, {O.spin*500}\ns_cbranch_scc1 {Lw4}")
    e(f"{Lgo}:")
    a.stamp(13)
    a.vm_reset()
    e(f"s_mul_i32 s8, s93, {O.rs}\ns_add_u32 s8, s8, s3\ns_and_b32 s8, s8, 7\ns_mul_i32 s9, s8, 14336\ns_mul_i32 s88, s92, {2*HSTR}\ns_add_u32 s88, s88, s9")
    e(f"s_add_u32 s88, s88, {WS_H}\ns_add_u32 s89, s88, {HSTR}")
    def hload(s):
        o = []
        for t in range(2):
            r = HB + ((s % ND)*2 + t)*4
            if s*1024 <= 4095: o.append((f"buffer_load_dwordx4 v[{r}:{r+3}], v12, {srd(S_WS)}, s{88+t} offen offset:{s*1024}{O.scl}", ("H", s)))
            else: o.append((f"s_add_u32 s8, s{88+t}, {s*1024}\nbuffer_load_dwordx4 v[{r}:{r+3}], v12, {srd(S_WS)}, s8 offen{O.scl}", ("H", s)))
        return o
    e("s_waitcnt lgkmcnt(0)")
    for s in range(ND):
        for z in hload(s): x(z)
    x((f"s_add_u32 m0, s91, {WRING}\ns_add_u32 s8, s88, 8192\n" + "\n".join(f"buffer_load_dwordx4 v12, {srd(S_WS)}, s8 offen offset:{i*1024}{O.scl} lds" for i in range(4)), "HL", 4))
    for hh in range(2):
        x((f"s_add_u32 m0, s90, {16384*(1+hh)}\ns_add_u32 s8, s89, {8192 + hh*2048}\n" + "\n".join(f"buffer_load_dwordx4 v12, {srd(S_WS)}, s8 offen offset:{i*1024}{O.scl} lds" for i in range(2)), "HL", 2))
    nbase = 0
    e(f"v_add_u32 v6, s90, v12\nv_add_u32 v4, s91, v12")
    e(f"s_lshl_b32 s94, s93, 7\ns_and_b32 s8, s92, 7\ns_lshl_b32 s8, s8, 10\ns_add_u32 s94, s94, s8\ns_add_u32 s94, s94, {WS_FY}\nv_and_b32 v14, 124, v13")
    a.lq = []
    def conv(s): return []
    Lpr = a.label("Lpr")
    if O.g2p: e(f"s_cmp_lt_u32 s3, 4\ns_cbranch_scc1 {Lpr}\ns_setprio 2\n{Lpr}:")
    for z in conv(0) + conv(1): x(z)
    e("v_lshrrev_b32 v0, 3, v1\nv_and_b32 v2, 7, v1\ns_lshl_b32 s8, s3, 3\nv_add_u32 v0, s8, v0")
    e("v_mul_u32_u24 v3, 896, v0\nv_lshl_add_u32 v3, v2, 4, v3")
    e("s_mul_i32 s43, s92, 57344\ns_lshl_b32 s9, s93, 7\ns_add_u32 s43, s43, s9")
    for s in range(14):
        if not (8 <= s < 12): a.wait_vm([("H", s)])
        else: a.wait_l(("HR", s))
        a.wait_l(("CV", s))
        if s == O.fys:
            L = a.label("Lfy")
            e(f"s_cmp_ge_u32 s3, 4\ns_cbranch_scc1 {L}")
            e(f"s_waitcnt vmcnt({len(a.vm) - nbase})")
            e(f"v_mov_b32 v15, {L_LF + 128}\nv_mov_b32 v7, 1\ns_mov_b64 exec, 1\nds_add_rtn_u32 v7, v15, v7\ns_mov_b64 exec, -1\ns_waitcnt lgkmcnt(0)")
            e(f"v_readfirstlane_b32 s8, v7\ns_cmp_lg_u32 s8, 3\ns_cbranch_scc1 {L}")
            e(f"s_lshl_b32 s8, s2, 2\ns_add_u32 s8, s8, {WS_FY}\nv_mov_b32 v15, s{S_TOK}\nv_and_b32 v7, 7, v1\nv_lshlrev_b32 v7, 10, v7")
            e(f"buffer_store_dword v15, v7, {srd(S_WS)}, s8 offen sc1")
            e(f"{L}:")
        cv = conv(s + 2) if s + 2 < 14 else []
        k = 0
        for mt in range(2):
            for t in range(2):
                C = vr(AC + (mt*2 + t)*16, 16)
                e(f"v_mfma_f32_32x32x16_bf16 {C}, {vr(W2R + 8*s + 4*mt, 4)}, {vr(HB + (hbuf(s)*2 + t)*4, 4)}, {C if s else 0}")
                for z in cv[2*k:2*k+2]: x(z)
                k += 1
        if s < 2:
            for t in range(2):
                r = HB + (s*2 + t)*4
                x((f"s_add_u32 s8, s{88+t}, {(12+s)*1024}\nbuffer_load_dwordx4 v[{r}:{r+3}], v12, {srd(S_WS)}, s8 offen{O.scl}", ("H", 12+s)))
        if s == 2:
            x((f"buffer_load_dwordx4 v[8:11], v3, {srd(S_X)}, s43 offen", "E"))
            x((f"s_lshl_b32 s70, s92, 10\ns_add_u32 s70, s70, {WS_ST}\nv_lshlrev_b32 v5, 4, v0\nbuffer_load_dwordx4 v[156:159], v5, {srd(S_WS)}, s70 offen sc1", "E"))
        if 5 <= s < 9:
            if s == 5: a.wait_vm(["HL"])
            for t in range(2):
                r = HB + ((s-3)*2 + t)*4
                x([f"ds_read_b128 v[{r}:{r+3}], v4 offset:{WRING + (s-5)*1024}" if t == 0 else f"ds_read_b128 v[{r}:{r+3}], v6 offset:{16384*(1+(s-5)//2) + ((s-5)%2)*1024}", ("HR", s+3)])
    a.stamp(14)
    Llow = a.label("Llow"); Lj = a.label("Lj")
    e(f"s_cmp_lt_u32 s3, 4\ns_cbranch_scc1 {Llow}")
    Lw3 = a.label("Llf3"); Lok3 = a.label("Llf3ok")
    e(f"v_and_b32 v80, 3, v1\nv_lshlrev_b32 v80, 2, v80\nv_add_u32 v80, {L_LF + 48}, v80\ns_mov_b32 s9, 0")
    e(f"{Lw3}:")
    e("ds_read_b32 v81, v80\ns_waitcnt lgkmcnt(0)")
    e(f"v_cmp_ne_u32 vcc, s{S_TOK}, v81\ns_cbranch_vccz {Lok3}")
    e(f"s_add_u32 s9, s9, 1\ns_cmp_lt_u32 s9, {O.spin*50}\ns_cbranch_scc1 {Lw3}")
    e(f"{Lok3}:")
    e(f"s_lshl_b32 s8, s3, 14\ns_add_u32 s8, s8, {81920 - 65536}\nv_add_u32 v80, s8, v12\ns_nop 7")
    for i in range(16): e(f"ds_write_b128 v80, {vr(AC + 4*i, 4)} offset:{i*1024}")
    e(f"s_lshl_b32 s8, s3, 2\ns_add_u32 s8, s8, {L_LF + 16}\nv_mov_b32 v80, s8\nv_mov_b32 v81, s{S_TOK}\nds_write_b32 v80, v81")
    e(f"s_cmp_lg_u32 s3, 4\ns_cbranch_scc1 {Lj}")
    Lchk = a.label("Lfyc"); Lok = a.label("Lfyok")
    e("s_mov_b32 s9, 0")
    e(f"{Lchk}:")
    e(f"s_sleep 12\nbuffer_load_dword v144, v14, {srd(S_WS)}, s94 offen sc1\ns_waitcnt vmcnt(0)")
    e(f"v_cmp_ne_u32 vcc, s{S_TOK}, v144\ns_cbranch_vccz {Lok}")
    e(f"s_add_u32 s9, s9, 1\ns_cmp_gt_u32 s9, {O.spin}\ns_cbranch_scc1 {Lok}")
    e(f"s_branch {Lchk}")
    e(f"{Lok}:")
    e("v_lshrrev_b32 v15, 3, v1\nv_lshlrev_b32 v15, 12, v15\nv_lshl_add_u32 v15, v2, 4, v15")
    e(f"s_lshl_b32 s9, s93, 18\ns_lshl_b32 s10, s92, 7\ns_add_u32 s9, s9, s10\ns_add_u32 s9, s9, {WS_Y}")
    for i in range(8):
        e(f"s_mov_b32 m0, {L_YT + i*1040}\ns_add_u32 s10, s9, {i*32768}\nbuffer_load_dwordx4 v15, {srd(S_WS)}, s10 offen sc1 lds")
    e(f"s_branch {Lj}")
    e(f"{Llow}:")
    Lw = a.label("Llf2"); Lok = a.label("Llf2ok")
    e(f"s_lshl_b32 s8, s3, 2\ns_add_u32 s8, s8, {L_LF + 32}\nv_mov_b32 v4, s8\ns_mov_b32 s9, 0")
    e(f"{Lw}:")
    e("ds_read_b32 v5, v4\ns_waitcnt lgkmcnt(0)")
    e(f"v_cmp_ne_u32 vcc, s{S_TOK}, v5\ns_cbranch_vccz {Lok}")
    e(f"s_add_u32 s9, s9, 1\ns_cmp_lt_u32 s9, {O.spin*50}\ns_cbranch_scc1 {Lw}")
    e(f"{Lok}:")
    e("s_lshl_b32 s8, s3, 14\ns_add_u32 s8, s8, 81920\nv_add_u32 v4, s8, v12")
    for i in range(16): e(f"ds_read_b128 v[{80+4*i}:{83+4*i}], v4 offset:{i*1024}")
    for i in range(16):
        e(f"s_waitcnt lgkmcnt({15-i})")
        for r in range(4): e(f"v_add_f32 v{AC+4*i+r}, v{AC+4*i+r}, v{80+4*i+r}")
    e(f"{Lj}:")
    e("s_waitcnt lgkmcnt(0)")
    a.stamp(16)
    e("s_barrier")
    Lnw = a.label("Lnw")
    e(f"s_cmp_ge_u32 s3, 4\ns_cbranch_scc1 {Lnw}")
    e("v_and_b32 v80, 31, v1\nv_lshrrev_b32 v81, 5, v1\nv_mul_u32_u24 v80, 272, v80\nv_lshl_add_u32 v80, v81, 4, v80")
    e("s_mul_i32 s8, s3, 17408\nv_add_u32 v80, s8, v80")
    for mt in range(2):
        for t in range(2):
            for q in range(4):
                e(f"ds_write_b128 v80, {vr(AC + (mt*2+t)*16 + 4*q, 4)} offset:{t*32*272 + mt*128 + q*32}")
    e(f"{Lnw}:")
    e("s_waitcnt vmcnt(0) lgkmcnt(0)")
    e("s_barrier")
    a.stamp(17)
    e(f"v_mul_u32_u24 v82, 1040, v2\nv_lshl_add_u32 v82, v0, 1, v82\nv_add_u32 v82, {L_YT}, v82")
    for i in range(8): e(f"ds_read_u16 v{148+i}, v82 offset:{i*128}")
    e("v_mul_u32_u24 v80, 272, v0\nv_lshl_add_u32 v80, v2, 5, v80")
    for w in range(4):
        for hh in range(2):
            r = 48 + w*8 + hh*4
            e(f"ds_read_b128 v[{r}:{r+3}], v80 offset:{w*17408 + hh*16}")
    e(f"s_mov_b32 s11, {fbits(-LOG2E)}")
    for q in range(4): e(f"v_lshlrev_b32 v{104+2*q}, 16, v{8+q}\nv_and_b32 v{105+2*q}, s14, v{8+q}")
    e("s_waitcnt lgkmcnt(0)")
    for i in range(8): e(f"v_add_f32 v{48+i}, v{48+i}, v{56+i}\nv_add_f32 v{64+i}, v{64+i}, v{72+i}")
    for i in range(8): e(f"v_add_f32 v{32+i}, v{48+i}, v{64+i}")
    e("v_mov_b32 v6, v156\nv_mov_b32 v7, v157")
    e("v_mul_f32 v14, v7, v7\nv_mul_f32 v15, v6, v7")
    for i in range(8): e(f"v_mul_f32 v{32+i}, v14, v{32+i}")
    for i in range(8): e(f"v_mul_f32 v{40+i}, s11, v{32+i}")
    for i in range(8): e(f"v_exp_f32 v{40+i}, v{40+i}\nv_lshlrev_b32 v{96+i}, 16, v{148+i}\nv_fma_f32 v{112+i}, v{104+i}, v7, -v15")
    for i in range(8): e(f"v_add_f32 v{40+i}, 1.0, v{40+i}\nv_mul_f32 v{112+i}, v{112+i}, v{96+i}")
    for i in range(8): e(f"v_rcp_f32 v{40+i}, v{40+i}\nv_mul_f32 v{112+i}, v{112+i}, v{32+i}")
    e("s_nop 0")
    for i in range(8): e(f"v_fma_f32 v{104+i}, v{112+i}, v{40+i}, v{104+i}")
    for q in range(4): e(f"v_cvt_pk_bf16_f32 v{120+q}, v{104+2*q}, v{105+2*q}")
    e(f"buffer_store_dwordx4 v[120:123], v3, {srd(S_OUT)}, s43 offen")
    a.stamp(15)

def aux_path(a):
    e = a.e; x = a.x
    a.c("=== AUX ===")
    a.vm_reset()
    e("s_sub_u32 s4, s2, 224\ns_lshl_b32 s5, s4, 3\ns_add_u32 s5, s5, s3")
    Lnt = a.label("Lnt")
    e(f"s_cmp_lg_u32 s5, 0\ns_cbranch_scc1 {Lnt}")
    e("s_memrealtime s[8:9]\ns_waitcnt lgkmcnt(0)\ns_or_b32 s8, s8, 1\nv_mov_b32 v2, s8")
    e(f"buffer_store_dword v2, off, {srd(S_DBG)}, 0 sc1")
    e(f"{Lnt}:")
    e("v_lshrrev_b32 v2, 3, v1\nv_and_b32 v3, 7, v1\nv_lshrrev_b32 v4, 4, v1\nv_and_b32 v5, 15, v1")
    e("s_and_b32 s8, s4, 7\ns_lshr_b32 s9, s4, 3\ns_lshr_b32 s10, s8, 1\ns_lshl_b32 s10, s10, 2\ns_add_u32 s10, s10, s9")
    e("s_and_b32 s8, s8, 1\ns_mul_i32 s8, s8, 14\ns_add_u32 s12, s8, s10")
    e("s_cmp_ge_u32 s10, 14\ns_cselect_b32 s13, 0x80000000, 0")
    e("v_mul_u32_u24 v7, 3584, v2\nv_lshl_add_u32 v7, v3, 4, v7\nv_or_b32 v7, s13, v7")
    e("s_and_b32 s8, s4, 7\ns_lshl_b32 s8, s8, 8\ns_lshr_b32 s9, s4, 3\ns_lshl_b32 s9, s9, 6\ns_add_u32 s8, s8, s9\ns_lshl_b32 s9, s3, 3\ns_add_u32 s6, s8, s9")
    e("v_mul_u32_u24 v8, 896, v2\nv_lshl_add_u32 v8, v3, 4, v8\ns_mul_i32 s7, s6, 896")
    e("s_and_b32 s8, s3, 3\ns_mul_i32 s8, s8, 28672\ns_lshl_b32 s9, s12, 7\ns_add_u32 s8, s8, s9")
    for i in range(14):
        x((f"s_add_u32 s9, s8, {i*114688}\nbuffer_load_dwordx4 v[{48+4*i}:{51+4*i}], v7, {srd(S_WSEL)}, s9 offen", ("CS", i)))
        if i == O.apace:
            a.wait_vm([("CS", O.apace)])
            x((f"buffer_load_dword v15, off, {srd(S_DBG)}, 0 sc1", "TOK"))
    for j in range(7):
        x((f"buffer_load_dwordx4 v[{104+4*j}:{107+4*j}], v8, {srd(S_X)}, s7 offen offset:{j*128}", "XS"))
    C = 16
    for i in range(14):
        a.wait_vm([("CS", i)])
        for q in range(4):
            r = 48 + 4*i + q
            if i == 0: e(f"v_lshlrev_b32 v{C+2*q}, 16, v{r}\nv_and_b32 v{C+2*q+1}, s14, v{r}")
            else: e(f"v_lshlrev_b32 v{24+2*q}, 16, v{r}\nv_and_b32 v{25+2*q}, s14, v{r}")
        if i:
            for q in range(8): e(f"v_add_f32 v{C+q}, v{C+q}, v{24+q}")
    a.stamp(3)
    e("s_nop 1")
    for q in range(4): e(f"v_permlane32_swap_b32 v{C+q}, v{C+4+q}")
    e("s_nop 1")
    for q in range(4): e(f"v_add_f32 v{C+q}, v{C+q}, v{C+4+q}")
    e("s_nop 1")
    for q in range(2): e(f"v_permlane16_swap_b32 v{C+q}, v{C+2+q}")
    e("s_nop 1")
    for q in range(2): e(f"v_add_f32 v{C+q}, v{C+q}, v{C+2+q}")
    e("s_nop 1")
    for q in range(2): e(f"v_add_f32_dpp v{C+q}, v{C+q}, v{C+q} row_ror:8 row_mask:0xf bank_mask:0xf")
    e("v_lshrrev_b32 v24, 5, v1\nv_bfe_u32 v25, v1, 4, 1\nv_lshlrev_b32 v26, 5, v3\nv_lshl_add_u32 v26, v24, 4, v26\nv_lshl_add_u32 v26, v25, 3, v26")
    e("s_lshl_b32 s8, s3, 8\nv_add_u32 v26, s8, v26")
    e(f"ds_write_b64 v26, v[{C}:{C+1}]")
    e("s_waitcnt lgkmcnt(0)\ns_barrier")
    e("s_lshr_b32 s8, s3, 2\ns_lshl_b32 s9, s8, 10\nv_add_u32 v26, s9, v13")
    for q in range(4): e(f"ds_read_b32 v{28+q}, v26 offset:{q*256}")
    e("s_and_b32 s9, s3, 3\ns_cmp_lg_u32 s9, 0\ns_cselect_b32 s9, 0x80000000, s13\nv_lshlrev_b32 v27, 3, v1\nv_or_b32 v27, s9, v27")
    e("s_mov_b32 s10, s8")
    token_get(a, 15)
    e("s_waitcnt lgkmcnt(0)")
    e(f"v_add_f32 v28, v28, v29\nv_add_f32 v30, v30, v31\nv_add_f32 v28, v28, v30\nv_mov_b32 v29, s{S_TOK}")
    e(f"s_mul_i32 s8, s10, 14336\ns_lshl_b32 s9, s12, 9\ns_add_u32 s8, s8, s9\ns_add_u32 s8, s8, {WS_CS}")
    x((f"buffer_store_dwordx2 v[28:29], v27, {srd(S_WS)}, s8 offen sc1", "CST"))
    a.wait_vm(["XS"])
    e("v_mov_b32 v36, 0x3f803f80\nv_mov_b32 v32, 0\nv_mov_b32 v33, 0\nv_mov_b32 v34, 0\nv_mov_b32 v35, 0")
    for r in range(104, 132):
        e(f"v_dot2_f32_bf16 v{32 + 2*(r&1)}, v{r}, v36, v{32 + 2*(r&1)}\nv_dot2_f32_bf16 v{33 + 2*(r&1)}, v{r}, v{r}, v{33 + 2*(r&1)}")
    e("s_nop 2\nv_add_f32 v32, v32, v34\nv_add_f32 v33, v33, v35\ns_nop 1")
    for pat in ("quad_perm:[1,0,3,2]", "quad_perm:[2,3,0,1]", "row_half_mirror"):
        e(f"v_add_f32_dpp v32, v32, v32 {pat} row_mask:0xf bank_mask:0xf\nv_add_f32_dpp v33, v33, v33 {pat} row_mask:0xf bank_mask:0xf\ns_nop 1")
    e(f"v_mul_f32 v32, {fbits(1.0/448)}, v32\nv_mul_f32 v33, {fbits(1.0/448)}, v33\nv_fma_f32 v33, -v32, v32, v33\nv_max_f32 v33, 0, v33")
    e(f"v_add_f32 v33, {fbits(1e-5)}, v33\nv_rsq_f32 v33, v33\nv_mov_b32 v34, s{S_TOK}\nv_mov_b32 v35, s{S_TOK}")
    e(f"s_lshl_b32 s8, s6, 4\ns_add_u32 s8, s8, {WS_ST}\nv_lshlrev_b32 v26, 4, v2")
    e(f"buffer_store_dwordx4 v[32:35], v26, {srd(S_WS)}, s8 offen sc1")
    a.stamp(4)

def build():
    a = Gen()
    prologue(a)
    a.e("s_cmp_ge_u32 s2, 224\ns_cbranch_scc1 Laux")
    main_path(a)
    a.stamp_flush()
    a.e("s_endpgm")
    a.e("Laux:")
    aux_path(a)
    a.stamp_flush()
    a.e("Lend:")
    a.e("s_endpgm")
    a.e("Lcode_end:")
    k = NAME + "_kernel"
    out = [f"; @launch grid=(256,1,1) block=(512,1,1) lds={LDS_TOTAL}",
           '.amdgcn_target "amdgcn-amd-amdhsa--gfx950"\n.text', kernel_header(k), a.text(),
           '.section .rodata,"a"', kernel_desc(k, 256, 256)]
    return "\n".join(out) + "\n"

if __name__ == "__main__":
    for arg in sys.argv[1:]:
        if arg == "stamps": O.stamps = True
        elif arg == "cyc": O.cyc = True
        elif arg == "gt": O.gt = True
        elif arg.startswith("wtp="): O.wtp = int(arg[4:])
        elif arg.startswith("ap="): O.apace = int(arg[3:])
        elif arg == "nopk": O.pk = False
        elif arg == "noep": O.ep = False
        elif arg == "hf": O.hfirst = True
        elif arg == "nog2p": O.g2p = False
        elif arg == "noct": O.ctouch = False
        elif arg == "notlb": O.tlb = False
        elif arg == "kd1": O.kd = 1; O.kv0 = False
        elif arg.startswith("rr="): O.rr = int(arg[3:])
        elif arg.startswith("rf="): O.rf = int(arg[3:])
        elif arg.startswith("rs="): O.rs = int(arg[3:])
        elif arg == "nogt": O.gt = False
        elif arg == "kv0": O.kv0 = True; O.kd = 0
        elif arg.startswith("w6="): O.w6 = int(arg[3:])
        elif arg == "sc1": O.scl = " sc1"
        elif arg == "notouch": O.touch = False
        elif arg.startswith("kt="): O.ktail = int(arg[3:])
    print(build())
```

```python
import sys, struct
from asmlib import *

NAME = "recurrent_scan__ssm_conv_h3__glu_gated_swiglu__prompt"
WS_KV = 0
WS_W2F = 2 << 20
WS_Y = 4 << 20
WS_ST = 6 << 20
WS_CS = (6 << 20) + 65536
WS_FLAG = (6 << 20) + 131072
WS_F1 = WS_FLAG
WS_FK = WS_FLAG + 65536
WS_FW = WS_FLAG + 2048
WS_FH = WS_FLAG + 32768
WS_FY = WS_FLAG + 16384
WS_H = 8 << 20
HSTR = 114688 + 128
WS_STAMP = 22 << 20
WS_SIZE = 24 << 20

S_X, S_WSEL, S_WS, S_K, S_V, S_SHK, S_SSMD, S_W2, S_OUT, S_DBG = 44, 48, 52, 56, 60, 64, 72, 76, 80, 84
S_T0 = 96
S_TOK = 42
def srd(b): return f"s[{b}:{b+3}]"
LOG2E = 1.4426950408889634
def fbits(f): return "0x%08x" % struct.unpack("<I", struct.pack("<f", f))[0]

class Opt: pass
O = Opt()
O.w6 = 0; O.skp = -5; O.wtp = 2; O.gtp = 0; O.fhd = 8; O.g2p = False; O.pk = True; O.ep = True; O.hfirst = False; O.tlb = True; O.ctouch = True; O.cvs = [0, 3, 6, 8, 10]; O.w4 = 4; O.chk = 8; O.rr = 0; O.rf = 0; O.rs = 0; O.gt = False; O.apace = 1; O.ebar = 1; O.kd = 0; O.kv0 = True; O.fys = 0; O.stamps = False; O.cyc = False; O.spin = 20000; O.scl = ""; O.touch = True; O.ktail = 6

STAMP_REGS = [16,17,18,19,20,21,22,23,26,27,28,29,30,31,32,33,34,35,36,37,38,39]
class Gen(Asm):
    def __init__(self):
        super().__init__()
        self.vm = []
        self.lq = []
    def x(self, item):
        if isinstance(item, tuple):
            self.e(item[0]); self.vm.extend([item[1]] * (item[2] if len(item) > 2 else 1))
        elif isinstance(item, list): self.l(item[0], item[1])
        else:
            self.e(item)
            for ln in item.split("\n"):
                if ln.startswith("ds_"): self.lq.append(None)
    def wait_vm(self, tags, extra=""):
        idx = -1
        for t in tags:
            ii = [i for i, v in enumerate(self.vm) if v == t]
            assert ii, t
            idx = max(idx, ii[-1])
        self.e(f"s_waitcnt vmcnt({min(63, len(self.vm) - 1 - idx)}){extra}")
    def vm_reset(self): self.vm = []
    def l(self, text, tag=None):
        self.e(text); self.lq.append(tag)
    def wait_l(self, tag):
        ii = [i for i, v in enumerate(self.lq) if v == tag]
        if not ii: return
        n = len(self.lq) - 1 - ii[-1]
        self.e(f"s_waitcnt lgkmcnt({min(15, n)})")
        if n <= 15: del self.lq[:ii[-1]+1]
    def stamp(self, idx):
        if not O.stamps: return
        self.e(("s_memtime" if O.cyc else "s_memrealtime") + " s[100:101]\ns_waitcnt lgkmcnt(0)")
        self.e(f"s_mov_b32 s{STAMP_REGS[idx]}, s100")
    def stamp_flush(self):
        if not O.stamps: return
        self.e("v_mov_b32 v2, 0")
        for i, r in enumerate(STAMP_REGS): self.e(f"v_writelane_b32 v2, s{r}, {i}")
        self.e(f"s_lshl_b32 s8, s2, 3\ns_add_u32 s8, s8, s3\ns_lshl_b32 s8, s8, 8\ns_add_u32 s8, s8, {WS_STAMP}")
        self.e("v_lshlrev_b32 v3, 2, v1")
        self.e(f"buffer_store_dword v2, v3, {srd(S_WS)}, s8 offen")
    def interleave(self, main, other, per=None):
        other = list(other)
        if per is None: per = max(1, -(-len(other) // max(1, len(main))))
        for m in main:
            self.x(m)
            for _ in range(per):
                if other: self.x(other.pop(0))
        for o in other: self.x(o)

XRING = 0; WRING = 49152
L_SP = 147456
L_KT = L_SP
L_HA = L_SP
HREG = 5120
L_CS = L_SP + 10240; L_ST = L_CS + 2048; L_C2 = L_ST + 1024; L_LF = L_C2 + 1024
L_UB = WRING + 65536
UREG = 6144
L_YB = WRING + 32768
L_YB2 = L_YB
L_YT = L_SP
LDS_TOTAL = L_SP + 10240 + 4096 + 256

def merge(x, y):
    o = []
    for i in range(max(len(x), len(y))):
        if i < len(x): o.append(x[i])
        if i < len(y): o.append(y[i])
    return o

def prologue(a):
    e = a.e
    e("s_cmp_ge_u32 s2, 256\ns_cbranch_scc1 Lend")
    e("s_load_dwordx16 s[16:31], s[0:1], 0")
    e("s_load_dwordx8 s[32:39], s[0:1], 64")
    e("s_load_dwordx2 s[40:41], s[0:1], 96")
    if O.ctouch:
        e("Lpc0:\ns_getpc_b64 s[8:9]")
        e("v_lshlrev_b32 v3, 7, v0\nv_min_u32 v3, Lcode_end-Lpc0-8, v3")
        e("global_load_dword v227, v3, s[8:9]")
    e("v_and_b32 v1, 63, v0\nv_lshrrev_b32 v2, 6, v0\ns_nop 0\nv_readfirstlane_b32 s3, v2")
    e("v_lshlrev_b32 v12, 4, v1\nv_lshlrev_b32 v13, 2, v1\ns_mov_b32 s14, 0xffff0000")
    e("s_waitcnt lgkmcnt(0)")
    e("s_memrealtime s[0:1]")
    def mk(b, p, size):
        e(f"s_mov_b32 s{b}, s{p}\ns_mov_b32 s{b+1}, s{p+1}\ns_mov_b32 s{b+2}, {size}\ns_mov_b32 s{b+3}, 0x20000")
    mk(S_X, 16, 1835008)
    e("s_cmp_ge_u32 s3, 4")
    e(f"s_cselect_b32 s{S_WSEL}, s32, s30\ns_cselect_b32 s{S_WSEL+1}, s33, s31")
    e(f"s_mov_b32 s{S_WSEL+2}, 1605632\ns_mov_b32 s{S_WSEL+3}, 0x20000")
    mk(S_WS, 40, WS_SIZE)
    mk(S_K, 18, 1835008); mk(S_V, 20, 1835008); mk(S_SHK, 22, 3584)
    mk(S_SSMD, 26, 896); mk(S_W2, 34, 1605632); mk(S_OUT, 36, 1835008); mk(S_DBG, 38, 256)
    e("s_waitcnt lgkmcnt(0)")
    if O.stamps:
        for r in STAMP_REGS: e(f"s_mov_b32 s{r}, 0")
    a.stamp(0)

def poll_ins(vflag, voff, soff, wide=False):
    if wide: return f"buffer_load_dwordx4 v[{vflag}:{vflag+3}], v{voff}, {srd(S_WS)}, s{soff} offen sc1"
    return f"buffer_load_dword v{vflag}, v{voff}, {srd(S_WS)}, s{soff} offen sc1"

def poll_check(a, vflag, voff, soff, nlanes, wide=False):
    e = a.e
    Lchk = a.label("Lchk"); Lok = a.label("Lok")
    e("s_mov_b32 s9, 0")
    e(f"{Lchk}:")
    if wide:
        for i in range(4): e(f"v_xor_b32 v{vflag+i}, s{S_TOK}, v{vflag+i}")
        e(f"v_or3_b32 v{vflag}, v{vflag}, v{vflag+1}, v{vflag+2}\nv_or_b32 v{vflag}, v{vflag}, v{vflag+3}")
        e(f"v_cmp_ne_u32 vcc, 0, v{vflag}")
    else:
        e(f"v_cmp_ne_u32 vcc, s{S_TOK}, v{vflag}")
    mask = (1 << nlanes) - 1 if nlanes <= 64 else nlanes
    if nlanes <= 32 or nlanes > 64: e(f"s_and_b32 s8, vcc_lo, {hex(mask)}")
    else: e(f"s_and_b32 s8, vcc_hi, {hex(mask >> 32)}\ns_or_b32 s8, s8, vcc_lo")
    e(f"s_cmp_eq_u32 s8, 0\ns_cbranch_scc1 {Lok}")
    e(f"s_add_u32 s9, s9, 1\ns_cmp_gt_u32 s9, {O.spin}\ns_cbranch_scc1 {Lok}")
    e("s_sleep 8")
    e(poll_ins(vflag, voff, soff, wide))
    e("s_waitcnt vmcnt(0)")
    e(f"s_branch {Lchk}")
    e(f"{Lok}:")

def token_get(a, vtok):
    e = a.e
    Lt = a.label("Ltok")
    e("s_mov_b32 s9, 0")
    e(f"{Lt}:")
    e(f"v_readfirstlane_b32 s{S_TOK}, v{vtok}")
    e(f"s_sub_u32 s8, s0, s{S_TOK}\ns_cmp_lt_i32 s8, 1000\ns_cselect_b32 s8, s{S_TOK}, 0\ns_cmp_gt_u32 s9, 64\ns_cselect_b32 s8, s{S_TOK}, s8")
    e(f"s_cmp_lg_u32 s8, 0\ns_cbranch_scc1 {Lt}_ok")
    e(f"s_add_u32 s9, s9, 1\ns_cmp_gt_u32 s9, {O.spin}\ns_cbranch_scc1 {Lt}_ok")
    e(f"s_sleep 8\nbuffer_load_dword v{vtok}, off, {srd(S_DBG)}, 0 sc1\ns_waitcnt vmcnt(0)\ns_branch {Lt}")
    e(f"{Lt}_ok:")

def flag_store_w0(a, idx_expr_sreg, base, vtmp):
    L = a.label("Lnf")
    a.e(f"s_cmp_lg_u32 s3, 0\ns_cbranch_scc1 {L}")
    a.e(f"s_lshl_b32 s8, s{idx_expr_sreg}, 2\ns_add_u32 s8, s8, {base}\nv_mov_b32 v{vtmp}, s{S_TOK}")
    a.e(f"buffer_store_dword v{vtmp}, off, {srd(S_WS)}, s8 sc1")
    a.e(f"{L}:")

def stats_row_issue(vdst, vtmp):
    return ("s_lshl_b32 s8, s2, 3\ns_add_u32 s8, s8, s3\ns_mul_i32 s8, s8, 896\n"
            f"v_cmp_gt_u32 vcc, 56, v1\nv_mov_b32 v{vtmp}, 0x80000000\ns_nop 0\nv_cndmask_b32 v{vtmp}, v{vtmp}, v12, vcc\n"
            f"buffer_load_dwordx4 v[{vdst}:{vdst+3}], v{vtmp}, {srd(S_X)}, s8 offen", "STL")

def stats_row_compute(vsrc, t):
    o = []
    o.append(f"v_mov_b32 v{t+2}, 0x3f803f80\nv_mov_b32 v{t}, 0\nv_mov_b32 v{t+1}, 0")
    for q in range(4):
        o.append(f"v_dot2_f32_bf16 v{t}, v{vsrc+q}, v{t+2}, v{t}\nv_dot2_f32_bf16 v{t+1}, v{vsrc+q}, v{vsrc+q}, v{t+1}")
    o.append("s_nop 2")
    for pat in ("quad_perm:[1,0,3,2]", "quad_perm:[2,3,0,1]", "row_half_mirror", "row_mirror"):
        o.append(f"v_add_f32_dpp v{t}, v{t}, v{t} {pat} row_mask:0xf bank_mask:0xf\nv_add_f32_dpp v{t+1}, v{t+1}, v{t+1} {pat} row_mask:0xf bank_mask:0xf\ns_nop 0")
    for sw in ("v_permlane16_swap_b32", "v_permlane32_swap_b32"):
        o.append(f"v_mov_b32 v{t+2}, v{t}\nv_mov_b32 v{t+3}, v{t+1}\ns_nop 1\n{sw} v{t}, v{t+2}\n{sw} v{t+1}, v{t+3}\ns_nop 1\nv_add_f32 v{t}, v{t}, v{t+2}\nv_add_f32 v{t+1}, v{t+1}, v{t+3}")
    o.append(f"v_mul_f32 v{t}, {fbits(1.0/448)}, v{t}\nv_mul_f32 v{t+1}, {fbits(1.0/448)}, v{t+1}")
    o.append(f"v_fma_f32 v{t+1}, -v{t}, v{t}, v{t+1}\nv_max_f32 v{t+1}, 0, v{t+1}\nv_add_f32 v{t+1}, {fbits(1e-5)}, v{t+1}\nv_rsq_f32 v{t+1}, v{t+1}")
    o.append((f"s_lshl_b32 s8, s2, 3\ns_add_u32 s8, s8, s3\ns_lshl_b32 s8, s8, 3\ns_add_u32 s8, s8, {WS_ST}\nbuffer_store_dwordx2 v[{t}:{t+1}], off, {srd(S_WS)}, s8 sc1", "STS"))
    return o

ACC = 16; FRG = [80, 96, 112, 128]; W2R = 144
def g1acc(j, t): return ACC + (2*j + t) * 16

def main_path(a):
    e = a.e; x = a.x
    a.c("=== MAIN: GEMM1 setup ===")
    e("s_and_b32 s4, s3, 1\ns_lshr_b32 s5, s3, 1")
    e("s_and_b32 s8, s2, 7\ns_lshr_b32 s9, s2, 3")
    e("s_and_b32 s10, s9, 3\ns_lshr_b32 s11, s9, 2")
    e("s_lshr_b32 s6, s8, 1\ns_lshl_b32 s6, s6, 2\ns_add_u32 s6, s6, s10")
    e("s_and_b32 s7, s8, 1\ns_mul_i32 s7, s7, 7\ns_add_u32 s7, s7, s11")
    e("v_lshrrev_b32 v20, 3, v1\nv_and_b32 v21, 7, v1\nv_lshrrev_b32 v22, 4, v1")
    e("s_lshl_b32 s8, s3, 4")
    e("v_add_u32 v23, s8, v20\nv_mul_u32_u24 v23, 896, v23")
    e("v_xor_b32 v24, v21, v22\nv_lshl_add_u32 v2, v24, 4, v23")
    e("v_xor_b32 v24, 4, v24\nv_lshl_add_u32 v3, v24, 4, v23\nv_add_u32 v3, 7168, v3")
    e("s_and_b32 s8, s3, 3\ns_lshl_b32 s8, s8, 4")
    e("v_add_u32 v23, s8, v22\nv_mul_u32_u24 v23, 3584, v23")
    e("s_lshr_b32 s9, s3, 2\ns_lshl_b32 s9, s9, 2\nv_or_b32 v24, s9, v22")
    e("v_bfe_u32 v25, v1, 1, 3\nv_xor_b32 v24, v24, v25\nv_and_b32 v26, 1, v1")
    e("v_lshl_or_b32 v27, v24, 1, v26\nv_lshl_add_u32 v4, v27, 4, v23")
    e("s_mul_i32 s88, s6, 114688\ns_lshl_b32 s89, s7, 8")
    e("s_lshl_b32 s90, s3, 11\ns_lshl_b32 s91, s3, 12")
    e(f"s_mul_i32 s70, s10, {O.rr}\ns_mul_i32 s9, s11, {O.rf}\ns_add_u32 s70, s70, s9\ns_mul_hi_u32 s9, s70, 0x24924925\ns_mul_i32 s9, s9, 7\ns_sub_u32 s70, s70, s9")
    def dma_x(c):
        pre = "s_lshl_b32 s71, s70, 7\ns_add_u32 s71, s71, s88\ns_mul_i32 s69, s70, 229376\ns_add_u32 s69, s69, s89\ns_add_u32 s70, s70, 1\ns_cmp_eq_u32 s70, 7\ns_cselect_b32 s70, 0, s70\n"
        return [((pre if ee == 0 else "") + f"s_add_u32 m0, s90, {XRING + (c % 3)*16384 + ee*1024}\ns_nop 0\nbuffer_load_dwordx4 v{2+ee}, {srd(S_X)}, s71 offen lds", ("C", c)) for ee in range(2)]
    def dma_w(c):
        return [(f"s_add_u32 m0, s91, {WRING + (c % 3)*32768 + ee*1024}\ns_add_u32 s8, s69, {4*ee*3584}\nbuffer_load_dwordx4 v4, {srd(S_WSEL)}, s8 offen lds", ("C", c)) for ee in range(4)]
    for c in range(2):
        for s in dma_x(c) + dma_w(c): x(s)
    e("s_mul_hi_u32 s12, s2, 0x24924925\ns_mul_i32 s13, s12, 7\ns_sub_u32 s13, s2, s13")
    e("v_and_b32 v23, 31, v1\nv_lshrrev_b32 v24, 5, v1")
    e("v_mul_u32_u24 v25, 3584, v24\nv_lshl_add_u32 v25, v23, 2, v25")
    e("s_mul_i32 s8, s12, 57344\ns_lshl_b32 s9, s13, 7\ns_add_u32 s8, s8, s9\ns_mul_i32 s9, s3, 7168\ns_add_u32 s8, s8, s9")
    e("v_add_u32 v194, s8, v25")
    e("v_lshlrev_b32 v195, 4, v23")
    for s in dma_x(2) + dma_w(2): x(s)
    def kv_loads():
        o = [(f"s_lshl_b32 s8, s13, 9\nbuffer_load_dwordx4 v[160:163], v195, {srd(S_SHK)}, s8 offen", "KVL")]
        for i in range(-3, 0):
            o.append((f"v_subrev_u32 v204, {-i*896}, v194\nbuffer_load_dword v{147+i}, v204, {srd(S_K)}, 0 offen", "KVL"))
        for i in range(4):
            o.append((f"buffer_load_dword v{147+i}, v194, {srd(S_K)}, 0 offen offset:{i*896}", "KVL"))
            o.append((f"buffer_load_dword v{152+i}, v194, {srd(S_V)}, 0 offen offset:{i*896}", "KVL"))
        return o
    def g1_touch():
        if not O.gt: return []
        o = []
        o.append(("\n".join([
            "s_lshr_b32 s8, s2, 3\ns_lshl_b32 s8, s8, 2\ns_and_b32 s9, s3, 3\ns_add_u32 s8, s8, s9\ns_lshl_b32 s8, s8, 5",
            "v_add_u32 v228, s8, v1\nv_mul_u32_u24 v229, 4682, v228\nv_lshrrev_b32 v229, 16, v229",
            "v_mul_u32_u24 v230, 14, v229\nv_sub_u32 v228, v228, v230",
            "v_mul_u32_u24 v229, 3584, v229\nv_lshl_add_u32 v228, v228, 7, v229",
            "v_cmp_gt_u32 vcc, 32, v1\nv_mov_b32 v230, 0x80000000\ns_and_b32 s9, s2, 1\nv_cndmask_b32 v228, v230, v228, vcc",
            f"s_mul_i32 s9, s9, 1792\ns_add_u32 s9, s9, {192*3584}",
            f"buffer_load_dword v231, v228, {srd(S_WSEL)}, s9 offen"]), "T"))
        o.append(("\n".join([
            "s_lshr_b32 s8, s2, 3\ns_lshl_b32 s8, s8, 3\ns_add_u32 s8, s8, s3\ns_mul_i32 s8, s8, 10",
            "v_add_u32 v228, s8, v1\nv_lshrrev_b32 v229, 2, v228\nv_and_b32 v228, 3, v228",
            "v_cmp_gt_u32 vcc, 512, v229\nv_cmp_gt_u32 s[10:11], 10, v1\nv_mul_u32_u24 v229, 896, v229\nv_lshl_add_u32 v228, v228, 7, v229",
            "s_and_b64 vcc, vcc, s[10:11]\ns_bfe_u32 s9, s2, 0x20001\ns_mul_i32 s9, s9, 458752\nv_cndmask_b32 v228, v230, v228, vcc",
            "s_add_u32 s9, s9, 384",
            f"buffer_load_dword v231, v228, {srd(S_X)}, s9 offen"]), "T"))
        return o
    def sk_touch():
        Lt_ = a.label("Ltsk")
        return "\n".join([f"s_cmp_lg_u32 s3, 6\ns_cbranch_scc1 {Lt_}",
            "s_lshl_b32 s8, s2, 13\nv_lshlrev_b32 v232, 7, v1\nv_add_u32 v232, s8, v232",
            "global_load_dword v233, v232, s[24:25]", f"{Lt_}:"])
    def w2_touch():
        Lt_ = a.label("Ltw2")
        return "\n".join([f"s_cmp_lg_u32 s3, 7\ns_cbranch_scc1 {Lt_}",
            "s_mul_i32 s8, s2, 7168\nv_lshlrev_b32 v232, 7, v1\nv_cmp_gt_u32 vcc, 56, v1\nv_mov_b32 v233, 0x80000000\ns_nop 0\nv_cndmask_b32 v232, v233, v232, vcc",
            f"buffer_load_dword v233, v232, {srd(S_W2)}, s8 offen", f"{Lt_}:"])
    def w2f_loads():
        L = a.label("Lw2a")
        o = [f"s_cmp_lt_u32 s3, 6\ns_cbranch_scc1 {L}\ns_cmp_ge_u32 s2, 196\ns_cbranch_scc1 {L}",
             "s_lshl_b32 s8, s2, 1\ns_add_u32 s8, s8, s4\ns_mul_hi_u32 s98, s8, 0x24924925\ns_mul_i32 s99, s98, 7\ns_sub_u32 s99, s8, s99",
             "v_bfe_u32 v224, v1, 4, 1\nv_lshrrev_b32 v225, 5, v1\nv_lshl_add_u32 v224, v225, 2, v224\nv_mul_u32_u24 v224, 3584, v224\nv_and_b32 v225, 15, v1\nv_lshl_add_u32 v224, v225, 3, v224",
             "s_mul_i32 s8, s98, 28672\ns_lshl_b32 s9, s99, 7\ns_add_u32 s8, s8, s9\ns_add_u32 s9, s8, 7168"]
        for h in range(2):
            for i in range(4):
                r = 208 + (h*4 + i)*2
                o.append(f"buffer_load_dwordx2 v[{r}:{r+1}], v224, {srd(S_W2)}, s{8+h} offen offset:{i*896}")
        o.append(f"{L}:")
        return "\n".join(o)
    def w2f_store():
        L = a.label("Lw2b")
        e(f"s_cmp_lt_u32 s3, 6\ns_cbranch_scc1 {L}\ns_cmp_ge_u32 s2, 196\ns_cbranch_scc1 {L}")
        e("s_mov_b32 s10, 0x05040100\ns_mov_b32 s11, 0x07060302")
        e(f"s_mul_i32 s8, s99, 224\ns_lshl_b32 s9, s98, 1\ns_add_u32 s8, s8, s9\ns_lshl_b32 s8, s8, 10\ns_add_u32 s8, s8, {WS_W2F}\ns_add_u32 s9, s8, {112*1024}")
        e("v_lshrrev_b32 v224, 4, v1\nv_lshlrev_b32 v224, 9, v224\nv_and_b32 v225, 15, v1\nv_lshl_add_u32 v224, v225, 4, v224")
        for ee in range(4):
            d = 164 + ee*4
            for j in range(4):
                r0 = 208 + (2*j)*2 + (ee >> 1); r1 = r0 + 2
                e(f"v_perm_b32 v{d+j}, v{r1}, v{r0}, s{10 + (ee & 1)}")
            e(f"buffer_store_dwordx4 v[{d}:{d+3}], v224, {srd(S_WS)}, s{8 + (ee >> 1)} offen offset:{(ee & 1)*256} sc1")
        e(f"{L}:")
    if O.kv0:
        for s in kv_loads(): x(s)
    if O.wtp < 0: e(w2_touch())
    if O.tlb:
        Lt2 = a.label("Ltlb")
        e(f"s_cmp_lg_u32 s3, 7\ns_cbranch_scc1 {Lt2}")
        e(f"buffer_load_dword v220, off, {srd(S_SSMD)}, 0\nbuffer_load_dword v221, off, {srd(S_W2)}, 0\nbuffer_load_dword v222, off, {srd(S_OUT)}, 0")
        e("v_mov_b32 v226, 0\nglobal_load_dword v223, v226, s[24:25]")
        e(f"v_lshlrev_b32 v225, 21, v1\nv_add_u32 v225, {(2<<20) - 128}, v225\nv_subrev_u32 v226, 4, v1\nv_mul_u32_u24 v226, {8*HSTR}, v226\nv_add_u32 v226, {WS_H + 114688}, v226")
        e("v_cmp_gt_u32 vcc, 4, v1\ns_nop 1\nv_cndmask_b32 v225, v226, v225, vcc\nv_cmp_gt_u32 vcc, 12, v1\nv_mov_b32 v226, 0x80000000\ns_nop 0\nv_cndmask_b32 v225, v226, v225, vcc")
        e(f"buffer_load_dword v224, v225, {srd(S_WS)}, 0 offen")
        e(f"{Lt2}:")
    e(f"s_lshl_b32 s8, s3, 4\ns_sub_u32 s8, {L_KT + 120}, s8\nv_mul_u32_u24 v196, 272, v23\nv_lshlrev_b32 v24, 3, v24\nv_sub_u32 v196, v196, v24\nv_add_u32 v196, s8, v196")
    e(f"s_mul_i32 s8, s3, 1088\ns_add_u32 s8, s8, {L_KT}\nv_mul_u32_u24 v202, 136, v20\nv_lshl_add_u32 v202, v21, 4, v202\nv_add_u32 v202, s8, v202")
    e("v_lshlrev_b32 v203, 12, v20\nv_lshl_add_u32 v203, v21, 4, v203")
    e("s_lshl_b32 s15, s13, 18\ns_lshl_b32 s9, s3, 15\ns_add_u32 s15, s15, s9\ns_sub_u32 s9, 31, s12\ns_lshl_b32 s9, s9, 7\ns_add_u32 s15, s15, s9")
    e("s_lshl_b32 s43, s13, 5\ns_add_u32 s43, s43, s12")
    def kv_compute():
        o = []
        def up(d, s_, hi): return f"v_and_b32 v{d}, s14, v{s_}" if hi else f"v_lshlrev_b32 v{d}, 16, v{s_}"
        for c in range(2):
            for j in range(4): o.append(up(168 + j, 160 + 2*c + (j >> 1), j & 1))
            for i in range(7): o.append(up(172 + i, 144 + i, c))
            for i in range(4): o.append(f"v_mul_f32 v{180+i}, v168, v{175+i}")
            for lag in range(1, 4):
                for i in range(4): o.append(f"v_fmac_f32 v{180+i}, v{168+lag}, v{175+i-lag}")
            for i in range(4): o.append(up(172 + i, 152 + i, c))
            for i in range(4): o.append(f"v_mul_f32 v{180+i}, v{180+i}, v{172+i}")
            d = 186 + 2*c
            o.append(f"v_cvt_pk_bf16_f32 v{d}, v183, v182"); o.append(f"v_cvt_pk_bf16_f32 v{d+1}, v181, v180")
            o.append(f"ds_write_b64 v196, v[{d}:{d+1}] offset:{c*136}")
        return o
    e("v_and_b32 v23, 31, v1\nv_lshrrev_b32 v24, 5, v1\nv_bfe_u32 v25, v1, 1, 3")
    e("s_lshl_b32 s8, s4, 13\nv_lshlrev_b32 v26, 7, v23\nv_add_u32 v26, s8, v26")
    for st in range(4):
        e(f"v_or_b32 v27, {2*st}, v24\nv_xor_b32 v27, v27, v25\nv_lshl_add_u32 v{5+st}, v27, 4, v26")
    e("v_bfe_u32 v23, v1, 4, 1\nv_bfe_u32 v25, v1, 2, 2\nv_lshl_or_b32 v26, v23, 2, v25")
    e("v_lshl_add_u32 v27, v24, 3, v25\nv_lshlrev_b32 v27, 8, v27\nv_lshl_add_u32 v27, v23, 14, v27\nv_and_b32 v28, 3, v1\nv_lshl_add_u32 v27, v28, 3, v27")
    e(f"v_add_u32 v27, {WRING}, v27")
    for j in range(2):
        e(f"s_lshl_b32 s8, s5, 1\ns_add_u32 s8, s8, {j}\nv_xor_b32 v28, s8, v26\nv_lshl_add_u32 v{254+j}, v28, 5, v27")
    def reads(s):
        p = s // 4; st = s % 4; f = FRG[s % 4]; out = []
        for j in range(2):
            for t in range(2):
                out.append(f"ds_read_b64_tr_b16 v[{f+4*j+2*t}:{f+4*j+2*t+1}], v{10+j} offset:{(16*st + 4*t)*256}")
            out.append(f"ds_read_b128 v[{f+8+4*j}:{f+11+4*j}], v{5+st} offset:{XRING + (p % 3)*16384 + j*4096}")
        return out
    def mfmas(s):
        f = FRG[s % 4]; out = []
        for j in range(2):
            for t in range(2):
                C = vr(g1acc(j, t), 16)
                out.append(f"v_mfma_f32_32x32x16_bf16 {C}, {vr(f+4*j, 4)}, {vr(f+8+4*t, 4)}, {C if s > 0 else 0}")
        return out
    def ha_dma():
        o = ["\n".join([
            "s_lshl_b32 s9, s2, 1\ns_add_u32 s9, s9, s4\ns_lshl_b32 s9, s9, 12",
            f"s_add_u32 s{S_T0}, s24, s9\ns_addc_u32 s{S_T0+1}, s25, 0\ns_mov_b32 s{S_T0+2}, 4096\ns_mov_b32 s{S_T0+3}, 0x20000",
            "s_lshl_b32 s10, s5, 10",
            f"s_mul_i32 s11, s4, {HREG}\ns_add_u32 s11, s11, {L_HA}",
            "v_subrev_u32 v14, 256, v12"])]
        o.append((f"s_add_u32 m0, s11, s10\nv_add_u32 v15, s10, v14\nbuffer_load_dwordx4 v15, {srd(S_T0)}, 0 offen lds", "HA"))
        o.append((f"s_add_u32 m0, s11, 4096\nv_add_u32 v15, 4096, v14\nbuffer_load_dwordx4 v15, {srd(S_T0)}, 0 offen lds", "HA"))
        return o
    def stats_ops(p): return [], []
    e("s_and_b32 s8, s2, 7\ns_lshr_b32 s9, s2, 3\ns_mul_hi_u32 s10, s9, 0x24924925")
    e("s_mul_i32 s11, s10, 7\ns_sub_u32 s93, s9, s11\ns_lshl_b32 s92, s8, 2\ns_add_u32 s92, s92, s10")
    e(f"s_mul_i32 s8, s93, {O.rs}\ns_add_u32 s8, s8, s3\ns_and_b32 s8, s8, 7\ns_mul_i32 s95, s8, 200704\ns_lshl_b32 s9, s93, 7\ns_add_u32 s95, s95, s9")
    e("v_mul_u32_u24 v9, 896, v20\nv_lshl_add_u32 v9, v21, 4, v9\nv_bfe_u32 v23, v1, 4, 1\nv_lshlrev_b32 v23, 6, v23\nv_xor_b32 v9, v23, v9")
    e(f"v_and_b32 v238, 15, v1\nv_lshlrev_b32 v238, 4, v238\ns_lshl_b32 s8, s6, 11\ns_lshl_b32 s9, s3, 8\ns_add_u32 s8, s8, s9\ns_add_u32 s98, s8, {WS_ST}") if False else None
    e(f"v_lshrrev_b32 v23, 7, v0\nv_mul_u32_u24 v23, {UREG - 2048}, v23\nv_lshl_add_u32 v237, v0, 4, v23\nv_add_u32 v237, {L_UB + 4096}, v237")
    e(f"s_lshr_b32 s8, s3, 2\ns_mul_i32 s8, s8, 14336\ns_lshl_b32 s9, s7, 10\ns_add_u32 s8, s8, s9\ns_and_b32 s9, s3, 3\ns_lshl_b32 s9, s9, 8\ns_add_u32 s8, s8, s9\ns_add_u32 s68, s8, {WS_CS}")
    e("v_lshlrev_b32 v236, 3, v1\nv_and_b32 v236, 255, v236")
    def treads(s): return [[r, ("R", s)] for r in reads(s)]
    kvc = kv_compute()
    def u_dma():
        return ["\n".join([
            "s_lshl_b32 s9, s2, 1\ns_lshr_b32 s10, s3, 2\ns_add_u32 s9, s9, s10\ns_lshl_b32 s9, s9, 12",
            f"s_add_u32 s{S_T0}, s40, s9\ns_addc_u32 s{S_T0+1}, s41, 0\ns_mov_b32 s{S_T0+2}, 4096\ns_mov_b32 s{S_T0+3}, 0x20000",
            f"s_mul_i32 s10, s5, {UREG}\ns_lshl_b32 s11, s4, 11\ns_add_u32 s10, s10, s11\ns_add_u32 s10, s10, {L_UB}",
            "s_and_b32 s9, s5, 1\ns_lshl_b32 s9, s9, 2\ns_sub_u32 s9, 4, s9\ns_add_u32 s11, s11, s9",
            "v_lshrrev_b32 v14, 4, v1\ns_lshl_b32 s9, s4, 3\nv_or_b32 v14, s9, v14\nv_lshlrev_b32 v14, 4, v14\nv_xor_b32 v14, v14, v12\nv_add_u32 v14, s11, v14"]),
            (f"s_mov_b32 m0, s10\nv_xor_b32 v15, 64, v14\nbuffer_load_dwordx4 v14, {srd(S_T0)}, 0 offen sc1 lds", "U"),
            (f"s_add_u32 m0, s10, 1024\nv_add_u32 v15, 1024, v15\nbuffer_load_dwordx4 v15, {srd(S_T0)}, 0 offen sc1 lds", "U")]
    STL = f"s_lshl_b32 s8, s6, 11\ns_lshl_b32 s9, s3, 8\ns_add_u32 s8, s8, s9\ns_add_u32 s8, s8, {WS_ST}\nbuffer_load_dwordx4 v[240:243], v238, {srd(S_WS)}, s8 offen sc1"
    CSL = f"buffer_load_dwordx2 v[234:235], v236, {srd(S_WS)}, s68 offen sc1"
    e("v_and_b32 v238, 15, v1\nv_lshlrev_b32 v238, 4, v238")
    K = O.kd
    def tok_load():
        L = a.label("Ltk")
        return f"s_cmp_lg_u32 s3, 0\ns_cbranch_scc1 {L}\nbuffer_load_dword v197, off, {srd(S_DBG)}, 0 sc1\n{L}:"
    for p in range(7):
        need = [("C", p)]
        if p == 1 + K: need += ["KVL"]
        if p == 4 + K: need += ["KVS"]
        a.wait_vm(need, " lgkmcnt(0)")
        a.lq = []
        e("s_barrier")
        a.stamp(1 + p)
        e(f"v_add_u32 v10, {(p % 3)*32768}, v254\nv_add_u32 v11, {(p % 3)*32768}, v255")
        exA = []; exB = []; exV = []
        if 1 <= p <= 4: exA = dma_x(p + 2) + dma_w(p + 2)
        s0 = 4*p
        post = {}
        if p == 0: exB = ([] if O.kv0 else kv_loads()) + [tok_load()]
        if p == 1 + K: exV = kvc
        if p == O.wtp and O.touch: exB = exB + [w2_touch()]
        if p == O.gtp and O.gt: exB = exB + g1_touch()
        if p == O.skp: exB = exB + [sk_touch()]
        if p == 2 + K: post[3] = "KVST"
        if p == 3: post[1] = "TOKEN"
        if p == 3 + K: exB = ha_dma()
        if p == 4: post[2] = "TOKRD"
        if p == 4 + K: post[3] = "FK"
        if p == 5:
            e(f"s_lshr_b32 s94, s2, 5\ns_lshl_b32 s94, s94, 7\ns_and_b32 s8, s2, 3\ns_lshl_b32 s8, s8, 10\ns_add_u32 s94, s94, s8\ns_add_u32 s94, s94, {WS_FK}")
            exA = [(CSL, "CSL"), (STL, "CSL")] + sum([w2_dma(k, SETA[k]) for k in range(3)], [])
        if p == 6:
            post[O.chk] = "CHK"
            Lk_ = a.label("Lpk")
            exA = [f"s_cmp_lg_u32 s3, 0\ns_cbranch_scc1 {Lk_}\nv_and_b32 v14, 124, v13\n" + poll_ins(15, 14, 94) + f"\n{Lk_}:", "v_mov_b32 v228, 0\nv_mov_b32 v229, 0\nv_mov_b32 v230, 0\nv_mov_b32 v231, 0\nds_write_b128 v237, v[228:231]", f"v_mov_b32 v232, {L_LF + 128}\nds_write_b32 v232, v228"] + w2_dma(3, PX2)
        if p == 0:
            for r in treads(0) + treads(1): x(r)
            slots = [[] for _ in range(8)]
            mm = mfmas(0) + mfmas(1)
            rd = treads(2) + treads(3)
            for i in range(4): slots[i] += rd[3*i:3*i+3]
            for i, f_ in enumerate(exB): slots[i*8//len(exB)].append(f_)
            a.wait_l(("R", 0))
            for i, m in enumerate(mm):
                if i == 4: a.wait_l(("R", 1))
                x(m)
                for f_ in slots[i]: x(f_)
        else:
            mm = mfmas(s0-2) + mfmas(s0-1) + mfmas(s0) + mfmas(s0+1)
            slots = [[] for _ in range(16)]
            if p == 4: slots[0] += [f"v_mov_b32 v198, {L_LF + 96}", ["ds_read_b32 v197, v198", "TK"]]
            if p == 2 + K: slots[0] += [["ds_read_b64 v[144:145], v202", "KB"], ["ds_read_b64 v[146:147], v202 offset:8", "KB"]]
            rd = treads(s0) + treads(s0+1)
            for i in range(6): slots[i] += rd[2*i:2*i+2]
            rd = treads(s0+2)
            for i in range(3): slots[6+i] += rd[2*i:2*i+2]
            rd = treads(s0+3)
            for i in range(3): slots[9+i] += rd[2*i:2*i+2]
            startA = 4 if p == 2 + K else 0
            for i, f_ in enumerate(exA): slots[startA + i*((16 if p == 5 else 12)-startA)//max(1, len(exA))].append(f_)
            for i, f_ in enumerate(exV): slots[i*16//len(exV)].append(f_)
            for i, f_ in enumerate(exB): slots[(4 if p == 5 else 12) + i*4//max(1, len(exB))].append(f_)
            for i, m in enumerate(mm):
                if i == 8: a.wait_l(("R", s0))
                if i == 12: a.wait_l(("R", s0+1))
                x(m)
                if post.get(i) == "KVST":
                    a.wait_l("KB")
                    x((f"buffer_store_dwordx4 v[144:147], v203, {srd(S_WS)}, s15 offen sc1", "KVS"))
                if post.get(i) == "TOKEN":
                    L = a.label("Ltk2")
                    e(f"s_cmp_lg_u32 s3, 0\ns_cbranch_scc1 {L}")
                    token_get(a, 197)
                    e(f"v_mov_b32 v198, {L_LF + 96}\nds_write_b32 v198, v197")
                    e(f"{L}:")
                if post.get(i) == "TOKRD":
                    a.wait_l("TK")
                    e(f"v_readfirstlane_b32 s{S_TOK}, v197")
                if post.get(i) == "FK":
                    L = a.label("Lnf")
                    e(f"s_cmp_lg_u32 s3, 0\ns_cbranch_scc1 {L}")
                    e(f"s_lshl_b32 s8, s43, 2\ns_add_u32 s8, s8, {WS_FK}\nv_mov_b32 v14, s{S_TOK}\nv_and_b32 v15, 3, v1\nv_lshlrev_b32 v15, 10, v15")
                    e(f"buffer_store_dword v14, v15, {srd(S_WS)}, s8 offen sc1")
                    e(f"{L}:")
                if post.get(i) == "CHK":
                    a.wait_vm(["CSL"])
                    Lchk = a.label("Lcs"); Lok = a.label("Lcsok")
                    e("s_mov_b32 s10, 0")
                    e(f"{Lchk}:")
                    e(f"v_cmp_ne_u32 vcc, s{S_TOK}, v235\nv_cmp_ne_u32 s[8:9], s{S_TOK}, v242\ns_or_b64 vcc, vcc, s[8:9]\ns_cbranch_vccz {Lok}")
                    e(f"s_add_u32 s10, s10, 1\ns_cmp_gt_u32 s10, {O.spin}\ns_cbranch_scc1 {Lok}")
                    e(f"s_sleep 8\n{CSL}\n{STL}\ns_waitcnt vmcnt(0)\ns_branch {Lchk}")
                    e(f"{Lok}:")
                    x(f"s_lshl_b32 s8, s3, 7\ns_add_u32 s9, s8, {L_C2}\nv_lshrrev_b32 v236, 1, v236\nv_add_u32 v236, s9, v236\nds_write_b32 v236, v234")
                    x(f"s_add_u32 s9, s8, {L_ST}\nv_lshrrev_b32 v238, 1, v238\nv_add_u32 v238, s9, v238\nds_write_b64 v238, v[240:241]")
                for f_ in slots[i]: x(f_)
    Lk2 = a.label("Lpk2")
    e(f"s_cmp_lg_u32 s3, 0\ns_cbranch_scc1 {Lk2}")
    e("s_waitcnt vmcnt(2)")
    poll_check(a, 15, 14, 94, 32)
    e(f"{Lk2}:")
    e("s_waitcnt lgkmcnt(0)")
    e("s_barrier")
    a.stamp(21)
    e("v_lshrrev_b32 v2, 5, v1\nv_bfe_u32 v3, v1, 2, 2\nv_lshl_add_u32 v5, v2, 2, v3\nv_lshlrev_b32 v5, 7, v5")
    e("v_bfe_u32 v3, v1, 4, 1\nv_lshl_add_u32 v5, v3, 5, v5\nv_and_b32 v3, 3, v1\nv_lshl_add_u32 v5, v3, 3, v5")
    e("v_bfe_u32 v3, v1, 3, 1\nv_lshl_add_u32 v5, v3, 6, v5")
    e(f"s_add_u32 s8, s91, {WRING}\nv_add_u32 v7, s8, v5\nv_add_u32 v5, s90, v5\nv_xor_b32 v6, 64, v5\nv_xor_b32 v8, 64, v7")
    mm = mfmas(26) + mfmas(27)
    a.wait_vm([("W2", 3)])
    a.interleave(mm[:4], sum([w2_tr(k, SETA[k]) for k in range(3)], []) + w2_tr(3, PX2), per=4)
    Lu2 = a.label("Lu2")
    e(f"s_cmp_ge_u32 s3, 4\ns_cbranch_scc1 {Lu2}")
    e("s_lshl_b32 s9, s2, 1\ns_add_u32 s9, s9, s5\ns_lshl_b32 s9, s9, 12")
    e(f"s_add_u32 s{S_T0}, s40, s9\ns_addc_u32 s{S_T0+1}, s41, 0\ns_mov_b32 s{S_T0+2}, 4096\ns_mov_b32 s{S_T0+3}, 0x20000")
    e(f"s_mul_i32 s10, s3, {UREG}\ns_add_u32 s10, s10, {L_UB}\ns_lshl_b32 s9, s4, 2\ns_sub_u32 s11, 4, s9")
    e("v_lshrrev_b32 v14, 4, v1\nv_lshlrev_b32 v14, 4, v14\nv_xor_b32 v14, v14, v12\nv_add_u32 v14, s11, v14")
    for i in range(4):
        e(f"s_add_u32 m0, s10, {i*1024}\nv_xor_b32 v15, {64*i}, v14\nv_add_u32 v15, {i*1024}, v15\nbuffer_load_dwordx4 v15, {srd(S_T0)}, 0 offen sc1 lds")
    e("s_lshl_b32 s10, s2, 1\ns_bfe_u32 s11, s3, 0x10001\ns_add_u32 s10, s10, s11\ns_lshl_b32 s10, s10, 1")
    e(f"buffer_load_ushort v0, off, {srd(S_SSMD)}, s10")
    e(f"{Lu2}:")
    a.interleave(mm[4:], sum([w2_dma(4+k, SETC[k]) for k in range(3)], []), per=2)
    e("s_waitcnt lgkmcnt(0)")
    a.w2epi = sum([w2_dma(7+k, SETA[k]) for k in range(3)], []) + w2_dma(10, PX2)
    a.stamp(8)
    g1_epilogue(a)
    a.stamp(9)
    conv_loop(a)
    a.stamp(10)
    gemm2(a)

def pc_base(pc):
    kind, slot, idx = pc
    return ("s90", XRING + slot*16384) if kind == "X" else ("s91", WRING + slot*32768 + idx*2048)
def w2_dma(ks, pc):
    sreg, off = pc_base(pc)
    return [(f"s_add_u32 m0, {sreg}, {off + h*1024}\ns_add_u32 s8, s95, {(2*ks + h)*7168}\nbuffer_load_dwordx4 v9, {srd(S_W2)}, s8 offen lds", ("W2", ks)) for h in range(2)]
def w2_tr(ks, pc):
    kind, slot, idx = pc
    r = W2R + 8*ks
    off = XRING + slot*16384 if kind == "X" else slot*32768 + idx*2048
    b = 5 if kind == "X" else 7
    return [f"ds_read_b64_tr_b16 v[{r+4*mt+2*t}:{r+4*mt+2*t+1}], v{b+mt} offset:{off + t*1024}" for mt in range(2) for t in range(2)]
SETA = [("X", 1, 0), ("W", 1, 0), ("W", 1, 1)]
SETC = [("X", 0, 0), ("W", 0, 0), ("W", 0, 1)]
PX2 = ("X", 2, 0)

def g1_epilogue(a):
    e = a.e; x = a.x
    a.c("--- GEMM1 epilogue")
    if O.ep: e("s_setprio 2")
    T = 80
    e("v_lshrrev_b32 v2, 5, v1\nv_and_b32 v3, 31, v1")
    e(f"s_lshl_b32 s8, s5, 7\ns_add_u32 s8, s8, {L_C2}\nv_lshl_add_u32 v4, v2, 4, s8")
    for j in range(2):
        for mat in range(2):
            for q in range(2):
                r = T + ((j*2 + mat)*2 + q)*4
                e(f"ds_read_b128 v[{r}:{r+3}], v4 offset:{mat*512 + j*64 + q*32}")
    e(f"s_lshl_b32 s8, s4, 9\ns_add_u32 s8, s8, {L_ST}\nv_lshl_add_u32 v3, v3, 3, s8")
    for t in range(2): e(f"ds_read_b64 v[{T+32+2*t}:{T+33+2*t}], v3 offset:{t*256}")
    e(f"s_mov_b32 s11, {fbits(-LOG2E)}")
    e(f"s_lshl_b32 s8, s6, 2\ns_lshl_b32 s9, s4, 1\ns_add_u32 s8, s8, s9\ns_mul_i32 s12, s8, {HSTR}\ns_lshl_b32 s9, s7, 13\ns_add_u32 s12, s12, s9\ns_lshl_b32 s9, s5, 11\ns_add_u32 s12, s12, s9")
    e(f"s_add_u32 s12, s12, {WS_H}\ns_add_u32 s13, s12, {HSTR}")
    e("s_waitcnt lgkmcnt(0)")
    for t in range(2): e(f"v_mul_f32 v{T+36+t}, s11, v{T+33+2*t}")
    kk = 0
    E = T + 40
    for j in range(2):
        for t in range(2):
            A = g1acc(j, t); mean = T + 32 + 2*t; c1 = T + 36 + t
            cg = T + (j*2)*8; cu = cg + 8
            ops = []
            if O.pk:
                c1p = T + 36; sel = "op_sel_hi:[0,1]" if t == 0 else "op_sel:[1,0] op_sel_hi:[1,1]"
                P2 = lambda r: f"v[{r}:{r+1}]"
                for r in range(0, 8, 2): ops.append(f"v_pk_fma_f32 {P2(A+r)}, {P2(mean)}, {P2(cg+r)}, {P2(A+r)} op_sel_hi:[0,1,1] neg_lo:[1,0,0] neg_hi:[1,0,0]")
                for r in range(0, 8, 2): ops.append(f"v_pk_mul_f32 {P2(E+r)}, {P2(c1p)}, {P2(A+r)} {sel}")
                for r in range(0, 8, 2): ops += [f"v_exp_f32 v{E+r}, v{E+r}", f"v_exp_f32 v{E+r+1}, v{E+r+1}", f"v_pk_fma_f32 {P2(A+8+r)}, {P2(mean)}, {P2(cu+r)}, {P2(A+8+r)} op_sel_hi:[0,1,1] neg_lo:[1,0,0] neg_hi:[1,0,0]"]
                for r in range(0, 8, 2): ops.append(f"v_pk_add_f32 {P2(E+r)}, {P2(E+r)}, 1.0 op_sel_hi:[1,0]")
                for r in range(0, 8, 2): ops += [f"v_rcp_f32 v{E+r}, v{E+r}", f"v_rcp_f32 v{E+r+1}, v{E+r+1}", f"v_pk_mul_f32 {P2(A+r)}, {P2(A+r)}, {P2(A+8+r)}"]
                for r in range(0, 8, 2): ops.append(f"v_pk_mul_f32 {P2(A+r)}, {P2(A+r)}, {P2(E+r)}")
            else:
                for r in range(8): ops.append(f"v_fma_f32 v{A+r}, -v{mean}, v{cg+r}, v{A+r}")
                for r in range(8): ops.append(f"v_mul_f32 v{E+r}, v{c1}, v{A+r}")
                for r in range(8): ops += [f"v_exp_f32 v{E+r}, v{E+r}", f"v_fma_f32 v{A+8+r}, -v{mean}, v{cu+r}, v{A+8+r}"]
                for r in range(8): ops.append(f"v_add_f32 v{E+r}, 1.0, v{E+r}")
                for r in range(8): ops += [f"v_rcp_f32 v{E+r}, v{E+r}", f"v_mul_f32 v{A+r}, v{A+r}, v{A+8+r}"]
                for r in range(8): ops.append(f"v_mul_f32 v{A+r}, v{A+r}, v{E+r}")
            for q in range(4): ops.append(f"v_cvt_pk_bf16_f32 v{A+8+q}, v{A+2*q}, v{A+2*q+1}")
            for i, o_ in enumerate(ops):
                e(o_)
                if i % 5 == 4 and a.w2epi: x(a.w2epi.pop(0))
            x((f"buffer_store_dwordx4 v[{A+8}:{A+11}], v12, {srd(S_WS)}, s{12+t} offen offset:{j*1024} sc1", "HS"))
    e("s_lshl_b32 s8, s6, 1\ns_add_u32 s8, s8, s4\ns_lshl_b32 s8, s8, 10\ns_lshl_b32 s9, s7, 2\ns_add_u32 s9, s9, s5\ns_mul_hi_u32 s10, s9, 0x24924925\ns_mul_i32 s11, s10, 100\ns_lshl_b32 s9, s9, 2\ns_add_u32 s8, s8, s9\ns_add_u32 s8, s8, s11")
    e(f"s_add_u32 s8, s8, {WS_FH}")
    e(f"v_mov_b32 v2, s{S_TOK}\ns_mov_b32 s12, s8")
    a.stamp(18)
    a.wait_vm([("W2", 10)])
    a.stamp(19)
    for k in range(3):
        for o_ in w2_tr(4+k, SETC[k]): e(o_)
    for k in range(3):
        for o_ in w2_tr(7+k, SETA[k]): e(o_)
    for o_ in w2_tr(10, PX2): e(o_)
    e("s_waitcnt vmcnt(0) lgkmcnt(0)")
    a.stamp(20)
    a.vm_reset()
    e(f"buffer_store_dword v2, off, {srd(S_WS)}, s12 sc1")
    for k in range(3):
        for z in w2_dma(11+k, SETC[k]): e(z[0])
    e(f"s_lshl_b32 s8, s3, 2\ns_add_u32 s8, s8, {L_LF + 64}\nv_mov_b32 v3, s8\nds_write_b32 v3, v2")

CR = 16; CS_ = 52; CACC = 104; CB = [88, 92, 96, 100]
def conv_loop(a):
    e = a.e
    a.c("--- conv loop")
    if O.ep: e("s_setprio 0")
    e(f"s_mul_i32 s8, s93, {O.rs}\ns_add_u32 s8, s8, s3\ns_and_b32 s8, s8, 7\ns_lshl_b32 s94, s92, 10\ns_lshl_b32 s8, s8, 7\ns_add_u32 s94, s94, s8\ns_add_u32 s94, s94, {WS_FH - 512}\nv_and_b32 v14, 28, v13\nv_bfe_u32 v15, v1, 3, 1\nv_xor_b32 v15, 1, v15\nv_lshl_or_b32 v14, v15, 9, v14")
    Lskip = a.label("Lnoconv"); Lagain = a.label("Lconv2")
    Lup0 = a.label("Lup0")
    e(f"s_cmp_lt_u32 s3, 4\ns_cbranch_scc1 {Lup0}")
    e(f"s_branch {Lskip}")
    e(f"{Lup0}:")
    e("s_mov_b32 s71, s3")
    e(f"{Lagain}:")
    e("s_bfe_u32 s8, s3, 0x10001\ns_and_b32 s9, s3, 1")
    e("s_lshl_b32 s11, s9, 9\ns_add_u32 s11, s11, 1024\ns_cmp_ge_u32 s71, 4\ns_cselect_b32 s11, s11, 0")
    e("s_cselect_b32 s12, 7, 8")
    e("s_cselect_b64 s[88:89], -1, 0")
    t = 120
    e(f"v_and_b32 v{t}, 15, v1\nv_lshrrev_b32 v{t+1}, 4, v1")
    e(f"v_lshlrev_b32 v{t+2}, s12, v{t+1}\nv_add_u32 v{t+2}, s11, v{t+2}")
    e(f"v_lshl_add_u32 v2, v{t}, 3, v{t+2}\nv_lshlrev_b32 v2, 1, v2")
    e(f"s_mul_i32 s10, s8, {HREG}\ns_add_u32 s10, s10, {L_HA}\nv_add_u32 v2, s10, v2")
    e(f"v_or_b32 v{t+3}, 8, v{t}\nv_cmp_gt_u32 vcc, 8, v{t}\nv_mov_b32 v{t+5}, s9\ns_nop 0")
    e(f"v_cndmask_b32 v{t+4}, 0, 1, vcc")
    e(f"v_cndmask_b32 v{t+3}, v{t}, v{t+3}, s[88:89]\nv_cndmask_b32 v{t+4}, v{t+5}, v{t+4}, s[88:89]")
    e(f"v_sub_u32 v{t+3}, 15, v{t+3}\nv_lshrrev_b32 v{t+5}, 7, v{t+2}\nv_add_u32 v{t+3}, v{t+3}, v{t+5}")
    e(f"v_mul_u32_u24 v{t+4}, {UREG}, v{t+4}")
    e(f"s_mul_i32 s10, s8, {2*UREG}\ns_add_u32 s10, s10, {L_UB}\nv_add_u32 v{t+4}, s10, v{t+4}")
    for k, reg in ((0, 3), (1, 4)):
        e(f"v_add_u32 v{t+5}, {k}, v{t+3}\nv_and_b32 v{t+6}, 15, v{t+5}\nv_lshlrev_b32 v{t+5}, 8, v{t+5}\nv_lshl_or_b32 v{t+5}, v{t+6}, 4, v{t+5}\nv_add_u32 v{reg}, v{t+4}, v{t+5}")
    e("s_mov_b64 vcc, s[88:89]")
    R = CR; S = CS_
    queue = []
    NB = 9
    def rdA(blk):
        it, q = divmod(blk, 8)
        outs = []
        if q == 0 and it > 0: outs.append(8)
        e(f"ds_read_b128 v[{R+4*q}:{R+4*q+3}], v2 offset:{16*blk}"); queue.append(("A", it, q))
    def rdA8(it):
        e(f"ds_read_b128 v[{R+32}:{R+35}], v2 offset:{16*(8*it+8)}"); queue.append(("A", it, 8))
    def rdB(st):
        b = CB[st % 4]; tmp = 10 + (st % 2)
        e(f"v_xor_b32 v{tmp}, {16*(st % 16)}, v{3 if st < 16 else 4}\nds_read_b128 v[{b}:{b+3}], v{tmp}"); queue.append(("B", st))
    def wait_for(tags):
        idx = max([i for i, x_ in enumerate(queue) if x_ in tags], default=-1)
        if idx >= 0:
            e(f"s_waitcnt lgkmcnt({len(queue) - 1 - idx})")
            del queue[:idx+1]
    w2 = []
    w2l = []
    w2late = [z[0] for k in range(3) for z in w2_dma(11+k, SETC[k])]
    def al(k): return f"v_alignbit_b32 v{S+k}, v{R+k}, v{R+k-1}, 16"
    def sA(blk):
        it, q = divmod(blk, 8)
        return (f"ds_read_b128 v[{R+4*q}:{R+4*q+3}], v2 offset:{16*blk}", ("A", it, q))
    def sA8(it): return (f"ds_read_b128 v[{R+32}:{R+35}], v2 offset:{16*(8*it+8)}", ("A", it, 8))
    def sB(st):
        b = CB[st % 4]; tmp = 10 + (st % 2)
        return (f"ds_read_b128 v[{b}:{b+3}], v{tmp}", ("B", st))
    def xB(st): return f"v_xor_b32 v{10 + (st % 2)}, {16*(st % 16)}, v{3 if st < 16 else 4}"
    def L_(item): e(item[0]); queue.append(item[1])
    rdA(0); rdA(1); rdB(0); rdA(2); rdB(1); rdA(3); rdB(2); rdA(4)
    wait_for([("A", 0, 0), ("A", 0, 1)])
    for k in range(2, 8): e(al(k))
    Lout = a.label("Lconvout")
    for st in range(32):
        it, q = divmod(st, 8)
        if q < 7: needA = [("A", it, q+2)] ; nxt = [al(4*(q+1) + 4 + i) for i in range(4)]
        else: needA = [("A", it+1, 0), ("A", it+1, 1)] ; nxt = [al(k) for k in range(2, 8)]
        if st == 31: needA = []; nxt = []
        wait_for(needA + [("B", st)])
        lds = []
        if q <= 2: lds.append(sA(8*it + q + 5))
        elif q == 3: lds.append(sA8(it))
        elif it < 3:
            if q == 4: lds += [sA(8*it + 8), sA(8*it + 9)]
            else: lds.append(sA(8*it + 8 + q - 3))
        Bq = vr(CB[st % 4], 4)
        def C(i): return vr(CACC + 4*i, 4)
        def Cin(i): return C(i) if st else "0"
        e(f"v_mfma_f32_16x16x32_bf16 {C(0)}, {vr(S+4*q+2,4)}, {Bq}, {Cin(0)}")
        if st + 3 < 32: e(xB(st + 3))
        for z in lds: L_(z)
        e(f"v_mfma_f32_16x16x32_bf16 {C(2)}, {vr(S+4*q+4,4)}, {Bq}, {Cin(2)}")
        for z in nxt[:2]: e(z)
        e(f"v_mfma_f32_16x16x32_bf16 {C(1)}, {vr(R+4*q+2,4)}, {Bq}, {Cin(1)}")
        for z in nxt[2:4]: e(z)
        e(f"v_mfma_f32_16x16x32_bf16 {C(3)}, {vr(R+4*q+4,4)}, {Bq}, {Cin(3)}")
        for z in nxt[4:]: e(z)
        if st + 3 < 32: L_(sB(st + 3))
        if st == 15:
            e(f"s_cbranch_vccnz {Lout}")
    e(f"{Lout}:")
    e("s_waitcnt lgkmcnt(0)")
    e(f"s_lshl_b32 s8, s71, 12\ns_add_u32 s8, s8, {L_YB2}")
    e("v_add_u32 v2, s8, v12")
    e("s_nop 5")
    for a2 in range(4): e(f"ds_write_b128 v2, {vr(CACC+4*a2,4)} offset:{a2*1024}")
    e(f"s_lshl_b32 s8, s71, 2\ns_add_u32 s8, s8, {L_LF}\nv_mov_b32 v2, s8\nv_mov_b32 v3, s{S_TOK}")
    e("ds_write_b32 v2, v3")
    e(f"s_cmp_ge_u32 s71, 4\ns_cbranch_scc1 {Lskip}")
    e("s_add_u32 s71, s71, 4")
    Lw = a.label("Luf"); Lok = a.label("Lufok")
    e(f"s_and_b32 s8, s3, 2\ns_lshl_b32 s8, s8, 2\ns_add_u32 s8, s8, {L_LF + 64}\nv_and_b32 v3, 1, v1\nv_lshl_add_u32 v3, v3, 2, s8\ns_lshl_b32 s8, s71, 2\ns_add_u32 s8, s8, {L_LF + 64}\nv_writelane_b32 v3, s8, 2\ns_mov_b32 s9, 0")
    e(f"{Lw}:")
    e("ds_read_b32 v4, v3\ns_waitcnt lgkmcnt(0)")
    e(f"v_cmp_ne_u32 vcc, s{S_TOK}, v4\ns_cbranch_vccz {Lok}")
    e(f"s_add_u32 s9, s9, 1\ns_cmp_lt_u32 s9, {O.spin*50}\ns_cbranch_scc1 {Lw}")
    e(f"{Lok}:")
    e(f"s_branch {Lagain}")
    e(f"{Lskip}:")

def conv_final(a):
    e = a.e
    a.c("--- conv finalize")
    Lw = a.label("Llf"); Lok = a.label("Llfok")
    e(f"v_and_b32 v2, 7, v1\nv_lshlrev_b32 v2, 2, v2\nv_add_u32 v2, {L_LF}, v2")
    e("s_mov_b32 s12, 0x33\ns_lshl_b32 s13, s5, 1\ns_lshl_b32 s12, s12, s13\ns_mov_b32 s9, 0")
    e(f"{Lw}:")
    e("ds_read_b32 v3, v2\ns_waitcnt lgkmcnt(0)")
    e(f"v_cmp_ne_u32 vcc, s{S_TOK}, v3\ns_and_b32 s8, vcc_lo, s12\ns_cbranch_scc0 {Lok}")
    e(f"s_add_u32 s9, s9, 1\ns_cmp_lt_u32 s9, {O.spin*50}\ns_cbranch_scc1 {Lw}")
    e(f"{Lok}:")
    a.stamp(11)
    e(f"s_lshl_b32 s8, s5, 13\ns_lshl_b32 s11, s4, 9\ns_add_u32 s8, s8, s11\ns_add_u32 s8, s8, {L_YB}")
    e("v_add_u32 v2, s8, v13\nv_subrev_u32 v3, 128, v2")
    JM = [0, 1, 4, 5]
    e("v_lshrrev_b32 v16, 2, v1\nv_and_b32 v17, 3, v1\nv_sub_u32 v18, 15, v16")
    e(f"s_mul_i32 s12, s5, {2*UREG}\ns_add_u32 s12, s12, {L_UB + UREG}")
    for rr in range(2):
        Y = 24 + 28*rr
        for b in range(2):
            for a2 in range(4):
                e(f"ds_read_b32 v{Y + JM[a2] + 2*b}, v2 offset:{b*4096 + a2*1024 + rr*256}")
        e(f"s_lshl_b32 s11, s4, 3\ns_sub_u32 s11, {15 - 4*rr}, s11")
        e(f"v_sub_u32 v19, s11, v17\nv_xor_b32 v19, v19, v18\nv_lshlrev_b32 v20, 8, v18\nv_lshl_add_u32 v19, v19, 4, v20\nv_add_u32 v19, s12, v19")
        e(f"ds_read_b128 v[{Y+24}:{Y+27}], v19")
    e("s_mov_b32 exec_lo, 0")
    for rr in range(2):
        Y = 24 + 28*rr
        for u in range(2):
            for b in range(2):
                for a2 in range(4):
                    e(f"ds_read_b32 v{Y + 8 + 8*u + JM[a2] + 2*b}, v{2 if b == 0 else 3} offset:{16384 + u*4096 + a2*1024 + rr*256}")
    e("s_waitcnt lgkmcnt(0)")
    for rr in range(2):
        Y = 24 + 28*rr
        for j in range(8): e(f"v_add_f32 v{Y+8+j}, v{Y+8+j}, v{Y+16+j}\nv_add_f32 v{Y+j}, v{Y+j}, v{Y+8+j}")
    e("s_mov_b32 exec_lo, -1")
    e(f"s_lshl_b32 s8, s3, 2\ns_add_u32 s8, s8, {L_LF + 48}\nv_mov_b32 v2, s8\nv_mov_b32 v3, s{S_TOK}\nds_write_b32 v2, v3")
    e("v_lshlrev_b32 v0, 16, v0")
    e(f"s_lshl_b32 s10, s2, 1\ns_add_u32 s10, s10, s5\ns_lshl_b32 s10, s10, 12\ns_lshl_b32 s11, s4, 7\ns_add_u32 s10, s10, s11\ns_add_u32 s10, s10, {WS_Y}")
    e("v_lshlrev_b32 v16, 8, v16\nv_lshl_add_u32 v16, v17, 4, v16")
    for rr in range(2):
        Y = 24 + 28*rr
        for q in range(4):
            e(f"v_lshlrev_b32 v{Y+8}, 16, v{Y+24+q}\nv_and_b32 v{Y+9}, s14, v{Y+24+q}")
            e(f"v_fmac_f32 v{Y+7-2*q}, v0, v{Y+8}\nv_fmac_f32 v{Y+6-2*q}, v0, v{Y+9}")
        for q in range(4): e(f"v_cvt_pk_bf16_f32 v{Y+12+q}, v{Y+2*q}, v{Y+2*q+1}")
        e(f"buffer_store_dwordx4 v[{Y+12}:{Y+15}], v16, {srd(S_WS)}, s10 offen offset:{rr*64} sc1")
    e("s_nop 1")

def gemm2(a):
    e = a.e; x = a.x
    a.c("=== GEMM2 (8-way K split, register streams) ===")
    AC = 16; HB = 80; ND = 8
    def hbuf(s): return s if s < 8 else (s - 6 if s < 12 else s - 12)
    Llo = a.label("Llo"); Lgo = a.label("Lgo")
    e(f"s_cmp_lt_u32 s3, 4\ns_cbranch_scc1 {Llo}")
    e(f"s_sleep {O.fhd}")
    e(poll_ins(15, 14, 94))
    e("s_waitcnt vmcnt(0)")
    for k in range(3):
        for o_ in w2_tr(11+k, SETC[k]): e(o_)
    poll_check(a, 15, 14, 94, 0x7f7f)
    e(f"s_lshl_b32 s8, s3, 2\ns_add_u32 s8, s8, {L_LF + 144 - 16}\nv_mov_b32 v2, s8\nv_mov_b32 v3, s{S_TOK}\nds_write_b32 v2, v3")
    e(f"s_branch {Lgo}")
    e(f"{Llo}:")
    e("s_waitcnt vmcnt(0)")
    for k in range(3):
        for o_ in w2_tr(11+k, SETC[k]): e(o_)
    conv_final(a)
    a.stamp(12)
    Lw4 = a.label("Llf4")
    e(f"s_lshl_b32 s8, s3, 2\ns_add_u32 s8, s8, {L_LF + 144}\nv_mov_b32 v2, s8\ns_mov_b32 s9, 0")
    e(f"{Lw4}:")
    e("ds_read_b32 v3, v2\ns_waitcnt lgkmcnt(0)")
    e(f"v_cmp_ne_u32 vcc, s{S_TOK}, v3\ns_cbranch_vccz {Lgo}")
    e(f"s_add_u32 s9, s9, 1\ns_cmp_lt_u32 s9, {O.spin*500}\ns_cbranch_scc1 {Lw4}")
    e(f"{Lgo}:")
    a.stamp(13)
    a.vm_reset()
    e(f"s_mul_i32 s8, s93, {O.rs}\ns_add_u32 s8, s8, s3\ns_and_b32 s8, s8, 7\ns_mul_i32 s9, s8, 14336\ns_mul_i32 s88, s92, {2*HSTR}\ns_add_u32 s88, s88, s9")
    e(f"s_add_u32 s88, s88, {WS_H}\ns_add_u32 s89, s88, {HSTR}")
    def hload(s):
        o = []
        for t in range(2):
            r = HB + ((s % ND)*2 + t)*4
            if s*1024 <= 4095: o.append((f"buffer_load_dwordx4 v[{r}:{r+3}], v12, {srd(S_WS)}, s{88+t} offen offset:{s*1024}{O.scl}", ("H", s)))
            else: o.append((f"s_add_u32 s8, s{88+t}, {s*1024}\nbuffer_load_dwordx4 v[{r}:{r+3}], v12, {srd(S_WS)}, s8 offen{O.scl}", ("H", s)))
        return o
    e("s_waitcnt lgkmcnt(0)")
    for s in range(ND):
        for z in hload(s): x(z)
    x((f"s_add_u32 m0, s91, {WRING}\ns_add_u32 s8, s88, 8192\n" + "\n".join(f"buffer_load_dwordx4 v12, {srd(S_WS)}, s8 offen offset:{i*1024}{O.scl} lds" for i in range(4)), "HL", 4))
    for hh in range(2):
        x((f"s_add_u32 m0, s90, {16384*(1+hh)}\ns_add_u32 s8, s89, {8192 + hh*2048}\n" + "\n".join(f"buffer_load_dwordx4 v12, {srd(S_WS)}, s8 offen offset:{i*1024}{O.scl} lds" for i in range(2)), "HL", 2))
    nbase = 0
    e(f"v_add_u32 v6, s90, v12\nv_add_u32 v4, s91, v12")
    e(f"s_lshl_b32 s94, s93, 7\ns_and_b32 s8, s92, 7\ns_lshl_b32 s8, s8, 10\ns_add_u32 s94, s94, s8\ns_add_u32 s94, s94, {WS_FY}\nv_and_b32 v14, 124, v13")
    a.lq = []
    def conv(s): return []
    Lpr = a.label("Lpr")
    if O.g2p: e(f"s_cmp_lt_u32 s3, 4\ns_cbranch_scc1 {Lpr}\ns_setprio 2\n{Lpr}:")
    for z in conv(0) + conv(1): x(z)
    e("v_lshrrev_b32 v0, 3, v1\nv_and_b32 v2, 7, v1\ns_lshl_b32 s8, s3, 3\nv_add_u32 v0, s8, v0")
    e("v_mul_u32_u24 v3, 896, v0\nv_lshl_add_u32 v3, v2, 4, v3")
    e("s_mul_i32 s43, s92, 57344\ns_lshl_b32 s9, s93, 7\ns_add_u32 s43, s43, s9")
    for s in range(14):
        if not (8 <= s < 12): a.wait_vm([("H", s)])
        else: a.wait_l(("HR", s))
        a.wait_l(("CV", s))
        if s == O.fys:
            L = a.label("Lfy")
            e(f"s_cmp_ge_u32 s3, 4\ns_cbranch_scc1 {L}")
            e(f"s_waitcnt vmcnt({len(a.vm) - nbase})")
            e(f"v_mov_b32 v15, {L_LF + 128}\nv_mov_b32 v7, 1\ns_mov_b64 exec, 1\nds_add_rtn_u32 v7, v15, v7\ns_mov_b64 exec, -1\ns_waitcnt lgkmcnt(0)")
            e(f"v_readfirstlane_b32 s8, v7\ns_cmp_lg_u32 s8, 3\ns_cbranch_scc1 {L}")
            e(f"s_lshl_b32 s8, s2, 2\ns_add_u32 s8, s8, {WS_FY}\nv_mov_b32 v15, s{S_TOK}\nv_and_b32 v7, 7, v1\nv_lshlrev_b32 v7, 10, v7")
            e(f"buffer_store_dword v15, v7, {srd(S_WS)}, s8 offen sc1")
            e(f"{L}:")
        cv = conv(s + 2) if s + 2 < 14 else []
        k = 0
        for mt in range(2):
            for t in range(2):
                C = vr(AC + (mt*2 + t)*16, 16)
                e(f"v_mfma_f32_32x32x16_bf16 {C}, {vr(W2R + 8*s + 4*mt, 4)}, {vr(HB + (hbuf(s)*2 + t)*4, 4)}, {C if s else 0}")
                for z in cv[2*k:2*k+2]: x(z)
                k += 1
        if s < 2:
            for t in range(2):
                r = HB + (s*2 + t)*4
                x((f"s_add_u32 s8, s{88+t}, {(12+s)*1024}\nbuffer_load_dwordx4 v[{r}:{r+3}], v12, {srd(S_WS)}, s8 offen{O.scl}", ("H", 12+s)))
        if s == 2:
            x((f"buffer_load_dwordx4 v[8:11], v3, {srd(S_X)}, s43 offen", "E"))
            x((f"s_lshl_b32 s70, s92, 10\ns_add_u32 s70, s70, {WS_ST}\nv_lshlrev_b32 v5, 4, v0\nbuffer_load_dwordx4 v[156:159], v5, {srd(S_WS)}, s70 offen sc1", "E"))
        if 5 <= s < 9:
            if s == 5: a.wait_vm(["HL"])
            for t in range(2):
                r = HB + ((s-3)*2 + t)*4
                x([f"ds_read_b128 v[{r}:{r+3}], v4 offset:{WRING + (s-5)*1024}" if t == 0 else f"ds_read_b128 v[{r}:{r+3}], v6 offset:{16384*(1+(s-5)//2) + ((s-5)%2)*1024}", ("HR", s+3)])
    a.stamp(14)
    Llow = a.label("Llow"); Lj = a.label("Lj")
    e(f"s_cmp_lt_u32 s3, 4\ns_cbranch_scc1 {Llow}")
    Lw3 = a.label("Llf3"); Lok3 = a.label("Llf3ok")
    e(f"v_and_b32 v80, 3, v1\nv_lshlrev_b32 v80, 2, v80\nv_add_u32 v80, {L_LF + 48}, v80\ns_mov_b32 s9, 0")
    e(f"{Lw3}:")
    e("ds_read_b32 v81, v80\ns_waitcnt lgkmcnt(0)")
    e(f"v_cmp_ne_u32 vcc, s{S_TOK}, v81\ns_cbranch_vccz {Lok3}")
    e(f"s_add_u32 s9, s9, 1\ns_cmp_lt_u32 s9, {O.spin*50}\ns_cbranch_scc1 {Lw3}")
    e(f"{Lok3}:")
    e(f"s_lshl_b32 s8, s3, 14\ns_add_u32 s8, s8, {81920 - 65536}\nv_add_u32 v80, s8, v12\ns_nop 7")
    for i in range(16): e(f"ds_write_b128 v80, {vr(AC + 4*i, 4)} offset:{i*1024}")
    e(f"s_lshl_b32 s8, s3, 2\ns_add_u32 s8, s8, {L_LF + 16}\nv_mov_b32 v80, s8\nv_mov_b32 v81, s{S_TOK}\nds_write_b32 v80, v81")
    e(f"s_cmp_lg_u32 s3, 4\ns_cbranch_scc1 {Lj}")
    Lchk = a.label("Lfyc"); Lok = a.label("Lfyok")
    e("s_mov_b32 s9, 0")
    e(f"{Lchk}:")
    e(f"s_sleep 12\nbuffer_load_dword v144, v14, {srd(S_WS)}, s94 offen sc1\ns_waitcnt vmcnt(0)")
    e(f"v_cmp_ne_u32 vcc, s{S_TOK}, v144\ns_cbranch_vccz {Lok}")
    e(f"s_add_u32 s9, s9, 1\ns_cmp_gt_u32 s9, {O.spin}\ns_cbranch_scc1 {Lok}")
    e(f"s_branch {Lchk}")
    e(f"{Lok}:")
    e("v_lshrrev_b32 v15, 3, v1\nv_lshlrev_b32 v15, 12, v15\nv_lshl_add_u32 v15, v2, 4, v15")
    e(f"s_lshl_b32 s9, s93, 18\ns_lshl_b32 s10, s92, 7\ns_add_u32 s9, s9, s10\ns_add_u32 s9, s9, {WS_Y}")
    for i in range(8):
        e(f"s_mov_b32 m0, {L_YT + i*1040}\ns_add_u32 s10, s9, {i*32768}\nbuffer_load_dwordx4 v15, {srd(S_WS)}, s10 offen sc1 lds")
    e(f"s_branch {Lj}")
    e(f"{Llow}:")
    Lw = a.label("Llf2"); Lok = a.label("Llf2ok")
    e(f"s_lshl_b32 s8, s3, 2\ns_add_u32 s8, s8, {L_LF + 32}\nv_mov_b32 v4, s8\ns_mov_b32 s9, 0")
    e(f"{Lw}:")
    e("ds_read_b32 v5, v4\ns_waitcnt lgkmcnt(0)")
    e(f"v_cmp_ne_u32 vcc, s{S_TOK}, v5\ns_cbranch_vccz {Lok}")
    e(f"s_add_u32 s9, s9, 1\ns_cmp_lt_u32 s9, {O.spin*50}\ns_cbranch_scc1 {Lw}")
    e(f"{Lok}:")
    e("s_lshl_b32 s8, s3, 14\ns_add_u32 s8, s8, 81920\nv_add_u32 v4, s8, v12")
    for i in range(16): e(f"ds_read_b128 v[{80+4*i}:{83+4*i}], v4 offset:{i*1024}")
    for i in range(16):
        e(f"s_waitcnt lgkmcnt({15-i})")
        for r in range(4): e(f"v_add_f32 v{AC+4*i+r}, v{AC+4*i+r}, v{80+4*i+r}")
    e(f"{Lj}:")
    e("s_waitcnt lgkmcnt(0)")
    a.stamp(16)
    e("s_barrier")
    Lnw = a.label("Lnw")
    e(f"s_cmp_ge_u32 s3, 4\ns_cbranch_scc1 {Lnw}")
    e("v_and_b32 v80, 31, v1\nv_lshrrev_b32 v81, 5, v1\nv_mul_u32_u24 v80, 272, v80\nv_lshl_add_u32 v80, v81, 4, v80")
    e("s_mul_i32 s8, s3, 17408\nv_add_u32 v80, s8, v80")
    for mt in range(2):
        for t in range(2):
            for q in range(4):
                e(f"ds_write_b128 v80, {vr(AC + (mt*2+t)*16 + 4*q, 4)} offset:{t*32*272 + mt*128 + q*32}")
    e(f"{Lnw}:")
    e("s_waitcnt vmcnt(0) lgkmcnt(0)")
    e("s_barrier")
    a.stamp(17)
    e(f"v_mul_u32_u24 v82, 1040, v2\nv_lshl_add_u32 v82, v0, 1, v82\nv_add_u32 v82, {L_YT}, v82")
    for i in range(8): e(f"ds_read_u16 v{148+i}, v82 offset:{i*128}")
    e("v_mul_u32_u24 v80, 272, v0\nv_lshl_add_u32 v80, v2, 5, v80")
    for w in range(4):
        for hh in range(2):
            r = 48 + w*8 + hh*4
            e(f"ds_read_b128 v[{r}:{r+3}], v80 offset:{w*17408 + hh*16}")
    e(f"s_mov_b32 s11, {fbits(-LOG2E)}")
    for q in range(4): e(f"v_lshlrev_b32 v{104+2*q}, 16, v{8+q}\nv_and_b32 v{105+2*q}, s14, v{8+q}")
    e("s_waitcnt lgkmcnt(0)")
    for i in range(8): e(f"v_add_f32 v{48+i}, v{48+i}, v{56+i}\nv_add_f32 v{64+i}, v{64+i}, v{72+i}")
    for i in range(8): e(f"v_add_f32 v{32+i}, v{48+i}, v{64+i}")
    e("v_mov_b32 v6, v156\nv_mov_b32 v7, v157")
    e("v_mul_f32 v14, v7, v7\nv_mul_f32 v15, v6, v7")
    for i in range(8): e(f"v_mul_f32 v{32+i}, v14, v{32+i}")
    for i in range(8): e(f"v_mul_f32 v{40+i}, s11, v{32+i}")
    for i in range(8): e(f"v_exp_f32 v{40+i}, v{40+i}\nv_lshlrev_b32 v{96+i}, 16, v{148+i}\nv_fma_f32 v{112+i}, v{104+i}, v7, -v15")
    for i in range(8): e(f"v_add_f32 v{40+i}, 1.0, v{40+i}\nv_mul_f32 v{112+i}, v{112+i}, v{96+i}")
    for i in range(8): e(f"v_rcp_f32 v{40+i}, v{40+i}\nv_mul_f32 v{112+i}, v{112+i}, v{32+i}")
    e("s_nop 0")
    for i in range(8): e(f"v_fma_f32 v{104+i}, v{112+i}, v{40+i}, v{104+i}")
    for q in range(4): e(f"v_cvt_pk_bf16_f32 v{120+q}, v{104+2*q}, v{105+2*q}")
    e(f"buffer_store_dwordx4 v[120:123], v3, {srd(S_OUT)}, s43 offen")
    a.stamp(15)

def aux_path(a):
    e = a.e; x = a.x
    a.c("=== AUX ===")
    a.vm_reset()
    e("s_sub_u32 s4, s2, 224\ns_lshl_b32 s5, s4, 3\ns_add_u32 s5, s5, s3")
    Lnt = a.label("Lnt")
    e(f"s_cmp_lg_u32 s5, 0\ns_cbranch_scc1 {Lnt}")
    e("s_memrealtime s[8:9]\ns_waitcnt lgkmcnt(0)\ns_or_b32 s8, s8, 1\nv_mov_b32 v2, s8")
    e(f"buffer_store_dword v2, off, {srd(S_DBG)}, 0 sc1")
    e(f"{Lnt}:")
    e("v_lshrrev_b32 v2, 3, v1\nv_and_b32 v3, 7, v1\nv_lshrrev_b32 v4, 4, v1\nv_and_b32 v5, 15, v1")
    e("s_and_b32 s8, s4, 7\ns_lshr_b32 s9, s4, 3\ns_lshr_b32 s10, s8, 1\ns_lshl_b32 s10, s10, 2\ns_add_u32 s10, s10, s9")
    e("s_and_b32 s8, s8, 1\ns_mul_i32 s8, s8, 14\ns_add_u32 s12, s8, s10")
    e("s_cmp_ge_u32 s10, 14\ns_cselect_b32 s13, 0x80000000, 0")
    e("v_mul_u32_u24 v7, 3584, v2\nv_lshl_add_u32 v7, v3, 4, v7\nv_or_b32 v7, s13, v7")
    e("s_and_b32 s8, s4, 7\ns_lshl_b32 s8, s8, 8\ns_lshr_b32 s9, s4, 3\ns_lshl_b32 s9, s9, 6\ns_add_u32 s8, s8, s9\ns_lshl_b32 s9, s3, 3\ns_add_u32 s6, s8, s9")
    e("v_mul_u32_u24 v8, 896, v2\nv_lshl_add_u32 v8, v3, 4, v8\ns_mul_i32 s7, s6, 896")
    e("s_and_b32 s8, s3, 3\ns_mul_i32 s8, s8, 28672\ns_lshl_b32 s9, s12, 7\ns_add_u32 s8, s8, s9")
    for i in range(14):
        x((f"s_add_u32 s9, s8, {i*114688}\nbuffer_load_dwordx4 v[{48+4*i}:{51+4*i}], v7, {srd(S_WSEL)}, s9 offen", ("CS", i)))
        if i == O.apace:
            a.wait_vm([("CS", O.apace)])
            x((f"buffer_load_dword v15, off, {srd(S_DBG)}, 0 sc1", "TOK"))
    for j in range(7):
        x((f"buffer_load_dwordx4 v[{104+4*j}:{107+4*j}], v8, {srd(S_X)}, s7 offen offset:{j*128}", "XS"))
    C = 16
    for i in range(14):
        a.wait_vm([("CS", i)])
        for q in range(4):
            r = 48 + 4*i + q
            if i == 0: e(f"v_lshlrev_b32 v{C+2*q}, 16, v{r}\nv_and_b32 v{C+2*q+1}, s14, v{r}")
            else: e(f"v_lshlrev_b32 v{24+2*q}, 16, v{r}\nv_and_b32 v{25+2*q}, s14, v{r}")
        if i:
            for q in range(8): e(f"v_add_f32 v{C+q}, v{C+q}, v{24+q}")
    a.stamp(3)
    e("s_nop 1")
    for q in range(4): e(f"v_permlane32_swap_b32 v{C+q}, v{C+4+q}")
    e("s_nop 1")
    for q in range(4): e(f"v_add_f32 v{C+q}, v{C+q}, v{C+4+q}")
    e("s_nop 1")
    for q in range(2): e(f"v_permlane16_swap_b32 v{C+q}, v{C+2+q}")
    e("s_nop 1")
    for q in range(2): e(f"v_add_f32 v{C+q}, v{C+q}, v{C+2+q}")
    e("s_nop 1")
    for q in range(2): e(f"v_add_f32_dpp v{C+q}, v{C+q}, v{C+q} row_ror:8 row_mask:0xf bank_mask:0xf")
    e("v_lshrrev_b32 v24, 5, v1\nv_bfe_u32 v25, v1, 4, 1\nv_lshlrev_b32 v26, 5, v3\nv_lshl_add_u32 v26, v24, 4, v26\nv_lshl_add_u32 v26, v25, 3, v26")
    e("s_lshl_b32 s8, s3, 8\nv_add_u32 v26, s8, v26")
    e(f"ds_write_b64 v26, v[{C}:{C+1}]")
    e("s_waitcnt lgkmcnt(0)\ns_barrier")
    e("s_lshr_b32 s8, s3, 2\ns_lshl_b32 s9, s8, 10\nv_add_u32 v26, s9, v13")
    for q in range(4): e(f"ds_read_b32 v{28+q}, v26 offset:{q*256}")
    e("s_and_b32 s9, s3, 3\ns_cmp_lg_u32 s9, 0\ns_cselect_b32 s9, 0x80000000, s13\nv_lshlrev_b32 v27, 3, v1\nv_or_b32 v27, s9, v27")
    e("s_mov_b32 s10, s8")
    a.wait_vm(["TOK"])
    token_get(a, 15)
    e("s_waitcnt lgkmcnt(0)")
    e(f"v_add_f32 v28, v28, v29\nv_add_f32 v30, v30, v31\nv_add_f32 v28, v28, v30\nv_mov_b32 v29, s{S_TOK}")
    e(f"s_mul_i32 s8, s10, 14336\ns_lshl_b32 s9, s12, 9\ns_add_u32 s8, s8, s9\ns_add_u32 s8, s8, {WS_CS}")
    x((f"buffer_store_dwordx2 v[28:29], v27, {srd(S_WS)}, s8 offen sc1", "CST"))
    a.wait_vm(["XS"])
    e("v_mov_b32 v36, 0x3f803f80\nv_mov_b32 v32, 0\nv_mov_b32 v33, 0\nv_mov_b32 v34, 0\nv_mov_b32 v35, 0")
    for r in range(104, 132):
        e(f"v_dot2_f32_bf16 v{32 + 2*(r&1)}, v{r}, v36, v{32 + 2*(r&1)}\nv_dot2_f32_bf16 v{33 + 2*(r&1)}, v{r}, v{r}, v{33 + 2*(r&1)}")
    e("s_nop 2\nv_add_f32 v32, v32, v34\nv_add_f32 v33, v33, v35\ns_nop 1")
    for pat in ("quad_perm:[1,0,3,2]", "quad_perm:[2,3,0,1]", "row_half_mirror"):
        e(f"v_add_f32_dpp v32, v32, v32 {pat} row_mask:0xf bank_mask:0xf\nv_add_f32_dpp v33, v33, v33 {pat} row_mask:0xf bank_mask:0xf\ns_nop 1")
    e(f"v_mul_f32 v32, {fbits(1.0/448)}, v32\nv_mul_f32 v33, {fbits(1.0/448)}, v33\nv_fma_f32 v33, -v32, v32, v33\nv_max_f32 v33, 0, v33")
    e(f"v_add_f32 v33, {fbits(1e-5)}, v33\nv_rsq_f32 v33, v33\nv_mov_b32 v34, s{S_TOK}\nv_mov_b32 v35, s{S_TOK}")
    e(f"s_lshl_b32 s8, s6, 4\ns_add_u32 s8, s8, {WS_ST}\nv_lshlrev_b32 v26, 4, v2")
    e(f"buffer_store_dwordx4 v[32:35], v26, {srd(S_WS)}, s8 offen sc1")
    a.stamp(4)

def build():
    a = Gen()
    prologue(a)
    a.e("s_cmp_ge_u32 s2, 224\ns_cbranch_scc1 Laux")
    main_path(a)
    a.stamp_flush()
    a.e("s_endpgm")
    a.e("Laux:")
    aux_path(a)
    a.stamp_flush()
    a.e("Lend:")
    a.e("s_endpgm")
    a.e("Lcode_end:")
    k = NAME + "_kernel"
    out = [f"; @launch grid=(256,1,1) block=(512,1,1) lds={LDS_TOTAL}",
           '.amdgcn_target "amdgcn-amd-amdhsa--gfx950"\n.text', kernel_header(k), a.text(),
           '.section .rodata,"a"', kernel_desc(k, 256, 256)]
    return "\n".join(out) + "\n"

if __name__ == "__main__":
    for arg in sys.argv[1:]:
        if arg == "stamps": O.stamps = True
        elif arg == "cyc": O.cyc = True
        elif arg == "gt": O.gt = True
        elif arg.startswith("skp="): O.skp = int(arg[4:])
        elif arg.startswith("wtp="): O.wtp = int(arg[4:])
        elif arg.startswith("ap="): O.apace = int(arg[3:])
        elif arg == "nopk": O.pk = False
        elif arg == "noep": O.ep = False
        elif arg == "hf": O.hfirst = True
        elif arg == "nog2p": O.g2p = False
        elif arg == "noct": O.ctouch = False
        elif arg == "notlb": O.tlb = False
        elif arg == "kd1": O.kd = 1; O.kv0 = False
        elif arg.startswith("rr="): O.rr = int(arg[3:])
        elif arg.startswith("rf="): O.rf = int(arg[3:])
        elif arg.startswith("rs="): O.rs = int(arg[3:])
        elif arg == "nogt": O.gt = False
        elif arg == "kv0": O.kv0 = True; O.kd = 0
        elif arg.startswith("w6="): O.w6 = int(arg[3:])
        elif arg == "sc1": O.scl = " sc1"
        elif arg == "notouch": O.touch = False
        elif arg.startswith("kt="): O.ktail = int(arg[3:])
    print(build())
```

```python
import sys, struct
from asmlib import *

NAME = "recurrent_scan__ssm_conv_h3__glu_gated_swiglu__prompt"
WS_KV = 0
WS_W2F = 2 << 20
WS_Y = 4 << 20
WS_ST = 6 << 20
WS_CS = (6 << 20) + 65536
WS_FLAG = (6 << 20) + 131072
WS_F1 = WS_FLAG
WS_FK = WS_FLAG + 65536
WS_FW = WS_FLAG + 2048
WS_FH = WS_FLAG + 32768
WS_FY = WS_FLAG + 16384
WS_H = 8 << 20
HSTR = 114688 + 128
WS_STAMP = 22 << 20
WS_SIZE = 24 << 20

S_X, S_WSEL, S_WS, S_K, S_V, S_SHK, S_SSMD, S_W2, S_OUT, S_DBG = 44, 48, 52, 56, 60, 64, 72, 76, 80, 84
S_T0 = 96
S_TOK = 42
def srd(b): return f"s[{b}:{b+3}]"
LOG2E = 1.4426950408889634
def fbits(f): return "0x%08x" % struct.unpack("<I", struct.pack("<f", f))[0]

class Opt: pass
O = Opt()
O.w6 = 0; O.glt = -1; O.skp = -5; O.wtp = 2; O.gtp = 0; O.fhd = 8; O.g2p = False; O.pk = True; O.ep = True; O.hfirst = False; O.tlb = True; O.ctouch = True; O.cvs = [0, 3, 6, 8, 10]; O.w4 = 4; O.chk = 8; O.rr = 0; O.rf = 0; O.rs = 0; O.gt = False; O.apace = 1; O.ebar = 1; O.kd = 0; O.kv0 = True; O.fys = 0; O.stamps = False; O.cyc = False; O.spin = 20000; O.scl = ""; O.touch = True; O.ktail = 6

STAMP_REGS = [16,17,18,19,20,21,22,23,26,27,28,29,30,31,32,33,34,35,36,37,38,39]
class Gen(Asm):
    def __init__(self):
        super().__init__()
        self.vm = []
        self.lq = []
    def x(self, item):
        if isinstance(item, tuple):
            self.e(item[0]); self.vm.extend([item[1]] * (item[2] if len(item) > 2 else 1))
        elif isinstance(item, list): self.l(item[0], item[1])
        else:
            self.e(item)
            for ln in item.split("\n"):
                if ln.startswith("ds_"): self.lq.append(None)
    def wait_vm(self, tags, extra=""):
        idx = -1
        for t in tags:
            ii = [i for i, v in enumerate(self.vm) if v == t]
            assert ii, t
            idx = max(idx, ii[-1])
        self.e(f"s_waitcnt vmcnt({min(63, len(self.vm) - 1 - idx)}){extra}")
    def vm_reset(self): self.vm = []
    def l(self, text, tag=None):
        self.e(text); self.lq.append(tag)
    def wait_l(self, tag):
        ii = [i for i, v in enumerate(self.lq) if v == tag]
        if not ii: return
        n = len(self.lq) - 1 - ii[-1]
        self.e(f"s_waitcnt lgkmcnt({min(15, n)})")
        if n <= 15: del self.lq[:ii[-1]+1]
    def stamp(self, idx):
        if not O.stamps: return
        self.e(("s_memtime" if O.cyc else "s_memrealtime") + " s[100:101]\ns_waitcnt lgkmcnt(0)")
        self.e(f"s_mov_b32 s{STAMP_REGS[idx]}, s100")
    def stamp_flush(self):
        if not O.stamps: return
        self.e("v_mov_b32 v2, 0")
        for i, r in enumerate(STAMP_REGS): self.e(f"v_writelane_b32 v2, s{r}, {i}")
        self.e(f"s_lshl_b32 s8, s2, 3\ns_add_u32 s8, s8, s3\ns_lshl_b32 s8, s8, 8\ns_add_u32 s8, s8, {WS_STAMP}")
        self.e("v_lshlrev_b32 v3, 2, v1")
        self.e(f"buffer_store_dword v2, v3, {srd(S_WS)}, s8 offen")
    def interleave(self, main, other, per=None):
        other = list(other)
        if per is None: per = max(1, -(-len(other) // max(1, len(main))))
        for m in main:
            self.x(m)
            for _ in range(per):
                if other: self.x(other.pop(0))
        for o in other: self.x(o)

XRING = 0; WRING = 49152
L_SP = 147456
L_KT = L_SP
L_HA = L_SP
HREG = 5120
L_CS = L_SP + 10240; L_ST = L_CS + 2048; L_C2 = L_ST + 1024; L_LF = L_C2 + 1024
L_UB = WRING + 65536
UREG = 6144
L_YB = WRING + 32768
L_YB2 = L_YB
L_YT = L_SP
LDS_TOTAL = L_SP + 10240 + 4096 + 256

def merge(x, y):
    o = []
    for i in range(max(len(x), len(y))):
        if i < len(x): o.append(x[i])
        if i < len(y): o.append(y[i])
    return o

def prologue(a):
    e = a.e
    e("s_cmp_ge_u32 s2, 256\ns_cbranch_scc1 Lend")
    e("s_load_dwordx16 s[16:31], s[0:1], 0")
    e("s_load_dwordx8 s[32:39], s[0:1], 64")
    e("s_load_dwordx2 s[40:41], s[0:1], 96")
    if O.ctouch:
        e("Lpc0:\ns_getpc_b64 s[8:9]")
        e("v_lshlrev_b32 v3, 7, v0\nv_min_u32 v3, Lcode_end-Lpc0-8, v3")
        e("global_load_dword v227, v3, s[8:9]")
    e("v_and_b32 v1, 63, v0\nv_lshrrev_b32 v2, 6, v0\ns_nop 0\nv_readfirstlane_b32 s3, v2")
    e("v_lshlrev_b32 v12, 4, v1\nv_lshlrev_b32 v13, 2, v1\ns_mov_b32 s14, 0xffff0000")
    e("s_waitcnt lgkmcnt(0)")
    e("s_memrealtime s[0:1]")
    def mk(b, p, size):
        e(f"s_mov_b32 s{b}, s{p}\ns_mov_b32 s{b+1}, s{p+1}\ns_mov_b32 s{b+2}, {size}\ns_mov_b32 s{b+3}, 0x20000")
    mk(S_X, 16, 1835008)
    e("s_cmp_ge_u32 s3, 4")
    e(f"s_cselect_b32 s{S_WSEL}, s32, s30\ns_cselect_b32 s{S_WSEL+1}, s33, s31")
    e(f"s_mov_b32 s{S_WSEL+2}, 1605632\ns_mov_b32 s{S_WSEL+3}, 0x20000")
    mk(S_WS, 40, WS_SIZE)
    mk(S_K, 18, 1835008); mk(S_V, 20, 1835008); mk(S_SHK, 22, 3584)
    mk(S_SSMD, 26, 896); mk(S_W2, 34, 1605632); mk(S_OUT, 36, 1835008); mk(S_DBG, 38, 256)
    e("s_waitcnt lgkmcnt(0)")
    if O.stamps:
        for r in STAMP_REGS: e(f"s_mov_b32 s{r}, 0")
    a.stamp(0)

def poll_ins(vflag, voff, soff, wide=False):
    if wide: return f"buffer_load_dwordx4 v[{vflag}:{vflag+3}], v{voff}, {srd(S_WS)}, s{soff} offen sc1"
    return f"buffer_load_dword v{vflag}, v{voff}, {srd(S_WS)}, s{soff} offen sc1"

def poll_check(a, vflag, voff, soff, nlanes, wide=False):
    e = a.e
    Lchk = a.label("Lchk"); Lok = a.label("Lok")
    e("s_mov_b32 s9, 0")
    e(f"{Lchk}:")
    if wide:
        for i in range(4): e(f"v_xor_b32 v{vflag+i}, s{S_TOK}, v{vflag+i}")
        e(f"v_or3_b32 v{vflag}, v{vflag}, v{vflag+1}, v{vflag+2}\nv_or_b32 v{vflag}, v{vflag}, v{vflag+3}")
        e(f"v_cmp_ne_u32 vcc, 0, v{vflag}")
    else:
        e(f"v_cmp_ne_u32 vcc, s{S_TOK}, v{vflag}")
    mask = (1 << nlanes) - 1 if nlanes <= 64 else nlanes
    if nlanes <= 32 or nlanes > 64: e(f"s_and_b32 s8, vcc_lo, {hex(mask)}")
    else: e(f"s_and_b32 s8, vcc_hi, {hex(mask >> 32)}\ns_or_b32 s8, s8, vcc_lo")
    e(f"s_cmp_eq_u32 s8, 0\ns_cbranch_scc1 {Lok}")
    e(f"s_add_u32 s9, s9, 1\ns_cmp_gt_u32 s9, {O.spin}\ns_cbranch_scc1 {Lok}")
    e("s_sleep 8")
    e(poll_ins(vflag, voff, soff, wide))
    e("s_waitcnt vmcnt(0)")
    e(f"s_branch {Lchk}")
    e(f"{Lok}:")

def token_get(a, vtok):
    e = a.e
    Lt = a.label("Ltok")
    e("s_mov_b32 s9, 0")
    e(f"{Lt}:")
    e(f"v_readfirstlane_b32 s{S_TOK}, v{vtok}")
    e(f"s_sub_u32 s8, s0, s{S_TOK}\ns_cmp_lt_i32 s8, 1000\ns_cselect_b32 s8, s{S_TOK}, 0\ns_cmp_gt_u32 s9, 64\ns_cselect_b32 s8, s{S_TOK}, s8")
    e(f"s_cmp_lg_u32 s8, 0\ns_cbranch_scc1 {Lt}_ok")
    e(f"s_add_u32 s9, s9, 1\ns_cmp_gt_u32 s9, {O.spin}\ns_cbranch_scc1 {Lt}_ok")
    e(f"s_sleep 8\nbuffer_load_dword v{vtok}, off, {srd(S_DBG)}, 0 sc1\ns_waitcnt vmcnt(0)\ns_branch {Lt}")
    e(f"{Lt}_ok:")

def flag_store_w0(a, idx_expr_sreg, base, vtmp):
    L = a.label("Lnf")
    a.e(f"s_cmp_lg_u32 s3, 0\ns_cbranch_scc1 {L}")
    a.e(f"s_lshl_b32 s8, s{idx_expr_sreg}, 2\ns_add_u32 s8, s8, {base}\nv_mov_b32 v{vtmp}, s{S_TOK}")
    a.e(f"buffer_store_dword v{vtmp}, off, {srd(S_WS)}, s8 sc1")
    a.e(f"{L}:")

def stats_row_issue(vdst, vtmp):
    return ("s_lshl_b32 s8, s2, 3\ns_add_u32 s8, s8, s3\ns_mul_i32 s8, s8, 896\n"
            f"v_cmp_gt_u32 vcc, 56, v1\nv_mov_b32 v{vtmp}, 0x80000000\ns_nop 0\nv_cndmask_b32 v{vtmp}, v{vtmp}, v12, vcc\n"
            f"buffer_load_dwordx4 v[{vdst}:{vdst+3}], v{vtmp}, {srd(S_X)}, s8 offen", "STL")

def stats_row_compute(vsrc, t):
    o = []
    o.append(f"v_mov_b32 v{t+2}, 0x3f803f80\nv_mov_b32 v{t}, 0\nv_mov_b32 v{t+1}, 0")
    for q in range(4):
        o.append(f"v_dot2_f32_bf16 v{t}, v{vsrc+q}, v{t+2}, v{t}\nv_dot2_f32_bf16 v{t+1}, v{vsrc+q}, v{vsrc+q}, v{t+1}")
    o.append("s_nop 2")
    for pat in ("quad_perm:[1,0,3,2]", "quad_perm:[2,3,0,1]", "row_half_mirror", "row_mirror"):
        o.append(f"v_add_f32_dpp v{t}, v{t}, v{t} {pat} row_mask:0xf bank_mask:0xf\nv_add_f32_dpp v{t+1}, v{t+1}, v{t+1} {pat} row_mask:0xf bank_mask:0xf\ns_nop 0")
    for sw in ("v_permlane16_swap_b32", "v_permlane32_swap_b32"):
        o.append(f"v_mov_b32 v{t+2}, v{t}\nv_mov_b32 v{t+3}, v{t+1}\ns_nop 1\n{sw} v{t}, v{t+2}\n{sw} v{t+1}, v{t+3}\ns_nop 1\nv_add_f32 v{t}, v{t}, v{t+2}\nv_add_f32 v{t+1}, v{t+1}, v{t+3}")
    o.append(f"v_mul_f32 v{t}, {fbits(1.0/448)}, v{t}\nv_mul_f32 v{t+1}, {fbits(1.0/448)}, v{t+1}")
    o.append(f"v_fma_f32 v{t+1}, -v{t}, v{t}, v{t+1}\nv_max_f32 v{t+1}, 0, v{t+1}\nv_add_f32 v{t+1}, {fbits(1e-5)}, v{t+1}\nv_rsq_f32 v{t+1}, v{t+1}")
    o.append((f"s_lshl_b32 s8, s2, 3\ns_add_u32 s8, s8, s3\ns_lshl_b32 s8, s8, 3\ns_add_u32 s8, s8, {WS_ST}\nbuffer_store_dwordx2 v[{t}:{t+1}], off, {srd(S_WS)}, s8 sc1", "STS"))
    return o

ACC = 16; FRG = [80, 96, 112, 128]; W2R = 144
def g1acc(j, t): return ACC + (2*j + t) * 16

def main_path(a):
    e = a.e; x = a.x
    a.c("=== MAIN: GEMM1 setup ===")
    e("s_and_b32 s4, s3, 1\ns_lshr_b32 s5, s3, 1")
    e("s_and_b32 s8, s2, 7\ns_lshr_b32 s9, s2, 3")
    e("s_and_b32 s10, s9, 3\ns_lshr_b32 s11, s9, 2")
    e("s_lshr_b32 s6, s8, 1\ns_lshl_b32 s6, s6, 2\ns_add_u32 s6, s6, s10")
    e("s_and_b32 s7, s8, 1\ns_mul_i32 s7, s7, 7\ns_add_u32 s7, s7, s11")
    e("v_lshrrev_b32 v20, 3, v1\nv_and_b32 v21, 7, v1\nv_lshrrev_b32 v22, 4, v1")
    e("s_lshl_b32 s8, s3, 4")
    e("v_add_u32 v23, s8, v20\nv_mul_u32_u24 v23, 896, v23")
    e("v_xor_b32 v24, v21, v22\nv_lshl_add_u32 v2, v24, 4, v23")
    e("v_xor_b32 v24, 4, v24\nv_lshl_add_u32 v3, v24, 4, v23\nv_add_u32 v3, 7168, v3")
    e("s_and_b32 s8, s3, 3\ns_lshl_b32 s8, s8, 4")
    e("v_add_u32 v23, s8, v22\nv_mul_u32_u24 v23, 3584, v23")
    e("s_lshr_b32 s9, s3, 2\ns_lshl_b32 s9, s9, 2\nv_or_b32 v24, s9, v22")
    e("v_bfe_u32 v25, v1, 1, 3\nv_xor_b32 v24, v24, v25\nv_and_b32 v26, 1, v1")
    e("v_lshl_or_b32 v27, v24, 1, v26\nv_lshl_add_u32 v4, v27, 4, v23")
    e("s_mul_i32 s88, s6, 114688\ns_lshl_b32 s89, s7, 8")
    e("s_lshl_b32 s90, s3, 11\ns_lshl_b32 s91, s3, 12")
    e(f"s_mul_i32 s70, s10, {O.rr}\ns_mul_i32 s9, s11, {O.rf}\ns_add_u32 s70, s70, s9\ns_mul_hi_u32 s9, s70, 0x24924925\ns_mul_i32 s9, s9, 7\ns_sub_u32 s70, s70, s9")
    def dma_x(c):
        pre = "s_lshl_b32 s71, s70, 7\ns_add_u32 s71, s71, s88\ns_mul_i32 s69, s70, 229376\ns_add_u32 s69, s69, s89\ns_add_u32 s70, s70, 1\ns_cmp_eq_u32 s70, 7\ns_cselect_b32 s70, 0, s70\n"
        return [((pre if ee == 0 else "") + f"s_add_u32 m0, s90, {XRING + (c % 3)*16384 + ee*1024}\ns_nop 0\nbuffer_load_dwordx4 v{2+ee}, {srd(S_X)}, s71 offen lds", ("C", c)) for ee in range(2)]
    def dma_w(c):
        return [(f"s_add_u32 m0, s91, {WRING + (c % 3)*32768 + ee*1024}\ns_add_u32 s8, s69, {4*ee*3584}\nbuffer_load_dwordx4 v4, {srd(S_WSEL)}, s8 offen lds", ("C", c)) for ee in range(4)]
    def gl_touch():
        L = a.label("Lglt")
        o = [f"s_cmp_eq_u32 s3, 7\ns_cbranch_scc1 {L}"]
        o.append(f"s_mov_b32 s8, s{S_X}\ns_mov_b32 s9, s{S_X+1}")
        for w_, (lo, hi) in ((1, (S_K, S_K+1)), (2, (S_V, S_V+1)), (3, (S_WSEL, S_WSEL+1)), (4, (S_WSEL, S_WSEL+1)), (5, (24, 25)), (6, (S_W2, S_W2+1))):
            o.append(f"s_cmp_eq_u32 s3, {w_}\ns_cselect_b32 s8, s{lo}, s8\ns_cselect_b32 s9, s{hi}, s9")
        o.append("s_mov_b32 s10, 0x58\ns_lshr_b32 s10, s10, s3\ns_and_b32 s10, s10, 1\ns_lshl_b32 s10, s10, 10\ns_sub_u32 s10, 8192, s10")
        o.append("s_mul_i32 s11, s2, s10\ns_sub_u32 s10, s10, 128\nv_lshlrev_b32 v232, 7, v1\nv_min_u32 v232, s10, v232\nv_add_u32 v232, s11, v232")
        o.append(f"global_load_dword v233, v232, s[8:9]\n{L}:")
        return "\n".join(o)
    for c in range(2):
        for s in dma_x(c) + dma_w(c): x(s)
        if O.glt == c: e(gl_touch())
    e("s_mul_hi_u32 s12, s2, 0x24924925\ns_mul_i32 s13, s12, 7\ns_sub_u32 s13, s2, s13")
    e("v_and_b32 v23, 31, v1\nv_lshrrev_b32 v24, 5, v1")
    e("v_mul_u32_u24 v25, 3584, v24\nv_lshl_add_u32 v25, v23, 2, v25")
    e("s_mul_i32 s8, s12, 57344\ns_lshl_b32 s9, s13, 7\ns_add_u32 s8, s8, s9\ns_mul_i32 s9, s3, 7168\ns_add_u32 s8, s8, s9")
    e("v_add_u32 v194, s8, v25")
    e("v_lshlrev_b32 v195, 4, v23")
    for s in dma_x(2) + dma_w(2): x(s)
    def kv_loads():
        o = [(f"s_lshl_b32 s8, s13, 9\nbuffer_load_dwordx4 v[160:163], v195, {srd(S_SHK)}, s8 offen", "KVL")]
        for i in range(-3, 0):
            o.append((f"v_subrev_u32 v204, {-i*896}, v194\nbuffer_load_dword v{147+i}, v204, {srd(S_K)}, 0 offen", "KVL"))
        for i in range(4):
            o.append((f"buffer_load_dword v{147+i}, v194, {srd(S_K)}, 0 offen offset:{i*896}", "KVL"))
            o.append((f"buffer_load_dword v{152+i}, v194, {srd(S_V)}, 0 offen offset:{i*896}", "KVL"))
        return o
    def g1_touch():
        if not O.gt: return []
        o = []
        o.append(("\n".join([
            "s_lshr_b32 s8, s2, 3\ns_lshl_b32 s8, s8, 2\ns_and_b32 s9, s3, 3\ns_add_u32 s8, s8, s9\ns_lshl_b32 s8, s8, 5",
            "v_add_u32 v228, s8, v1\nv_mul_u32_u24 v229, 4682, v228\nv_lshrrev_b32 v229, 16, v229",
            "v_mul_u32_u24 v230, 14, v229\nv_sub_u32 v228, v228, v230",
            "v_mul_u32_u24 v229, 3584, v229\nv_lshl_add_u32 v228, v228, 7, v229",
            "v_cmp_gt_u32 vcc, 32, v1\nv_mov_b32 v230, 0x80000000\ns_and_b32 s9, s2, 1\nv_cndmask_b32 v228, v230, v228, vcc",
            f"s_mul_i32 s9, s9, 1792\ns_add_u32 s9, s9, {192*3584}",
            f"buffer_load_dword v231, v228, {srd(S_WSEL)}, s9 offen"]), "T"))
        o.append(("\n".join([
            "s_lshr_b32 s8, s2, 3\ns_lshl_b32 s8, s8, 3\ns_add_u32 s8, s8, s3\ns_mul_i32 s8, s8, 10",
            "v_add_u32 v228, s8, v1\nv_lshrrev_b32 v229, 2, v228\nv_and_b32 v228, 3, v228",
            "v_cmp_gt_u32 vcc, 512, v229\nv_cmp_gt_u32 s[10:11], 10, v1\nv_mul_u32_u24 v229, 896, v229\nv_lshl_add_u32 v228, v228, 7, v229",
            "s_and_b64 vcc, vcc, s[10:11]\ns_bfe_u32 s9, s2, 0x20001\ns_mul_i32 s9, s9, 458752\nv_cndmask_b32 v228, v230, v228, vcc",
            "s_add_u32 s9, s9, 384",
            f"buffer_load_dword v231, v228, {srd(S_X)}, s9 offen"]), "T"))
        return o
    def sk_touch():
        Lt_ = a.label("Ltsk")
        return "\n".join([f"s_cmp_lg_u32 s3, 6\ns_cbranch_scc1 {Lt_}",
            "s_lshl_b32 s8, s2, 13\nv_lshlrev_b32 v232, 7, v1\nv_add_u32 v232, s8, v232",
            "global_load_dword v233, v232, s[24:25]", f"{Lt_}:"])
    def w2_touch():
        Lt_ = a.label("Ltw2")
        return "\n".join([f"s_cmp_lg_u32 s3, 7\ns_cbranch_scc1 {Lt_}",
            "s_mul_i32 s8, s2, 7168\nv_lshlrev_b32 v232, 7, v1\nv_cmp_gt_u32 vcc, 56, v1\nv_mov_b32 v233, 0x80000000\ns_nop 0\nv_cndmask_b32 v232, v233, v232, vcc",
            f"buffer_load_dword v233, v232, {srd(S_W2)}, s8 offen", f"{Lt_}:"])
    def w2f_loads():
        L = a.label("Lw2a")
        o = [f"s_cmp_lt_u32 s3, 6\ns_cbranch_scc1 {L}\ns_cmp_ge_u32 s2, 196\ns_cbranch_scc1 {L}",
             "s_lshl_b32 s8, s2, 1\ns_add_u32 s8, s8, s4\ns_mul_hi_u32 s98, s8, 0x24924925\ns_mul_i32 s99, s98, 7\ns_sub_u32 s99, s8, s99",
             "v_bfe_u32 v224, v1, 4, 1\nv_lshrrev_b32 v225, 5, v1\nv_lshl_add_u32 v224, v225, 2, v224\nv_mul_u32_u24 v224, 3584, v224\nv_and_b32 v225, 15, v1\nv_lshl_add_u32 v224, v225, 3, v224",
             "s_mul_i32 s8, s98, 28672\ns_lshl_b32 s9, s99, 7\ns_add_u32 s8, s8, s9\ns_add_u32 s9, s8, 7168"]
        for h in range(2):
            for i in range(4):
                r = 208 + (h*4 + i)*2
                o.append(f"buffer_load_dwordx2 v[{r}:{r+1}], v224, {srd(S_W2)}, s{8+h} offen offset:{i*896}")
        o.append(f"{L}:")
        return "\n".join(o)
    def w2f_store():
        L = a.label("Lw2b")
        e(f"s_cmp_lt_u32 s3, 6\ns_cbranch_scc1 {L}\ns_cmp_ge_u32 s2, 196\ns_cbranch_scc1 {L}")
        e("s_mov_b32 s10, 0x05040100\ns_mov_b32 s11, 0x07060302")
        e(f"s_mul_i32 s8, s99, 224\ns_lshl_b32 s9, s98, 1\ns_add_u32 s8, s8, s9\ns_lshl_b32 s8, s8, 10\ns_add_u32 s8, s8, {WS_W2F}\ns_add_u32 s9, s8, {112*1024}")
        e("v_lshrrev_b32 v224, 4, v1\nv_lshlrev_b32 v224, 9, v224\nv_and_b32 v225, 15, v1\nv_lshl_add_u32 v224, v225, 4, v224")
        for ee in range(4):
            d = 164 + ee*4
            for j in range(4):
                r0 = 208 + (2*j)*2 + (ee >> 1); r1 = r0 + 2
                e(f"v_perm_b32 v{d+j}, v{r1}, v{r0}, s{10 + (ee & 1)}")
            e(f"buffer_store_dwordx4 v[{d}:{d+3}], v224, {srd(S_WS)}, s{8 + (ee >> 1)} offen offset:{(ee & 1)*256} sc1")
        e(f"{L}:")
    if O.kv0:
        for s in kv_loads(): x(s)
    if O.wtp < 0: e(w2_touch())
    if O.glt == 2: e(gl_touch())
    if O.tlb:
        Lt2 = a.label("Ltlb")
        e(f"s_cmp_lg_u32 s3, 7\ns_cbranch_scc1 {Lt2}")
        e(f"buffer_load_dword v220, off, {srd(S_SSMD)}, 0\nbuffer_load_dword v221, off, {srd(S_W2)}, 0\nbuffer_load_dword v222, off, {srd(S_OUT)}, 0")
        e("v_mov_b32 v226, 0\nglobal_load_dword v223, v226, s[24:25]")
        e(f"v_lshlrev_b32 v225, 21, v1\nv_add_u32 v225, {(2<<20) - 128}, v225\nv_subrev_u32 v226, 4, v1\nv_mul_u32_u24 v226, {8*HSTR}, v226\nv_add_u32 v226, {WS_H + 114688}, v226")
        e("v_cmp_gt_u32 vcc, 4, v1\ns_nop 1\nv_cndmask_b32 v225, v226, v225, vcc\nv_cmp_gt_u32 vcc, 12, v1\nv_mov_b32 v226, 0x80000000\ns_nop 0\nv_cndmask_b32 v225, v226, v225, vcc")
        e(f"buffer_load_dword v224, v225, {srd(S_WS)}, 0 offen")
        e(f"{Lt2}:")
    e(f"s_lshl_b32 s8, s3, 4\ns_sub_u32 s8, {L_KT + 120}, s8\nv_mul_u32_u24 v196, 272, v23\nv_lshlrev_b32 v24, 3, v24\nv_sub_u32 v196, v196, v24\nv_add_u32 v196, s8, v196")
    e(f"s_mul_i32 s8, s3, 1088\ns_add_u32 s8, s8, {L_KT}\nv_mul_u32_u24 v202, 136, v20\nv_lshl_add_u32 v202, v21, 4, v202\nv_add_u32 v202, s8, v202")
    e("v_lshlrev_b32 v203, 12, v20\nv_lshl_add_u32 v203, v21, 4, v203")
    e("s_lshl_b32 s15, s13, 18\ns_lshl_b32 s9, s3, 15\ns_add_u32 s15, s15, s9\ns_sub_u32 s9, 31, s12\ns_lshl_b32 s9, s9, 7\ns_add_u32 s15, s15, s9")
    e("s_lshl_b32 s43, s13, 5\ns_add_u32 s43, s43, s12")
    def kv_compute():
        o = []
        def up(d, s_, hi): return f"v_and_b32 v{d}, s14, v{s_}" if hi else f"v_lshlrev_b32 v{d}, 16, v{s_}"
        for c in range(2):
            for j in range(4): o.append(up(168 + j, 160 + 2*c + (j >> 1), j & 1))
            for i in range(7): o.append(up(172 + i, 144 + i, c))
            for i in range(4): o.append(f"v_mul_f32 v{180+i}, v168, v{175+i}")
            for lag in range(1, 4):
                for i in range(4): o.append(f"v_fmac_f32 v{180+i}, v{168+lag}, v{175+i-lag}")
            for i in range(4): o.append(up(172 + i, 152 + i, c))
            for i in range(4): o.append(f"v_mul_f32 v{180+i}, v{180+i}, v{172+i}")
            d = 186 + 2*c
            o.append(f"v_cvt_pk_bf16_f32 v{d}, v183, v182"); o.append(f"v_cvt_pk_bf16_f32 v{d+1}, v181, v180")
            o.append(f"ds_write_b64 v196, v[{d}:{d+1}] offset:{c*136}")
        return o
    e("v_and_b32 v23, 31, v1\nv_lshrrev_b32 v24, 5, v1\nv_bfe_u32 v25, v1, 1, 3")
    e("s_lshl_b32 s8, s4, 13\nv_lshlrev_b32 v26, 7, v23\nv_add_u32 v26, s8, v26")
    for st in range(4):
        e(f"v_or_b32 v27, {2*st}, v24\nv_xor_b32 v27, v27, v25\nv_lshl_add_u32 v{5+st}, v27, 4, v26")
    e("v_bfe_u32 v23, v1, 4, 1\nv_bfe_u32 v25, v1, 2, 2\nv_lshl_or_b32 v26, v23, 2, v25")
    e("v_lshl_add_u32 v27, v24, 3, v25\nv_lshlrev_b32 v27, 8, v27\nv_lshl_add_u32 v27, v23, 14, v27\nv_and_b32 v28, 3, v1\nv_lshl_add_u32 v27, v28, 3, v27")
    e(f"v_add_u32 v27, {WRING}, v27")
    for j in range(2):
        e(f"s_lshl_b32 s8, s5, 1\ns_add_u32 s8, s8, {j}\nv_xor_b32 v28, s8, v26\nv_lshl_add_u32 v{254+j}, v28, 5, v27")
    def reads(s):
        p = s // 4; st = s % 4; f = FRG[s % 4]; out = []
        for j in range(2):
            for t in range(2):
                out.append(f"ds_read_b64_tr_b16 v[{f+4*j+2*t}:{f+4*j+2*t+1}], v{10+j} offset:{(16*st + 4*t)*256}")
            out.append(f"ds_read_b128 v[{f+8+4*j}:{f+11+4*j}], v{5+st} offset:{XRING + (p % 3)*16384 + j*4096}")
        return out
    def mfmas(s):
        f = FRG[s % 4]; out = []
        for j in range(2):
            for t in range(2):
                C = vr(g1acc(j, t), 16)
                out.append(f"v_mfma_f32_32x32x16_bf16 {C}, {vr(f+4*j, 4)}, {vr(f+8+4*t, 4)}, {C if s > 0 else 0}")
        return out
    def ha_dma():
        o = ["\n".join([
            "s_lshl_b32 s9, s2, 1\ns_add_u32 s9, s9, s4\ns_lshl_b32 s9, s9, 12",
            f"s_add_u32 s{S_T0}, s24, s9\ns_addc_u32 s{S_T0+1}, s25, 0\ns_mov_b32 s{S_T0+2}, 4096\ns_mov_b32 s{S_T0+3}, 0x20000",
            "s_lshl_b32 s10, s5, 10",
            f"s_mul_i32 s11, s4, {HREG}\ns_add_u32 s11, s11, {L_HA}",
            "v_subrev_u32 v14, 256, v12"])]
        o.append((f"s_add_u32 m0, s11, s10\nv_add_u32 v15, s10, v14\nbuffer_load_dwordx4 v15, {srd(S_T0)}, 0 offen lds", "HA"))
        o.append((f"s_add_u32 m0, s11, 4096\nv_add_u32 v15, 4096, v14\nbuffer_load_dwordx4 v15, {srd(S_T0)}, 0 offen lds", "HA"))
        return o
    def stats_ops(p): return [], []
    e("s_and_b32 s8, s2, 7\ns_lshr_b32 s9, s2, 3\ns_mul_hi_u32 s10, s9, 0x24924925")
    e("s_mul_i32 s11, s10, 7\ns_sub_u32 s93, s9, s11\ns_lshl_b32 s92, s8, 2\ns_add_u32 s92, s92, s10")
    e(f"s_mul_i32 s8, s93, {O.rs}\ns_add_u32 s8, s8, s3\ns_and_b32 s8, s8, 7\ns_mul_i32 s95, s8, 200704\ns_lshl_b32 s9, s93, 7\ns_add_u32 s95, s95, s9")
    e("v_mul_u32_u24 v9, 896, v20\nv_lshl_add_u32 v9, v21, 4, v9\nv_bfe_u32 v23, v1, 4, 1\nv_lshlrev_b32 v23, 6, v23\nv_xor_b32 v9, v23, v9")
    e(f"v_and_b32 v238, 15, v1\nv_lshlrev_b32 v238, 4, v238\ns_lshl_b32 s8, s6, 11\ns_lshl_b32 s9, s3, 8\ns_add_u32 s8, s8, s9\ns_add_u32 s98, s8, {WS_ST}") if False else None
    e(f"v_lshrrev_b32 v23, 7, v0\nv_mul_u32_u24 v23, {UREG - 2048}, v23\nv_lshl_add_u32 v237, v0, 4, v23\nv_add_u32 v237, {L_UB + 4096}, v237")
    e(f"s_lshr_b32 s8, s3, 2\ns_mul_i32 s8, s8, 14336\ns_lshl_b32 s9, s7, 10\ns_add_u32 s8, s8, s9\ns_and_b32 s9, s3, 3\ns_lshl_b32 s9, s9, 8\ns_add_u32 s8, s8, s9\ns_add_u32 s68, s8, {WS_CS}")
    e("v_lshlrev_b32 v236, 3, v1\nv_and_b32 v236, 255, v236")
    def treads(s): return [[r, ("R", s)] for r in reads(s)]
    kvc = kv_compute()
    def u_dma():
        return ["\n".join([
            "s_lshl_b32 s9, s2, 1\ns_lshr_b32 s10, s3, 2\ns_add_u32 s9, s9, s10\ns_lshl_b32 s9, s9, 12",
            f"s_add_u32 s{S_T0}, s40, s9\ns_addc_u32 s{S_T0+1}, s41, 0\ns_mov_b32 s{S_T0+2}, 4096\ns_mov_b32 s{S_T0+3}, 0x20000",
            f"s_mul_i32 s10, s5, {UREG}\ns_lshl_b32 s11, s4, 11\ns_add_u32 s10, s10, s11\ns_add_u32 s10, s10, {L_UB}",
            "s_and_b32 s9, s5, 1\ns_lshl_b32 s9, s9, 2\ns_sub_u32 s9, 4, s9\ns_add_u32 s11, s11, s9",
            "v_lshrrev_b32 v14, 4, v1\ns_lshl_b32 s9, s4, 3\nv_or_b32 v14, s9, v14\nv_lshlrev_b32 v14, 4, v14\nv_xor_b32 v14, v14, v12\nv_add_u32 v14, s11, v14"]),
            (f"s_mov_b32 m0, s10\nv_xor_b32 v15, 64, v14\nbuffer_load_dwordx4 v14, {srd(S_T0)}, 0 offen sc1 lds", "U"),
            (f"s_add_u32 m0, s10, 1024\nv_add_u32 v15, 1024, v15\nbuffer_load_dwordx4 v15, {srd(S_T0)}, 0 offen sc1 lds", "U")]
    STL = f"s_lshl_b32 s8, s6, 11\ns_lshl_b32 s9, s3, 8\ns_add_u32 s8, s8, s9\ns_add_u32 s8, s8, {WS_ST}\nbuffer_load_dwordx4 v[240:243], v238, {srd(S_WS)}, s8 offen sc1"
    CSL = f"buffer_load_dwordx2 v[234:235], v236, {srd(S_WS)}, s68 offen sc1"
    e("v_and_b32 v238, 15, v1\nv_lshlrev_b32 v238, 4, v238")
    K = O.kd
    def tok_load():
        L = a.label("Ltk")
        return f"s_cmp_lg_u32 s3, 0\ns_cbranch_scc1 {L}\nbuffer_load_dword v197, off, {srd(S_DBG)}, 0 sc1\n{L}:"
    for p in range(7):
        need = [("C", p)]
        if p == 1 + K: need += ["KVL"]
        if p == 4 + K: need += ["KVS"]
        a.wait_vm(need, " lgkmcnt(0)")
        a.lq = []
        e("s_barrier")
        a.stamp(1 + p)
        e(f"v_add_u32 v10, {(p % 3)*32768}, v254\nv_add_u32 v11, {(p % 3)*32768}, v255")
        exA = []; exB = []; exV = []
        if 1 <= p <= 4: exA = dma_x(p + 2) + dma_w(p + 2)
        s0 = 4*p
        post = {}
        if p == 0: exB = ([] if O.kv0 else kv_loads()) + [tok_load()]
        if p == 1 + K: exV = kvc
        if p == O.wtp and O.touch: exB = exB + [w2_touch()]
        if p == O.gtp and O.gt: exB = exB + g1_touch()
        if p == O.skp: exB = exB + [sk_touch()]
        if p == 0 and O.glt == 3: exB = [gl_touch()] + exB
        if p == 2 + K: post[3] = "KVST"
        if p == 3: post[1] = "TOKEN"
        if p == 3 + K: exB = ha_dma()
        if p == 4: post[2] = "TOKRD"
        if p == 4 + K: post[3] = "FK"
        if p == 5:
            e(f"s_lshr_b32 s94, s2, 5\ns_lshl_b32 s94, s94, 7\ns_and_b32 s8, s2, 3\ns_lshl_b32 s8, s8, 10\ns_add_u32 s94, s94, s8\ns_add_u32 s94, s94, {WS_FK}")
            exA = [(CSL, "CSL"), (STL, "CSL")] + sum([w2_dma(k, SETA[k]) for k in range(3)], [])
        if p == 6:
            post[O.chk] = "CHK"
            Lk_ = a.label("Lpk")
            exA = [f"s_cmp_lg_u32 s3, 0\ns_cbranch_scc1 {Lk_}\nv_and_b32 v14, 124, v13\n" + poll_ins(15, 14, 94) + f"\n{Lk_}:", "v_mov_b32 v228, 0\nv_mov_b32 v229, 0\nv_mov_b32 v230, 0\nv_mov_b32 v231, 0\nds_write_b128 v237, v[228:231]", f"v_mov_b32 v232, {L_LF + 128}\nds_write_b32 v232, v228"] + w2_dma(3, PX2)
        if p == 0:
            for r in treads(0) + treads(1): x(r)
            slots = [[] for _ in range(8)]
            mm = mfmas(0) + mfmas(1)
            rd = treads(2) + treads(3)
            for i in range(4): slots[i] += rd[3*i:3*i+3]
            for i, f_ in enumerate(exB): slots[i*8//len(exB)].append(f_)
            a.wait_l(("R", 0))
            for i, m in enumerate(mm):
                if i == 4: a.wait_l(("R", 1))
                x(m)
                for f_ in slots[i]: x(f_)
        else:
            mm = mfmas(s0-2) + mfmas(s0-1) + mfmas(s0) + mfmas(s0+1)
            slots = [[] for _ in range(16)]
            if p == 4: slots[0] += [f"v_mov_b32 v198, {L_LF + 96}", ["ds_read_b32 v197, v198", "TK"]]
            if p == 2 + K: slots[0] += [["ds_read_b64 v[144:145], v202", "KB"], ["ds_read_b64 v[146:147], v202 offset:8", "KB"]]
            rd = treads(s0) + treads(s0+1)
            for i in range(6): slots[i] += rd[2*i:2*i+2]
            rd = treads(s0+2)
            for i in range(3): slots[6+i] += rd[2*i:2*i+2]
            rd = treads(s0+3)
            for i in range(3): slots[9+i] += rd[2*i:2*i+2]
            startA = 4 if p == 2 + K else 0
            for i, f_ in enumerate(exA): slots[startA + i*((16 if p == 5 else 12)-startA)//max(1, len(exA))].append(f_)
            for i, f_ in enumerate(exV): slots[i*16//len(exV)].append(f_)
            for i, f_ in enumerate(exB): slots[(4 if p == 5 else 12) + i*4//max(1, len(exB))].append(f_)
            for i, m in enumerate(mm):
                if i == 8: a.wait_l(("R", s0))
                if i == 12: a.wait_l(("R", s0+1))
                x(m)
                if post.get(i) == "KVST":
                    a.wait_l("KB")
                    x((f"buffer_store_dwordx4 v[144:147], v203, {srd(S_WS)}, s15 offen sc1", "KVS"))
                if post.get(i) == "TOKEN":
                    L = a.label("Ltk2")
                    e(f"s_cmp_lg_u32 s3, 0\ns_cbranch_scc1 {L}")
                    token_get(a, 197)
                    e(f"v_mov_b32 v198, {L_LF + 96}\nds_write_b32 v198, v197")
                    e(f"{L}:")
                if post.get(i) == "TOKRD":
                    a.wait_l("TK")
                    e(f"v_readfirstlane_b32 s{S_TOK}, v197")
                if post.get(i) == "FK":
                    L = a.label("Lnf")
                    e(f"s_cmp_lg_u32 s3, 0\ns_cbranch_scc1 {L}")
                    e(f"s_lshl_b32 s8, s43, 2\ns_add_u32 s8, s8, {WS_FK}\nv_mov_b32 v14, s{S_TOK}\nv_and_b32 v15, 3, v1\nv_lshlrev_b32 v15, 10, v15")
                    e(f"buffer_store_dword v14, v15, {srd(S_WS)}, s8 offen sc1")
                    e(f"{L}:")
                if post.get(i) == "CHK":
                    a.wait_vm(["CSL"])
                    Lchk = a.label("Lcs"); Lok = a.label("Lcsok")
                    e("s_mov_b32 s10, 0")
                    e(f"{Lchk}:")
                    e(f"v_cmp_ne_u32 vcc, s{S_TOK}, v235\nv_cmp_ne_u32 s[8:9], s{S_TOK}, v242\ns_or_b64 vcc, vcc, s[8:9]\ns_cbranch_vccz {Lok}")
                    e(f"s_add_u32 s10, s10, 1\ns_cmp_gt_u32 s10, {O.spin}\ns_cbranch_scc1 {Lok}")
                    e(f"s_sleep 8\n{CSL}\n{STL}\ns_waitcnt vmcnt(0)\ns_branch {Lchk}")
                    e(f"{Lok}:")
                    x(f"s_lshl_b32 s8, s3, 7\ns_add_u32 s9, s8, {L_C2}\nv_lshrrev_b32 v236, 1, v236\nv_add_u32 v236, s9, v236\nds_write_b32 v236, v234")
                    x(f"s_add_u32 s9, s8, {L_ST}\nv_lshrrev_b32 v238, 1, v238\nv_add_u32 v238, s9, v238\nds_write_b64 v238, v[240:241]")
                for f_ in slots[i]: x(f_)
    Lk2 = a.label("Lpk2")
    e(f"s_cmp_lg_u32 s3, 0\ns_cbranch_scc1 {Lk2}")
    e("s_waitcnt vmcnt(2)")
    poll_check(a, 15, 14, 94, 32)
    e(f"{Lk2}:")
    e("s_waitcnt lgkmcnt(0)")
    e("s_barrier")
    a.stamp(21)
    e("v_lshrrev_b32 v2, 5, v1\nv_bfe_u32 v3, v1, 2, 2\nv_lshl_add_u32 v5, v2, 2, v3\nv_lshlrev_b32 v5, 7, v5")
    e("v_bfe_u32 v3, v1, 4, 1\nv_lshl_add_u32 v5, v3, 5, v5\nv_and_b32 v3, 3, v1\nv_lshl_add_u32 v5, v3, 3, v5")
    e("v_bfe_u32 v3, v1, 3, 1\nv_lshl_add_u32 v5, v3, 6, v5")
    e(f"s_add_u32 s8, s91, {WRING}\nv_add_u32 v7, s8, v5\nv_add_u32 v5, s90, v5\nv_xor_b32 v6, 64, v5\nv_xor_b32 v8, 64, v7")
    mm = mfmas(26) + mfmas(27)
    a.wait_vm([("W2", 3)])
    a.interleave(mm[:4], sum([w2_tr(k, SETA[k]) for k in range(3)], []) + w2_tr(3, PX2), per=4)
    Lu2 = a.label("Lu2")
    e(f"s_cmp_ge_u32 s3, 4\ns_cbranch_scc1 {Lu2}")
    e("s_lshl_b32 s9, s2, 1\ns_add_u32 s9, s9, s5\ns_lshl_b32 s9, s9, 12")
    e(f"s_add_u32 s{S_T0}, s40, s9\ns_addc_u32 s{S_T0+1}, s41, 0\ns_mov_b32 s{S_T0+2}, 4096\ns_mov_b32 s{S_T0+3}, 0x20000")
    e(f"s_mul_i32 s10, s3, {UREG}\ns_add_u32 s10, s10, {L_UB}\ns_lshl_b32 s9, s4, 2\ns_sub_u32 s11, 4, s9")
    e("v_lshrrev_b32 v14, 4, v1\nv_lshlrev_b32 v14, 4, v14\nv_xor_b32 v14, v14, v12\nv_add_u32 v14, s11, v14")
    for i in range(4):
        e(f"s_add_u32 m0, s10, {i*1024}\nv_xor_b32 v15, {64*i}, v14\nv_add_u32 v15, {i*1024}, v15\nbuffer_load_dwordx4 v15, {srd(S_T0)}, 0 offen sc1 lds")
    e("s_lshl_b32 s10, s2, 1\ns_bfe_u32 s11, s3, 0x10001\ns_add_u32 s10, s10, s11\ns_lshl_b32 s10, s10, 1")
    e(f"buffer_load_ushort v0, off, {srd(S_SSMD)}, s10")
    e(f"{Lu2}:")
    a.interleave(mm[4:], sum([w2_dma(4+k, SETC[k]) for k in range(3)], []), per=2)
    e("s_waitcnt lgkmcnt(0)")
    a.w2epi = sum([w2_dma(7+k, SETA[k]) for k in range(3)], []) + w2_dma(10, PX2)
    a.stamp(8)
    g1_epilogue(a)
    a.stamp(9)
    conv_loop(a)
    a.stamp(10)
    gemm2(a)

def pc_base(pc):
    kind, slot, idx = pc
    return ("s90", XRING + slot*16384) if kind == "X" else ("s91", WRING + slot*32768 + idx*2048)
def w2_dma(ks, pc):
    sreg, off = pc_base(pc)
    return [(f"s_add_u32 m0, {sreg}, {off + h*1024}\ns_add_u32 s8, s95, {(2*ks + h)*7168}\nbuffer_load_dwordx4 v9, {srd(S_W2)}, s8 offen lds", ("W2", ks)) for h in range(2)]
def w2_tr(ks, pc):
    kind, slot, idx = pc
    r = W2R + 8*ks
    off = XRING + slot*16384 if kind == "X" else slot*32768 + idx*2048
    b = 5 if kind == "X" else 7
    return [f"ds_read_b64_tr_b16 v[{r+4*mt+2*t}:{r+4*mt+2*t+1}], v{b+mt} offset:{off + t*1024}" for mt in range(2) for t in range(2)]
SETA = [("X", 1, 0), ("W", 1, 0), ("W", 1, 1)]
SETC = [("X", 0, 0), ("W", 0, 0), ("W", 0, 1)]
PX2 = ("X", 2, 0)

def g1_epilogue(a):
    e = a.e; x = a.x
    a.c("--- GEMM1 epilogue")
    if O.ep: e("s_setprio 2")
    T = 80
    e("v_lshrrev_b32 v2, 5, v1\nv_and_b32 v3, 31, v1")
    e(f"s_lshl_b32 s8, s5, 7\ns_add_u32 s8, s8, {L_C2}\nv_lshl_add_u32 v4, v2, 4, s8")
    for j in range(2):
        for mat in range(2):
            for q in range(2):
                r = T + ((j*2 + mat)*2 + q)*4
                e(f"ds_read_b128 v[{r}:{r+3}], v4 offset:{mat*512 + j*64 + q*32}")
    e(f"s_lshl_b32 s8, s4, 9\ns_add_u32 s8, s8, {L_ST}\nv_lshl_add_u32 v3, v3, 3, s8")
    for t in range(2): e(f"ds_read_b64 v[{T+32+2*t}:{T+33+2*t}], v3 offset:{t*256}")
    e(f"s_mov_b32 s11, {fbits(-LOG2E)}")
    e(f"s_lshl_b32 s8, s6, 2\ns_lshl_b32 s9, s4, 1\ns_add_u32 s8, s8, s9\ns_mul_i32 s12, s8, {HSTR}\ns_lshl_b32 s9, s7, 13\ns_add_u32 s12, s12, s9\ns_lshl_b32 s9, s5, 11\ns_add_u32 s12, s12, s9")
    e(f"s_add_u32 s12, s12, {WS_H}\ns_add_u32 s13, s12, {HSTR}")
    e("s_waitcnt lgkmcnt(0)")
    for t in range(2): e(f"v_mul_f32 v{T+36+t}, s11, v{T+33+2*t}")
    kk = 0
    E = T + 40
    for j in range(2):
        for t in range(2):
            A = g1acc(j, t); mean = T + 32 + 2*t; c1 = T + 36 + t
            cg = T + (j*2)*8; cu = cg + 8
            ops = []
            if O.pk:
                c1p = T + 36; sel = "op_sel_hi:[0,1]" if t == 0 else "op_sel:[1,0] op_sel_hi:[1,1]"
                P2 = lambda r: f"v[{r}:{r+1}]"
                for r in range(0, 8, 2): ops.append(f"v_pk_fma_f32 {P2(A+r)}, {P2(mean)}, {P2(cg+r)}, {P2(A+r)} op_sel_hi:[0,1,1] neg_lo:[1,0,0] neg_hi:[1,0,0]")
                for r in range(0, 8, 2): ops.append(f"v_pk_mul_f32 {P2(E+r)}, {P2(c1p)}, {P2(A+r)} {sel}")
                for r in range(0, 8, 2): ops += [f"v_exp_f32 v{E+r}, v{E+r}", f"v_exp_f32 v{E+r+1}, v{E+r+1}", f"v_pk_fma_f32 {P2(A+8+r)}, {P2(mean)}, {P2(cu+r)}, {P2(A+8+r)} op_sel_hi:[0,1,1] neg_lo:[1,0,0] neg_hi:[1,0,0]"]
                for r in range(0, 8, 2): ops.append(f"v_pk_add_f32 {P2(E+r)}, {P2(E+r)}, 1.0 op_sel_hi:[1,0]")
                for r in range(0, 8, 2): ops += [f"v_rcp_f32 v{E+r}, v{E+r}", f"v_rcp_f32 v{E+r+1}, v{E+r+1}", f"v_pk_mul_f32 {P2(A+r)}, {P2(A+r)}, {P2(A+8+r)}"]
                for r in range(0, 8, 2): ops.append(f"v_pk_mul_f32 {P2(A+r)}, {P2(A+r)}, {P2(E+r)}")
            else:
                for r in range(8): ops.append(f"v_fma_f32 v{A+r}, -v{mean}, v{cg+r}, v{A+r}")
                for r in range(8): ops.append(f"v_mul_f32 v{E+r}, v{c1}, v{A+r}")
                for r in range(8): ops += [f"v_exp_f32 v{E+r}, v{E+r}", f"v_fma_f32 v{A+8+r}, -v{mean}, v{cu+r}, v{A+8+r}"]
                for r in range(8): ops.append(f"v_add_f32 v{E+r}, 1.0, v{E+r}")
                for r in range(8): ops += [f"v_rcp_f32 v{E+r}, v{E+r}", f"v_mul_f32 v{A+r}, v{A+r}, v{A+8+r}"]
                for r in range(8): ops.append(f"v_mul_f32 v{A+r}, v{A+r}, v{E+r}")
            for q in range(4): ops.append(f"v_cvt_pk_bf16_f32 v{A+8+q}, v{A+2*q}, v{A+2*q+1}")
            for i, o_ in enumerate(ops):
                e(o_)
                if i % 5 == 4 and a.w2epi: x(a.w2epi.pop(0))
            x((f"buffer_store_dwordx4 v[{A+8}:{A+11}], v12, {srd(S_WS)}, s{12+t} offen offset:{j*1024} sc1", "HS"))
    e("s_lshl_b32 s8, s6, 1\ns_add_u32 s8, s8, s4\ns_lshl_b32 s8, s8, 10\ns_lshl_b32 s9, s7, 2\ns_add_u32 s9, s9, s5\ns_mul_hi_u32 s10, s9, 0x24924925\ns_mul_i32 s11, s10, 100\ns_lshl_b32 s9, s9, 2\ns_add_u32 s8, s8, s9\ns_add_u32 s8, s8, s11")
    e(f"s_add_u32 s8, s8, {WS_FH}")
    e(f"v_mov_b32 v2, s{S_TOK}\ns_mov_b32 s12, s8")
    a.stamp(18)
    a.wait_vm([("W2", 10)])
    a.stamp(19)
    for k in range(3):
        for o_ in w2_tr(4+k, SETC[k]): e(o_)
    for k in range(3):
        for o_ in w2_tr(7+k, SETA[k]): e(o_)
    for o_ in w2_tr(10, PX2): e(o_)
    e("s_waitcnt vmcnt(0) lgkmcnt(0)")
    a.stamp(20)
    a.vm_reset()
    e(f"buffer_store_dword v2, off, {srd(S_WS)}, s12 sc1")
    for k in range(3):
        for z in w2_dma(11+k, SETC[k]): e(z[0])
    e(f"s_lshl_b32 s8, s3, 2\ns_add_u32 s8, s8, {L_LF + 64}\nv_mov_b32 v3, s8\nds_write_b32 v3, v2")

CR = 16; CS_ = 52; CACC = 104; CB = [88, 92, 96, 100]
def conv_loop(a):
    e = a.e
    a.c("--- conv loop")
    if O.ep: e("s_setprio 0")
    e(f"s_mul_i32 s8, s93, {O.rs}\ns_add_u32 s8, s8, s3\ns_and_b32 s8, s8, 7\ns_lshl_b32 s94, s92, 10\ns_lshl_b32 s8, s8, 7\ns_add_u32 s94, s94, s8\ns_add_u32 s94, s94, {WS_FH - 512}\nv_and_b32 v14, 28, v13\nv_bfe_u32 v15, v1, 3, 1\nv_xor_b32 v15, 1, v15\nv_lshl_or_b32 v14, v15, 9, v14")
    Lskip = a.label("Lnoconv"); Lagain = a.label("Lconv2")
    Lup0 = a.label("Lup0")
    e(f"s_cmp_lt_u32 s3, 4\ns_cbranch_scc1 {Lup0}")
    e(f"s_branch {Lskip}")
    e(f"{Lup0}:")
    e("s_mov_b32 s71, s3")
    e(f"{Lagain}:")
    e("s_bfe_u32 s8, s3, 0x10001\ns_and_b32 s9, s3, 1")
    e("s_lshl_b32 s11, s9, 9\ns_add_u32 s11, s11, 1024\ns_cmp_ge_u32 s71, 4\ns_cselect_b32 s11, s11, 0")
    e("s_cselect_b32 s12, 7, 8")
    e("s_cselect_b64 s[88:89], -1, 0")
    t = 120
    e(f"v_and_b32 v{t}, 15, v1\nv_lshrrev_b32 v{t+1}, 4, v1")
    e(f"v_lshlrev_b32 v{t+2}, s12, v{t+1}\nv_add_u32 v{t+2}, s11, v{t+2}")
    e(f"v_lshl_add_u32 v2, v{t}, 3, v{t+2}\nv_lshlrev_b32 v2, 1, v2")
    e(f"s_mul_i32 s10, s8, {HREG}\ns_add_u32 s10, s10, {L_HA}\nv_add_u32 v2, s10, v2")
    e(f"v_or_b32 v{t+3}, 8, v{t}\nv_cmp_gt_u32 vcc, 8, v{t}\nv_mov_b32 v{t+5}, s9\ns_nop 0")
    e(f"v_cndmask_b32 v{t+4}, 0, 1, vcc")
    e(f"v_cndmask_b32 v{t+3}, v{t}, v{t+3}, s[88:89]\nv_cndmask_b32 v{t+4}, v{t+5}, v{t+4}, s[88:89]")
    e(f"v_sub_u32 v{t+3}, 15, v{t+3}\nv_lshrrev_b32 v{t+5}, 7, v{t+2}\nv_add_u32 v{t+3}, v{t+3}, v{t+5}")
    e(f"v_mul_u32_u24 v{t+4}, {UREG}, v{t+4}")
    e(f"s_mul_i32 s10, s8, {2*UREG}\ns_add_u32 s10, s10, {L_UB}\nv_add_u32 v{t+4}, s10, v{t+4}")
    for k, reg in ((0, 3), (1, 4)):
        e(f"v_add_u32 v{t+5}, {k}, v{t+3}\nv_and_b32 v{t+6}, 15, v{t+5}\nv_lshlrev_b32 v{t+5}, 8, v{t+5}\nv_lshl_or_b32 v{t+5}, v{t+6}, 4, v{t+5}\nv_add_u32 v{reg}, v{t+4}, v{t+5}")
    e("s_mov_b64 vcc, s[88:89]")
    R = CR; S = CS_
    queue = []
    NB = 9
    def rdA(blk):
        it, q = divmod(blk, 8)
        outs = []
        if q == 0 and it > 0: outs.append(8)
        e(f"ds_read_b128 v[{R+4*q}:{R+4*q+3}], v2 offset:{16*blk}"); queue.append(("A", it, q))
    def rdA8(it):
        e(f"ds_read_b128 v[{R+32}:{R+35}], v2 offset:{16*(8*it+8)}"); queue.append(("A", it, 8))
    def rdB(st):
        b = CB[st % 4]; tmp = 10 + (st % 2)
        e(f"v_xor_b32 v{tmp}, {16*(st % 16)}, v{3 if st < 16 else 4}\nds_read_b128 v[{b}:{b+3}], v{tmp}"); queue.append(("B", st))
    def wait_for(tags):
        idx = max([i for i, x_ in enumerate(queue) if x_ in tags], default=-1)
        if idx >= 0:
            e(f"s_waitcnt lgkmcnt({len(queue) - 1 - idx})")
            del queue[:idx+1]
    w2 = []
    w2l = []
    w2late = [z[0] for k in range(3) for z in w2_dma(11+k, SETC[k])]
    def al(k): return f"v_alignbit_b32 v{S+k}, v{R+k}, v{R+k-1}, 16"
    def sA(blk):
        it, q = divmod(blk, 8)
        return (f"ds_read_b128 v[{R+4*q}:{R+4*q+3}], v2 offset:{16*blk}", ("A", it, q))
    def sA8(it): return (f"ds_read_b128 v[{R+32}:{R+35}], v2 offset:{16*(8*it+8)}", ("A", it, 8))
    def sB(st):
        b = CB[st % 4]; tmp = 10 + (st % 2)
        return (f"ds_read_b128 v[{b}:{b+3}], v{tmp}", ("B", st))
    def xB(st): return f"v_xor_b32 v{10 + (st % 2)}, {16*(st % 16)}, v{3 if st < 16 else 4}"
    def L_(item): e(item[0]); queue.append(item[1])
    rdA(0); rdA(1); rdB(0); rdA(2); rdB(1); rdA(3); rdB(2); rdA(4)
    wait_for([("A", 0, 0), ("A", 0, 1)])
    for k in range(2, 8): e(al(k))
    Lout = a.label("Lconvout")
    for st in range(32):
        it, q = divmod(st, 8)
        if q < 7: needA = [("A", it, q+2)] ; nxt = [al(4*(q+1) + 4 + i) for i in range(4)]
        else: needA = [("A", it+1, 0), ("A", it+1, 1)] ; nxt = [al(k) for k in range(2, 8)]
        if st == 31: needA = []; nxt = []
        wait_for(needA + [("B", st)])
        lds = []
        if q <= 2: lds.append(sA(8*it + q + 5))
        elif q == 3: lds.append(sA8(it))
        elif it < 3:
            if q == 4: lds += [sA(8*it + 8), sA(8*it + 9)]
            else: lds.append(sA(8*it + 8 + q - 3))
        Bq = vr(CB[st % 4], 4)
        def C(i): return vr(CACC + 4*i, 4)
        def Cin(i): return C(i) if st else "0"
        e(f"v_mfma_f32_16x16x32_bf16 {C(0)}, {vr(S+4*q+2,4)}, {Bq}, {Cin(0)}")
        if st + 3 < 32: e(xB(st + 3))
        for z in lds: L_(z)
        e(f"v_mfma_f32_16x16x32_bf16 {C(2)}, {vr(S+4*q+4,4)}, {Bq}, {Cin(2)}")
        for z in nxt[:2]: e(z)
        e(f"v_mfma_f32_16x16x32_bf16 {C(1)}, {vr(R+4*q+2,4)}, {Bq}, {Cin(1)}")
        for z in nxt[2:4]: e(z)
        e(f"v_mfma_f32_16x16x32_bf16 {C(3)}, {vr(R+4*q+4,4)}, {Bq}, {Cin(3)}")
        for z in nxt[4:]: e(z)
        if st + 3 < 32: L_(sB(st + 3))
        if st == 15:
            e(f"s_cbranch_vccnz {Lout}")
    e(f"{Lout}:")
    e("s_waitcnt lgkmcnt(0)")
    e(f"s_lshl_b32 s8, s71, 12\ns_add_u32 s8, s8, {L_YB2}")
    e("v_add_u32 v2, s8, v12")
    e("s_nop 5")
    for a2 in range(4): e(f"ds_write_b128 v2, {vr(CACC+4*a2,4)} offset:{a2*1024}")
    e(f"s_lshl_b32 s8, s71, 2\ns_add_u32 s8, s8, {L_LF}\nv_mov_b32 v2, s8\nv_mov_b32 v3, s{S_TOK}")
    e("ds_write_b32 v2, v3")
    e(f"s_cmp_ge_u32 s71, 4\ns_cbranch_scc1 {Lskip}")
    e("s_add_u32 s71, s71, 4")
    Lw = a.label("Luf"); Lok = a.label("Lufok")
    e(f"s_and_b32 s8, s3, 2\ns_lshl_b32 s8, s8, 2\ns_add_u32 s8, s8, {L_LF + 64}\nv_and_b32 v3, 1, v1\nv_lshl_add_u32 v3, v3, 2, s8\ns_lshl_b32 s8, s71, 2\ns_add_u32 s8, s8, {L_LF + 64}\nv_writelane_b32 v3, s8, 2\ns_mov_b32 s9, 0")
    e(f"{Lw}:")
    e("ds_read_b32 v4, v3\ns_waitcnt lgkmcnt(0)")
    e(f"v_cmp_ne_u32 vcc, s{S_TOK}, v4\ns_cbranch_vccz {Lok}")
    e(f"s_add_u32 s9, s9, 1\ns_cmp_lt_u32 s9, {O.spin*50}\ns_cbranch_scc1 {Lw}")
    e(f"{Lok}:")
    e(f"s_branch {Lagain}")
    e(f"{Lskip}:")

def conv_final(a):
    e = a.e
    a.c("--- conv finalize")
    Lw = a.label("Llf"); Lok = a.label("Llfok")
    e(f"v_and_b32 v2, 7, v1\nv_lshlrev_b32 v2, 2, v2\nv_add_u32 v2, {L_LF}, v2")
    e("s_mov_b32 s12, 0x33\ns_lshl_b32 s13, s5, 1\ns_lshl_b32 s12, s12, s13\ns_mov_b32 s9, 0")
    e(f"{Lw}:")
    e("ds_read_b32 v3, v2\ns_waitcnt lgkmcnt(0)")
    e(f"v_cmp_ne_u32 vcc, s{S_TOK}, v3\ns_and_b32 s8, vcc_lo, s12\ns_cbranch_scc0 {Lok}")
    e(f"s_add_u32 s9, s9, 1\ns_cmp_lt_u32 s9, {O.spin*50}\ns_cbranch_scc1 {Lw}")
    e(f"{Lok}:")
    a.stamp(11)
    e(f"s_lshl_b32 s8, s5, 13\ns_lshl_b32 s11, s4, 9\ns_add_u32 s8, s8, s11\ns_add_u32 s8, s8, {L_YB}")
    e("v_add_u32 v2, s8, v13\nv_subrev_u32 v3, 128, v2")
    JM = [0, 1, 4, 5]
    e("v_lshrrev_b32 v16, 2, v1\nv_and_b32 v17, 3, v1\nv_sub_u32 v18, 15, v16")
    e(f"s_mul_i32 s12, s5, {2*UREG}\ns_add_u32 s12, s12, {L_UB + UREG}")
    for rr in range(2):
        Y = 24 + 28*rr
        for b in range(2):
            for a2 in range(4):
                e(f"ds_read_b32 v{Y + JM[a2] + 2*b}, v2 offset:{b*4096 + a2*1024 + rr*256}")
        e(f"s_lshl_b32 s11, s4, 3\ns_sub_u32 s11, {15 - 4*rr}, s11")
        e(f"v_sub_u32 v19, s11, v17\nv_xor_b32 v19, v19, v18\nv_lshlrev_b32 v20, 8, v18\nv_lshl_add_u32 v19, v19, 4, v20\nv_add_u32 v19, s12, v19")
        e(f"ds_read_b128 v[{Y+24}:{Y+27}], v19")
    e("s_mov_b32 exec_lo, 0")
    for rr in range(2):
        Y = 24 + 28*rr
        for u in range(2):
            for b in range(2):
                for a2 in range(4):
                    e(f"ds_read_b32 v{Y + 8 + 8*u + JM[a2] + 2*b}, v{2 if b == 0 else 3} offset:{16384 + u*4096 + a2*1024 + rr*256}")
    e("s_waitcnt lgkmcnt(0)")
    for rr in range(2):
        Y = 24 + 28*rr
        for j in range(8): e(f"v_add_f32 v{Y+8+j}, v{Y+8+j}, v{Y+16+j}\nv_add_f32 v{Y+j}, v{Y+j}, v{Y+8+j}")
    e("s_mov_b32 exec_lo, -1")
    e(f"s_lshl_b32 s8, s3, 2\ns_add_u32 s8, s8, {L_LF + 48}\nv_mov_b32 v2, s8\nv_mov_b32 v3, s{S_TOK}\nds_write_b32 v2, v3")
    e("v_lshlrev_b32 v0, 16, v0")
    e(f"s_lshl_b32 s10, s2, 1\ns_add_u32 s10, s10, s5\ns_lshl_b32 s10, s10, 12\ns_lshl_b32 s11, s4, 7\ns_add_u32 s10, s10, s11\ns_add_u32 s10, s10, {WS_Y}")
    e("v_lshlrev_b32 v16, 8, v16\nv_lshl_add_u32 v16, v17, 4, v16")
    for rr in range(2):
        Y = 24 + 28*rr
        for q in range(4):
            e(f"v_lshlrev_b32 v{Y+8}, 16, v{Y+24+q}\nv_and_b32 v{Y+9}, s14, v{Y+24+q}")
            e(f"v_fmac_f32 v{Y+7-2*q}, v0, v{Y+8}\nv_fmac_f32 v{Y+6-2*q}, v0, v{Y+9}")
        for q in range(4): e(f"v_cvt_pk_bf16_f32 v{Y+12+q}, v{Y+2*q}, v{Y+2*q+1}")
        e(f"buffer_store_dwordx4 v[{Y+12}:{Y+15}], v16, {srd(S_WS)}, s10 offen offset:{rr*64} sc1")
    e("s_nop 1")

def gemm2(a):
    e = a.e; x = a.x
    a.c("=== GEMM2 (8-way K split, register streams) ===")
    AC = 16; HB = 80; ND = 8
    def hbuf(s): return s if s < 8 else (s - 6 if s < 12 else s - 12)
    Llo = a.label("Llo"); Lgo = a.label("Lgo")
    e(f"s_cmp_lt_u32 s3, 4\ns_cbranch_scc1 {Llo}")
    e(f"s_sleep {O.fhd}")
    e(poll_ins(15, 14, 94))
    e("s_waitcnt vmcnt(0)")
    for k in range(3):
        for o_ in w2_tr(11+k, SETC[k]): e(o_)
    poll_check(a, 15, 14, 94, 0x7f7f)
    e(f"s_lshl_b32 s8, s3, 2\ns_add_u32 s8, s8, {L_LF + 144 - 16}\nv_mov_b32 v2, s8\nv_mov_b32 v3, s{S_TOK}\nds_write_b32 v2, v3")
    e(f"s_branch {Lgo}")
    e(f"{Llo}:")
    e("s_waitcnt vmcnt(0)")
    for k in range(3):
        for o_ in w2_tr(11+k, SETC[k]): e(o_)
    conv_final(a)
    a.stamp(12)
    Lw4 = a.label("Llf4")
    e(f"s_lshl_b32 s8, s3, 2\ns_add_u32 s8, s8, {L_LF + 144}\nv_mov_b32 v2, s8\ns_mov_b32 s9, 0")
    e(f"{Lw4}:")
    e("ds_read_b32 v3, v2\ns_waitcnt lgkmcnt(0)")
    e(f"v_cmp_ne_u32 vcc, s{S_TOK}, v3\ns_cbranch_vccz {Lgo}")
    e(f"s_add_u32 s9, s9, 1\ns_cmp_lt_u32 s9, {O.spin*500}\ns_cbranch_scc1 {Lw4}")
    e(f"{Lgo}:")
    a.stamp(13)
    a.vm_reset()
    e(f"s_mul_i32 s8, s93, {O.rs}\ns_add_u32 s8, s8, s3\ns_and_b32 s8, s8, 7\ns_mul_i32 s9, s8, 14336\ns_mul_i32 s88, s92, {2*HSTR}\ns_add_u32 s88, s88, s9")
    e(f"s_add_u32 s88, s88, {WS_H}\ns_add_u32 s89, s88, {HSTR}")
    def hload(s):
        o = []
        for t in range(2):
            r = HB + ((s % ND)*2 + t)*4
            if s*1024 <= 4095: o.append((f"buffer_load_dwordx4 v[{r}:{r+3}], v12, {srd(S_WS)}, s{88+t} offen offset:{s*1024}{O.scl}", ("H", s)))
            else: o.append((f"s_add_u32 s8, s{88+t}, {s*1024}\nbuffer_load_dwordx4 v[{r}:{r+3}], v12, {srd(S_WS)}, s8 offen{O.scl}", ("H", s)))
        return o
    e("s_waitcnt lgkmcnt(0)")
    for s in range(ND):
        for z in hload(s): x(z)
    x((f"s_add_u32 m0, s91, {WRING}\ns_add_u32 s8, s88, 8192\n" + "\n".join(f"buffer_load_dwordx4 v12, {srd(S_WS)}, s8 offen offset:{i*1024}{O.scl} lds" for i in range(4)), "HL", 4))
    for hh in range(2):
        x((f"s_add_u32 m0, s90, {16384*(1+hh)}\ns_add_u32 s8, s89, {8192 + hh*2048}\n" + "\n".join(f"buffer_load_dwordx4 v12, {srd(S_WS)}, s8 offen offset:{i*1024}{O.scl} lds" for i in range(2)), "HL", 2))
    nbase = 0
    e(f"v_add_u32 v6, s90, v12\nv_add_u32 v4, s91, v12")
    e(f"s_lshl_b32 s94, s93, 7\ns_and_b32 s8, s92, 7\ns_lshl_b32 s8, s8, 10\ns_add_u32 s94, s94, s8\ns_add_u32 s94, s94, {WS_FY}\nv_and_b32 v14, 124, v13")
    a.lq = []
    def conv(s): return []
    Lpr = a.label("Lpr")
    if O.g2p: e(f"s_cmp_lt_u32 s3, 4\ns_cbranch_scc1 {Lpr}\ns_setprio 2\n{Lpr}:")
    for z in conv(0) + conv(1): x(z)
    e("v_lshrrev_b32 v0, 3, v1\nv_and_b32 v2, 7, v1\ns_lshl_b32 s8, s3, 3\nv_add_u32 v0, s8, v0")
    e("v_mul_u32_u24 v3, 896, v0\nv_lshl_add_u32 v3, v2, 4, v3")
    e("s_mul_i32 s43, s92, 57344\ns_lshl_b32 s9, s93, 7\ns_add_u32 s43, s43, s9")
    for s in range(14):
        if not (8 <= s < 12): a.wait_vm([("H", s)])
        else: a.wait_l(("HR", s))
        a.wait_l(("CV", s))
        if s == O.fys:
            L = a.label("Lfy")
            e(f"s_cmp_ge_u32 s3, 4\ns_cbranch_scc1 {L}")
            e(f"s_waitcnt vmcnt({len(a.vm) - nbase})")
            e(f"v_mov_b32 v15, {L_LF + 128}\nv_mov_b32 v7, 1\ns_mov_b64 exec, 1\nds_add_rtn_u32 v7, v15, v7\ns_mov_b64 exec, -1\ns_waitcnt lgkmcnt(0)")
            e(f"v_readfirstlane_b32 s8, v7\ns_cmp_lg_u32 s8, 3\ns_cbranch_scc1 {L}")
            e(f"s_lshl_b32 s8, s2, 2\ns_add_u32 s8, s8, {WS_FY}\nv_mov_b32 v15, s{S_TOK}\nv_and_b32 v7, 7, v1\nv_lshlrev_b32 v7, 10, v7")
            e(f"buffer_store_dword v15, v7, {srd(S_WS)}, s8 offen sc1")
            e(f"{L}:")
        cv = conv(s + 2) if s + 2 < 14 else []
        k = 0
        for mt in range(2):
            for t in range(2):
                C = vr(AC + (mt*2 + t)*16, 16)
                e(f"v_mfma_f32_32x32x16_bf16 {C}, {vr(W2R + 8*s + 4*mt, 4)}, {vr(HB + (hbuf(s)*2 + t)*4, 4)}, {C if s else 0}")
                for z in cv[2*k:2*k+2]: x(z)
                k += 1
        if s < 2:
            for t in range(2):
                r = HB + (s*2 + t)*4
                x((f"s_add_u32 s8, s{88+t}, {(12+s)*1024}\nbuffer_load_dwordx4 v[{r}:{r+3}], v12, {srd(S_WS)}, s8 offen{O.scl}", ("H", 12+s)))
        if s == 2:
            x((f"buffer_load_dwordx4 v[8:11], v3, {srd(S_X)}, s43 offen", "E"))
            x((f"s_lshl_b32 s70, s92, 10\ns_add_u32 s70, s70, {WS_ST}\nv_lshlrev_b32 v5, 4, v0\nbuffer_load_dwordx4 v[156:159], v5, {srd(S_WS)}, s70 offen sc1", "E"))
        if 5 <= s < 9:
            if s == 5: a.wait_vm(["HL"])
            for t in range(2):
                r = HB + ((s-3)*2 + t)*4
                x([f"ds_read_b128 v[{r}:{r+3}], v4 offset:{WRING + (s-5)*1024}" if t == 0 else f"ds_read_b128 v[{r}:{r+3}], v6 offset:{16384*(1+(s-5)//2) + ((s-5)%2)*1024}", ("HR", s+3)])
    a.stamp(14)
    Llow = a.label("Llow"); Lj = a.label("Lj")
    e(f"s_cmp_lt_u32 s3, 4\ns_cbranch_scc1 {Llow}")
    Lw3 = a.label("Llf3"); Lok3 = a.label("Llf3ok")
    e(f"v_and_b32 v80, 3, v1\nv_lshlrev_b32 v80, 2, v80\nv_add_u32 v80, {L_LF + 48}, v80\ns_mov_b32 s9, 0")
    e(f"{Lw3}:")
    e("ds_read_b32 v81, v80\ns_waitcnt lgkmcnt(0)")
    e(f"v_cmp_ne_u32 vcc, s{S_TOK}, v81\ns_cbranch_vccz {Lok3}")
    e(f"s_add_u32 s9, s9, 1\ns_cmp_lt_u32 s9, {O.spin*50}\ns_cbranch_scc1 {Lw3}")
    e(f"{Lok3}:")
    e(f"s_lshl_b32 s8, s3, 14\ns_add_u32 s8, s8, {81920 - 65536}\nv_add_u32 v80, s8, v12\ns_nop 7")
    for i in range(16): e(f"ds_write_b128 v80, {vr(AC + 4*i, 4)} offset:{i*1024}")
    e(f"s_lshl_b32 s8, s3, 2\ns_add_u32 s8, s8, {L_LF + 16}\nv_mov_b32 v80, s8\nv_mov_b32 v81, s{S_TOK}\nds_write_b32 v80, v81")
    e(f"s_cmp_lg_u32 s3, 4\ns_cbranch_scc1 {Lj}")
    Lchk = a.label("Lfyc"); Lok = a.label("Lfyok")
    e("s_mov_b32 s9, 0")
    e(f"{Lchk}:")
    e(f"s_sleep 12\nbuffer_load_dword v144, v14, {srd(S_WS)}, s94 offen sc1\ns_waitcnt vmcnt(0)")
    e(f"v_cmp_ne_u32 vcc, s{S_TOK}, v144\ns_cbranch_vccz {Lok}")
    e(f"s_add_u32 s9, s9, 1\ns_cmp_gt_u32 s9, {O.spin}\ns_cbranch_scc1 {Lok}")
    e(f"s_branch {Lchk}")
    e(f"{Lok}:")
    e("v_lshrrev_b32 v15, 3, v1\nv_lshlrev_b32 v15, 12, v15\nv_lshl_add_u32 v15, v2, 4, v15")
    e(f"s_lshl_b32 s9, s93, 18\ns_lshl_b32 s10, s92, 7\ns_add_u32 s9, s9, s10\ns_add_u32 s9, s9, {WS_Y}")
    for i in range(8):
        e(f"s_mov_b32 m0, {L_YT + i*1040}\ns_add_u32 s10, s9, {i*32768}\nbuffer_load_dwordx4 v15, {srd(S_WS)}, s10 offen sc1 lds")
    e(f"s_branch {Lj}")
    e(f"{Llow}:")
    Lw = a.label("Llf2"); Lok = a.label("Llf2ok")
    e(f"s_lshl_b32 s8, s3, 2\ns_add_u32 s8, s8, {L_LF + 32}\nv_mov_b32 v4, s8\ns_mov_b32 s9, 0")
    e(f"{Lw}:")
    e("ds_read_b32 v5, v4\ns_waitcnt lgkmcnt(0)")
    e(f"v_cmp_ne_u32 vcc, s{S_TOK}, v5\ns_cbranch_vccz {Lok}")
    e(f"s_add_u32 s9, s9, 1\ns_cmp_lt_u32 s9, {O.spin*50}\ns_cbranch_scc1 {Lw}")
    e(f"{Lok}:")
    e("s_lshl_b32 s8, s3, 14\ns_add_u32 s8, s8, 81920\nv_add_u32 v4, s8, v12")
    for i in range(16): e(f"ds_read_b128 v[{80+4*i}:{83+4*i}], v4 offset:{i*1024}")
    for i in range(16):
        e(f"s_waitcnt lgkmcnt({15-i})")
        for r in range(4): e(f"v_add_f32 v{AC+4*i+r}, v{AC+4*i+r}, v{80+4*i+r}")
    e(f"{Lj}:")
    e("s_waitcnt lgkmcnt(0)")
    a.stamp(16)
    e("s_barrier")
    Lnw = a.label("Lnw")
    e(f"s_cmp_ge_u32 s3, 4\ns_cbranch_scc1 {Lnw}")
    e("v_and_b32 v80, 31, v1\nv_lshrrev_b32 v81, 5, v1\nv_mul_u32_u24 v80, 272, v80\nv_lshl_add_u32 v80, v81, 4, v80")
    e("s_mul_i32 s8, s3, 17408\nv_add_u32 v80, s8, v80")
    for mt in range(2):
        for t in range(2):
            for q in range(4):
                e(f"ds_write_b128 v80, {vr(AC + (mt*2+t)*16 + 4*q, 4)} offset:{t*32*272 + mt*128 + q*32}")
    e(f"{Lnw}:")
    e("s_waitcnt vmcnt(0) lgkmcnt(0)")
    e("s_barrier")
    a.stamp(17)
    e(f"v_mul_u32_u24 v82, 1040, v2\nv_lshl_add_u32 v82, v0, 1, v82\nv_add_u32 v82, {L_YT}, v82")
    for i in range(8): e(f"ds_read_u16 v{148+i}, v82 offset:{i*128}")
    e("v_mul_u32_u24 v80, 272, v0\nv_lshl_add_u32 v80, v2, 5, v80")
    for w in range(4):
        for hh in range(2):
            r = 48 + w*8 + hh*4
            e(f"ds_read_b128 v[{r}:{r+3}], v80 offset:{w*17408 + hh*16}")
    e(f"s_mov_b32 s11, {fbits(-LOG2E)}")
    for q in range(4): e(f"v_lshlrev_b32 v{104+2*q}, 16, v{8+q}\nv_and_b32 v{105+2*q}, s14, v{8+q}")
    e("s_waitcnt lgkmcnt(0)")
    for i in range(8): e(f"v_add_f32 v{48+i}, v{48+i}, v{56+i}\nv_add_f32 v{64+i}, v{64+i}, v{72+i}")
    for i in range(8): e(f"v_add_f32 v{32+i}, v{48+i}, v{64+i}")
    e("v_mov_b32 v6, v156\nv_mov_b32 v7, v157")
    e("v_mul_f32 v14, v7, v7\nv_mul_f32 v15, v6, v7")
    for i in range(8): e(f"v_mul_f32 v{32+i}, v14, v{32+i}")
    for i in range(8): e(f"v_mul_f32 v{40+i}, s11, v{32+i}")
    for i in range(8): e(f"v_exp_f32 v{40+i}, v{40+i}\nv_lshlrev_b32 v{96+i}, 16, v{148+i}\nv_fma_f32 v{112+i}, v{104+i}, v7, -v15")
    for i in range(8): e(f"v_add_f32 v{40+i}, 1.0, v{40+i}\nv_mul_f32 v{112+i}, v{112+i}, v{96+i}")
    for i in range(8): e(f"v_rcp_f32 v{40+i}, v{40+i}\nv_mul_f32 v{112+i}, v{112+i}, v{32+i}")
    e("s_nop 0")
    for i in range(8): e(f"v_fma_f32 v{104+i}, v{112+i}, v{40+i}, v{104+i}")
    for q in range(4): e(f"v_cvt_pk_bf16_f32 v{120+q}, v{104+2*q}, v{105+2*q}")
    e(f"buffer_store_dwordx4 v[120:123], v3, {srd(S_OUT)}, s43 offen")
    a.stamp(15)

def aux_path(a):
    e = a.e; x = a.x
    a.c("=== AUX ===")
    a.vm_reset()
    e("s_sub_u32 s4, s2, 224\ns_lshl_b32 s5, s4, 3\ns_add_u32 s5, s5, s3")
    Lnt = a.label("Lnt")
    e(f"s_cmp_lg_u32 s5, 0\ns_cbranch_scc1 {Lnt}")
    e("s_memrealtime s[8:9]\ns_waitcnt lgkmcnt(0)\ns_or_b32 s8, s8, 1\nv_mov_b32 v2, s8")
    e(f"buffer_store_dword v2, off, {srd(S_DBG)}, 0 sc1")
    e(f"{Lnt}:")
    e("v_lshrrev_b32 v2, 3, v1\nv_and_b32 v3, 7, v1\nv_lshrrev_b32 v4, 4, v1\nv_and_b32 v5, 15, v1")
    e("s_and_b32 s8, s4, 7\ns_lshr_b32 s9, s4, 3\ns_lshr_b32 s10, s8, 1\ns_lshl_b32 s10, s10, 2\ns_add_u32 s10, s10, s9")
    e("s_and_b32 s8, s8, 1\ns_mul_i32 s8, s8, 14\ns_add_u32 s12, s8, s10")
    e("s_cmp_ge_u32 s10, 14\ns_cselect_b32 s13, 0x80000000, 0")
    e("v_mul_u32_u24 v7, 3584, v2\nv_lshl_add_u32 v7, v3, 4, v7\nv_or_b32 v7, s13, v7")
    e("s_and_b32 s8, s4, 7\ns_lshl_b32 s8, s8, 8\ns_lshr_b32 s9, s4, 3\ns_lshl_b32 s9, s9, 6\ns_add_u32 s8, s8, s9\ns_lshl_b32 s9, s3, 3\ns_add_u32 s6, s8, s9")
    e("v_mul_u32_u24 v8, 896, v2\nv_lshl_add_u32 v8, v3, 4, v8\ns_mul_i32 s7, s6, 896")
    e("s_and_b32 s8, s3, 3\ns_mul_i32 s8, s8, 28672\ns_lshl_b32 s9, s12, 7\ns_add_u32 s8, s8, s9")
    for i in range(14):
        x((f"s_add_u32 s9, s8, {i*114688}\nbuffer_load_dwordx4 v[{48+4*i}:{51+4*i}], v7, {srd(S_WSEL)}, s9 offen", ("CS", i)))
        if i == O.apace:
            a.wait_vm([("CS", O.apace)])
            x((f"buffer_load_dword v15, off, {srd(S_DBG)}, 0 sc1", "TOK"))
    for j in range(7):
        x((f"buffer_load_dwordx4 v[{104+4*j}:{107+4*j}], v8, {srd(S_X)}, s7 offen offset:{j*128}", "XS"))
    C = 16
    for i in range(14):
        a.wait_vm([("CS", i)])
        for q in range(4):
            r = 48 + 4*i + q
            if i == 0: e(f"v_lshlrev_b32 v{C+2*q}, 16, v{r}\nv_and_b32 v{C+2*q+1}, s14, v{r}")
            else: e(f"v_lshlrev_b32 v{24+2*q}, 16, v{r}\nv_and_b32 v{25+2*q}, s14, v{r}")
        if i:
            for q in range(8): e(f"v_add_f32 v{C+q}, v{C+q}, v{24+q}")
    a.stamp(3)
    e("s_nop 1")
    for q in range(4): e(f"v_permlane32_swap_b32 v{C+q}, v{C+4+q}")
    e("s_nop 1")
    for q in range(4): e(f"v_add_f32 v{C+q}, v{C+q}, v{C+4+q}")
    e("s_nop 1")
    for q in range(2): e(f"v_permlane16_swap_b32 v{C+q}, v{C+2+q}")
    e("s_nop 1")
    for q in range(2): e(f"v_add_f32 v{C+q}, v{C+q}, v{C+2+q}")
    e("s_nop 1")
    for q in range(2): e(f"v_add_f32_dpp v{C+q}, v{C+q}, v{C+q} row_ror:8 row_mask:0xf bank_mask:0xf")
    e("v_lshrrev_b32 v24, 5, v1\nv_bfe_u32 v25, v1, 4, 1\nv_lshlrev_b32 v26, 5, v3\nv_lshl_add_u32 v26, v24, 4, v26\nv_lshl_add_u32 v26, v25, 3, v26")
    e("s_lshl_b32 s8, s3, 8\nv_add_u32 v26, s8, v26")
    e(f"ds_write_b64 v26, v[{C}:{C+1}]")
    e("s_waitcnt lgkmcnt(0)\ns_barrier")
    e("s_lshr_b32 s8, s3, 2\ns_lshl_b32 s9, s8, 10\nv_add_u32 v26, s9, v13")
    for q in range(4): e(f"ds_read_b32 v{28+q}, v26 offset:{q*256}")
    e("s_and_b32 s9, s3, 3\ns_cmp_lg_u32 s9, 0\ns_cselect_b32 s9, 0x80000000, s13\nv_lshlrev_b32 v27, 3, v1\nv_or_b32 v27, s9, v27")
    e("s_mov_b32 s10, s8")
    a.wait_vm(["TOK"])
    token_get(a, 15)
    e("s_waitcnt lgkmcnt(0)")
    e(f"v_add_f32 v28, v28, v29\nv_add_f32 v30, v30, v31\nv_add_f32 v28, v28, v30\nv_mov_b32 v29, s{S_TOK}")
    e(f"s_mul_i32 s8, s10, 14336\ns_lshl_b32 s9, s12, 9\ns_add_u32 s8, s8, s9\ns_add_u32 s8, s8, {WS_CS}")
    x((f"buffer_store_dwordx2 v[28:29], v27, {srd(S_WS)}, s8 offen sc1", "CST"))
    a.wait_vm(["XS"])
    e("v_mov_b32 v36, 0x3f803f80\nv_mov_b32 v32, 0\nv_mov_b32 v33, 0\nv_mov_b32 v34, 0\nv_mov_b32 v35, 0")
    for r in range(104, 132):
        e(f"v_dot2_f32_bf16 v{32 + 2*(r&1)}, v{r}, v36, v{32 + 2*(r&1)}\nv_dot2_f32_bf16 v{33 + 2*(r&1)}, v{r}, v{r}, v{33 + 2*(r&1)}")
    e("s_nop 2\nv_add_f32 v32, v32, v34\nv_add_f32 v33, v33, v35\ns_nop 1")
    for pat in ("quad_perm:[1,0,3,2]", "quad_perm:[2,3,0,1]", "row_half_mirror"):
        e(f"v_add_f32_dpp v32, v32, v32 {pat} row_mask:0xf bank_mask:0xf\nv_add_f32_dpp v33, v33, v33 {pat} row_mask:0xf bank_mask:0xf\ns_nop 1")
    e(f"v_mul_f32 v32, {fbits(1.0/448)}, v32\nv_mul_f32 v33, {fbits(1.0/448)}, v33\nv_fma_f32 v33, -v32, v32, v33\nv_max_f32 v33, 0, v33")
    e(f"v_add_f32 v33, {fbits(1e-5)}, v33\nv_rsq_f32 v33, v33\nv_mov_b32 v34, s{S_TOK}\nv_mov_b32 v35, s{S_TOK}")
    e(f"s_lshl_b32 s8, s6, 4\ns_add_u32 s8, s8, {WS_ST}\nv_lshlrev_b32 v26, 4, v2")
    e(f"buffer_store_dwordx4 v[32:35], v26, {srd(S_WS)}, s8 offen sc1")
    a.stamp(4)

def build():
    a = Gen()
    prologue(a)
    a.e("s_cmp_ge_u32 s2, 224\ns_cbranch_scc1 Laux")
    main_path(a)
    a.stamp_flush()
    a.e("s_endpgm")
    a.e("Laux:")
    aux_path(a)
    a.stamp_flush()
    a.e("Lend:")
    a.e("s_endpgm")
    a.e("Lcode_end:")
    k = NAME + "_kernel"
    out = [f"; @launch grid=(256,1,1) block=(512,1,1) lds={LDS_TOTAL}",
           '.amdgcn_target "amdgcn-amd-amdhsa--gfx950"\n.text', kernel_header(k), a.text(),
           '.section .rodata,"a"', kernel_desc(k, 256, 256)]
    return "\n".join(out) + "\n"

if __name__ == "__main__":
    for arg in sys.argv[1:]:
        if arg == "stamps": O.stamps = True
        elif arg == "cyc": O.cyc = True
        elif arg == "gt": O.gt = True
        elif arg.startswith("gtp="): O.gtp = int(arg[4:])
        elif arg.startswith("glt="): O.glt = int(arg[4:]); O.touch = False
        elif arg.startswith("skp="): O.skp = int(arg[4:])
        elif arg.startswith("wtp="): O.wtp = int(arg[4:])
        elif arg.startswith("ap="): O.apace = int(arg[3:])
        elif arg == "nopk": O.pk = False
        elif arg == "noep": O.ep = False
        elif arg == "hf": O.hfirst = True
        elif arg == "nog2p": O.g2p = False
        elif arg == "noct": O.ctouch = False
        elif arg == "notlb": O.tlb = False
        elif arg == "kd1": O.kd = 1; O.kv0 = False
        elif arg.startswith("rr="): O.rr = int(arg[3:])
        elif arg.startswith("rf="): O.rf = int(arg[3:])
        elif arg.startswith("rs="): O.rs = int(arg[3:])
        elif arg == "nogt": O.gt = False
        elif arg == "kv0": O.kv0 = True; O.kd = 0
        elif arg.startswith("w6="): O.w6 = int(arg[3:])
        elif arg == "sc1": O.scl = " sc1"
        elif arg == "notouch": O.touch = False
        elif arg.startswith("kt="): O.ktail = int(arg[3:])
    print(build())
```

```python
import sys, struct
from asmlib import *

NAME = "recurrent_scan__ssm_conv_h3__glu_gated_swiglu__prompt"
WS_KV = 0
WS_W2F = 2 << 20
WS_Y = 4 << 20
WS_ST = 6 << 20
WS_CS = (6 << 20) + 65536
WS_FLAG = (6 << 20) + 131072
WS_F1 = WS_FLAG
WS_FK = WS_FLAG + 65536
WS_FW = WS_FLAG + 2048
WS_FH = WS_FLAG + 32768
WS_FY = WS_FLAG + 16384
WS_H = 8 << 20
HSTR = 114688 + 128
WS_STAMP = 22 << 20
WS_SIZE = 24 << 20

S_X, S_WSEL, S_WS, S_K, S_V, S_SHK, S_SSMD, S_W2, S_OUT, S_DBG = 44, 48, 52, 56, 60, 64, 72, 76, 80, 84
S_T0 = 96
S_TOK = 42
def srd(b): return f"s[{b}:{b+3}]"
LOG2E = 1.4426950408889634
def fbits(f): return "0x%08x" % struct.unpack("<I", struct.pack("<f", f))[0]

class Opt: pass
O = Opt()
O.w6 = 0; O.hb = 3; O.glt = -1; O.skp = -5; O.wtp = 2; O.gtp = 0; O.fhd = 8; O.g2p = False; O.pk = True; O.ep = True; O.hfirst = False; O.tlb = True; O.ctouch = True; O.cvs = [0, 3, 6, 8, 10]; O.w4 = 4; O.chk = 8; O.rr = 0; O.rf = 0; O.rs = 0; O.gt = False; O.apace = 1; O.ebar = 1; O.kd = 0; O.kv0 = True; O.fys = 0; O.stamps = False; O.cyc = False; O.spin = 20000; O.scl = " sc1"; O.cp = True; O.touch = True; O.ktail = 6

STAMP_REGS = [16,17,18,19,20,21,22,23,26,27,28,29,30,31,32,33,34,35,36,37,38,39]
class Gen(Asm):
    def __init__(self):
        super().__init__()
        self.vm = []
        self.lq = []
    def x(self, item):
        if isinstance(item, tuple):
            self.e(item[0]); self.vm.extend([item[1]] * (item[2] if len(item) > 2 else 1))
        elif isinstance(item, list): self.l(item[0], item[1])
        else:
            self.e(item)
            for ln in item.split("\n"):
                if ln.startswith("ds_"): self.lq.append(None)
    def wait_vm(self, tags, extra=""):
        idx = -1
        for t in tags:
            ii = [i for i, v in enumerate(self.vm) if v == t]
            assert ii, t
            idx = max(idx, ii[-1])
        self.e(f"s_waitcnt vmcnt({min(63, len(self.vm) - 1 - idx)}){extra}")
    def vm_reset(self): self.vm = []
    def l(self, text, tag=None):
        self.e(text); self.lq.append(tag)
    def wait_l(self, tag):
        ii = [i for i, v in enumerate(self.lq) if v == tag]
        if not ii: return
        n = len(self.lq) - 1 - ii[-1]
        self.e(f"s_waitcnt lgkmcnt({min(15, n)})")
        if n <= 15: del self.lq[:ii[-1]+1]
    def stamp(self, idx):
        if not O.stamps: return
        self.e(("s_memtime" if O.cyc else "s_memrealtime") + " s[100:101]\ns_waitcnt lgkmcnt(0)")
        self.e(f"s_mov_b32 s{STAMP_REGS[idx]}, s100")
    def stamp_flush(self):
        if not O.stamps: return
        self.e("v_mov_b32 v2, 0")
        for i, r in enumerate(STAMP_REGS): self.e(f"v_writelane_b32 v2, s{r}, {i}")
        self.e(f"s_lshl_b32 s8, s2, 3\ns_add_u32 s8, s8, s3\ns_lshl_b32 s8, s8, 8\ns_add_u32 s8, s8, {WS_STAMP}")
        self.e("v_lshlrev_b32 v3, 2, v1")
        self.e(f"buffer_store_dword v2, v3, {srd(S_WS)}, s8 offen")
    def interleave(self, main, other, per=None):
        other = list(other)
        if per is None: per = max(1, -(-len(other) // max(1, len(main))))
        for m in main:
            self.x(m)
            for _ in range(per):
                if other: self.x(other.pop(0))
        for o in other: self.x(o)

XRING = 0; WRING = 49152
L_SP = 147456
L_KT = L_SP
L_HA = L_SP
HREG = 5120
L_CS = L_SP + 10240; L_ST = L_CS + 2048; L_C2 = L_ST + 1024; L_LF = L_C2 + 1024
L_UB = WRING + 65536
UREG = 6144
L_YB = WRING + 32768
L_YB2 = L_YB
L_YT = L_SP
LDS_TOTAL = L_SP + 10240 + 4096 + 256

def merge(x, y):
    o = []
    for i in range(max(len(x), len(y))):
        if i < len(x): o.append(x[i])
        if i < len(y): o.append(y[i])
    return o

def prologue(a):
    e = a.e
    e("s_cmp_ge_u32 s2, 256\ns_cbranch_scc1 Lend")
    e("s_load_dwordx16 s[16:31], s[0:1], 0")
    e("s_load_dwordx8 s[32:39], s[0:1], 64")
    e("s_load_dwordx2 s[40:41], s[0:1], 96")
    if O.ctouch:
        e("Lpc0:\ns_getpc_b64 s[8:9]")
        e("v_lshlrev_b32 v3, 7, v0\nv_min_u32 v3, Lcode_end-Lpc0-8, v3")
        e("global_load_dword v140, v3, s[8:9]")
    e("v_and_b32 v1, 63, v0\nv_lshrrev_b32 v2, 6, v0\ns_nop 0\nv_readfirstlane_b32 s3, v2")
    e("v_lshlrev_b32 v12, 4, v1\nv_lshlrev_b32 v13, 2, v1\ns_mov_b32 s14, 0xffff0000")
    e("s_waitcnt lgkmcnt(0)")
    e("s_memrealtime s[0:1]")
    def mk(b, p, size):
        e(f"s_mov_b32 s{b}, s{p}\ns_mov_b32 s{b+1}, s{p+1}\ns_mov_b32 s{b+2}, {size}\ns_mov_b32 s{b+3}, 0x20000")
    mk(S_X, 16, 1835008)
    e("s_cmp_ge_u32 s3, 4")
    e(f"s_cselect_b32 s{S_WSEL}, s32, s30\ns_cselect_b32 s{S_WSEL+1}, s33, s31")
    e(f"s_mov_b32 s{S_WSEL+2}, 1605632\ns_mov_b32 s{S_WSEL+3}, 0x20000")
    mk(S_WS, 40, WS_SIZE)
    mk(S_K, 18, 1835008); mk(S_V, 20, 1835008); mk(S_SHK, 22, 3584)
    mk(S_SSMD, 26, 896); mk(S_W2, 34, 1605632); mk(S_OUT, 36, 1835008); mk(S_DBG, 38, 256)
    e("s_waitcnt lgkmcnt(0)")
    if O.stamps:
        for r in STAMP_REGS: e(f"s_mov_b32 s{r}, 0")
    a.stamp(0)

def poll_ins(vflag, voff, soff, wide=False):
    if wide: return f"buffer_load_dwordx4 v[{vflag}:{vflag+3}], v{voff}, {srd(S_WS)}, s{soff} offen sc1"
    return f"buffer_load_dword v{vflag}, v{voff}, {srd(S_WS)}, s{soff} offen sc1"

def poll_check(a, vflag, voff, soff, nlanes, wide=False):
    e = a.e
    Lchk = a.label("Lchk"); Lok = a.label("Lok")
    e("s_mov_b32 s9, 0")
    e(f"{Lchk}:")
    if wide:
        for i in range(4): e(f"v_xor_b32 v{vflag+i}, s{S_TOK}, v{vflag+i}")
        e(f"v_or3_b32 v{vflag}, v{vflag}, v{vflag+1}, v{vflag+2}\nv_or_b32 v{vflag}, v{vflag}, v{vflag+3}")
        e(f"v_cmp_ne_u32 vcc, 0, v{vflag}")
    else:
        e(f"v_cmp_ne_u32 vcc, s{S_TOK}, v{vflag}")
    mask = (1 << nlanes) - 1 if nlanes <= 64 else nlanes
    if nlanes <= 32 or nlanes > 64: e(f"s_and_b32 s8, vcc_lo, {hex(mask)}")
    else: e(f"s_and_b32 s8, vcc_hi, {hex(mask >> 32)}\ns_or_b32 s8, s8, vcc_lo")
    e(f"s_cmp_eq_u32 s8, 0\ns_cbranch_scc1 {Lok}")
    e(f"s_add_u32 s9, s9, 1\ns_cmp_gt_u32 s9, {O.spin}\ns_cbranch_scc1 {Lok}")
    e("s_sleep 8")
    e(poll_ins(vflag, voff, soff, wide))
    e("s_waitcnt vmcnt(0)")
    e(f"s_branch {Lchk}")
    e(f"{Lok}:")

def token_get(a, vtok):
    e = a.e
    Lt = a.label("Ltok")
    e("s_mov_b32 s9, 0")
    e(f"{Lt}:")
    e(f"v_readfirstlane_b32 s{S_TOK}, v{vtok}")
    e(f"s_sub_u32 s8, s0, s{S_TOK}\ns_cmp_lt_i32 s8, 1000\ns_cselect_b32 s8, s{S_TOK}, 0\ns_cmp_gt_u32 s9, 64\ns_cselect_b32 s8, s{S_TOK}, s8")
    e(f"s_cmp_lg_u32 s8, 0\ns_cbranch_scc1 {Lt}_ok")
    e(f"s_add_u32 s9, s9, 1\ns_cmp_gt_u32 s9, {O.spin}\ns_cbranch_scc1 {Lt}_ok")
    e(f"s_sleep 8\nbuffer_load_dword v{vtok}, off, {srd(S_DBG)}, 0 sc1\ns_waitcnt vmcnt(0)\ns_branch {Lt}")
    e(f"{Lt}_ok:")

def flag_store_w0(a, idx_expr_sreg, base, vtmp):
    L = a.label("Lnf")
    a.e(f"s_cmp_lg_u32 s3, 0\ns_cbranch_scc1 {L}")
    a.e(f"s_lshl_b32 s8, s{idx_expr_sreg}, 2\ns_add_u32 s8, s8, {base}\nv_mov_b32 v{vtmp}, s{S_TOK}")
    a.e(f"buffer_store_dword v{vtmp}, off, {srd(S_WS)}, s8 sc1")
    a.e(f"{L}:")

def stats_row_issue(vdst, vtmp):
    return ("s_lshl_b32 s8, s2, 3\ns_add_u32 s8, s8, s3\ns_mul_i32 s8, s8, 896\n"
            f"v_cmp_gt_u32 vcc, 56, v1\nv_mov_b32 v{vtmp}, 0x80000000\ns_nop 0\nv_cndmask_b32 v{vtmp}, v{vtmp}, v12, vcc\n"
            f"buffer_load_dwordx4 v[{vdst}:{vdst+3}], v{vtmp}, {srd(S_X)}, s8 offen", "STL")

def stats_row_compute(vsrc, t):
    o = []
    o.append(f"v_mov_b32 v{t+2}, 0x3f803f80\nv_mov_b32 v{t}, 0\nv_mov_b32 v{t+1}, 0")
    for q in range(4):
        o.append(f"v_dot2_f32_bf16 v{t}, v{vsrc+q}, v{t+2}, v{t}\nv_dot2_f32_bf16 v{t+1}, v{vsrc+q}, v{vsrc+q}, v{t+1}")
    o.append("s_nop 2")
    for pat in ("quad_perm:[1,0,3,2]", "quad_perm:[2,3,0,1]", "row_half_mirror", "row_mirror"):
        o.append(f"v_add_f32_dpp v{t}, v{t}, v{t} {pat} row_mask:0xf bank_mask:0xf\nv_add_f32_dpp v{t+1}, v{t+1}, v{t+1} {pat} row_mask:0xf bank_mask:0xf\ns_nop 0")
    for sw in ("v_permlane16_swap_b32", "v_permlane32_swap_b32"):
        o.append(f"v_mov_b32 v{t+2}, v{t}\nv_mov_b32 v{t+3}, v{t+1}\ns_nop 1\n{sw} v{t}, v{t+2}\n{sw} v{t+1}, v{t+3}\ns_nop 1\nv_add_f32 v{t}, v{t}, v{t+2}\nv_add_f32 v{t+1}, v{t+1}, v{t+3}")
    o.append(f"v_mul_f32 v{t}, {fbits(1.0/448)}, v{t}\nv_mul_f32 v{t+1}, {fbits(1.0/448)}, v{t+1}")
    o.append(f"v_fma_f32 v{t+1}, -v{t}, v{t}, v{t+1}\nv_max_f32 v{t+1}, 0, v{t+1}\nv_add_f32 v{t+1}, {fbits(1e-5)}, v{t+1}\nv_rsq_f32 v{t+1}, v{t+1}")
    o.append((f"s_lshl_b32 s8, s2, 3\ns_add_u32 s8, s8, s3\ns_lshl_b32 s8, s8, 3\ns_add_u32 s8, s8, {WS_ST}\nbuffer_store_dwordx2 v[{t}:{t+1}], off, {srd(S_WS)}, s8 sc1", "STS"))
    return o

W2R = 144; XF = 144; ASET = [80, 88, 96, 104]; ET = 112
def gacc(h, j): return 16 + h*32 + j*16
def slot_of(u): return (u % 9) * 16384

def _w2(ebase, eoff, half, mbase, moff, tag):
    pre = f"s_add_u32 s8, {ebase}, {eoff}\ns_lshr_b32 s9, s8, 2\ns_lshl_b32 s9, s9, 2\ns_add_u32 s8, s8, s9\ns_mul_i32 s8, s8, 14336\ns_add_u32 s8, s8, s69\n"
    body = "\n".join(f"s_add_u32 m0, {mbase}, {moff + hh*1024}\ns_add_u32 s9, s8, {half*57344 + hh*7168}\nbuffer_load_dwordx4 v9, {srd(S_W2)}, s9 offen lds" for hh in range(2))
    return (pre + body, tag, 2)
def w2_shared(k, slot):
    return [_w2("s95", 2*k, 0, "s90", slot*16384, ("W2S", k))]
def w2_own(i, slot):
    return [_w2("s98", i % 14, i // 14, "s99", slot*16384 + (i & 1)*2048, ("W2", i))]
def w2_tr(i, slot):
    r = W2R + 8*(i % 14)
    b = 5 if slot < 4 else 7
    off = (slot % 4) * 16384 + (i & 1)*2048
    return [f"ds_read_b64_tr_b16 v[{r+4*mt+2*t}:{r+4*mt+2*t+1}], v{b+mt} offset:{off + t*1024}" for mt in range(2) for t in range(2)]
SLOT = [3,3,4,4,5,5,6,6,0,0,1,1,2,2] + [3,3,4,4,0,0,1,1,2,2,3,3,4,4]

def epi_ops(h, j, T, pk):
    A = gacc(h, j); mean = ST0; c1 = ST0 + 1; cg = T; cu = T + 8; E = T + 16
    ops = []
    rd = [[f"ds_read_b128 v[{T+(mat*2+q)*4}:{T+(mat*2+q)*4+3}], v13c offset:{mat*512 + h*256 + j*64 + q*32}".replace("v13c", f"v{CSA}"), ("CSR", h, j)] for mat in range(2) for q in range(2)]
    if pk:
        P2 = lambda r: f"v[{r}:{r+1}]"
        for r in range(0, 8, 2): ops.append(f"v_pk_fma_f32 {P2(A+r)}, {P2(mean)}, {P2(cg+r)}, {P2(A+r)} op_sel_hi:[0,1,1] neg_lo:[1,0,0] neg_hi:[1,0,0]")
        for r in range(0, 8, 2): ops.append(f"v_pk_mul_f32 {P2(E+r)}, {P2(mean)}, {P2(A+r)} op_sel:[1,0] op_sel_hi:[1,1]")
        for r in range(0, 8, 2): ops += [f"v_exp_f32 v{E+r}, v{E+r}", f"v_exp_f32 v{E+r+1}, v{E+r+1}", f"v_pk_fma_f32 {P2(A+8+r)}, {P2(mean)}, {P2(cu+r)}, {P2(A+8+r)} op_sel_hi:[0,1,1] neg_lo:[1,0,0] neg_hi:[1,0,0]"]
        for r in range(0, 8, 2): ops.append(f"v_pk_add_f32 {P2(E+r)}, {P2(E+r)}, 1.0 op_sel_hi:[1,0]")
        for r in range(0, 8, 2): ops += [f"v_rcp_f32 v{E+r}, v{E+r}", f"v_rcp_f32 v{E+r+1}, v{E+r+1}", f"v_pk_mul_f32 {P2(A+r)}, {P2(A+r)}, {P2(A+8+r)}"]
        for r in range(0, 8, 2): ops.append(f"v_pk_mul_f32 {P2(A+r)}, {P2(A+r)}, {P2(E+r)}")
    else:
        for r in range(8): ops.append(f"v_fma_f32 v{A+r}, -v{mean}, v{cg+r}, v{A+r}")
        for r in range(8): ops.append(f"v_mul_f32 v{E+r}, v{c1}, v{A+r}")
        for r in range(8): ops += [f"v_exp_f32 v{E+r}, v{E+r}", f"v_fma_f32 v{A+8+r}, -v{mean}, v{cu+r}, v{A+8+r}"]
        for r in range(8): ops.append(f"v_add_f32 v{E+r}, 1.0, v{E+r}")
        for r in range(8): ops += [f"v_rcp_f32 v{E+r}, v{E+r}", f"v_mul_f32 v{A+r}, v{A+r}, v{A+8+r}"]
        for r in range(8): ops.append(f"v_mul_f32 v{A+r}, v{A+r}, v{E+r}")
    for q in range(4): ops.append(f"v_cvt_pk_bf16_f32 v{A+8+q}, v{A+2*q}, v{A+2*q+1}")
    ops.append((f"s_add_u32 s8, s70, {h*57344}\nbuffer_store_dwordx4 v[{A+8}:{A+11}], v12, {srd(S_WS)}, s8 offen offset:{j*1024} sc1", ("HS", h)))
    return rd, ops
ST0 = 136; CSA = 138

def fh_store(a, h):
    a.e(f"s_add_u32 s8, s71, {h*8192}\nv_mov_b32 v14, s{S_TOK}\nbuffer_store_dword v14, off, {srd(S_WS)}, s8 sc1")

def main_path(a):
    e = a.e; x = a.x
    a.c("=== MAIN: GEMM1 (two passes over f) ===")
    e("s_and_b32 s4, s3, 1\ns_lshr_b32 s5, s3, 1")
    e("s_and_b32 s8, s2, 7\ns_lshr_b32 s9, s2, 3")
    e("s_and_b32 s10, s9, 3\ns_lshr_b32 s11, s9, 2")
    e("s_lshr_b32 s6, s8, 1\ns_lshl_b32 s6, s6, 2\ns_add_u32 s6, s6, s10")
    e("s_and_b32 s7, s8, 1\ns_mul_i32 s7, s7, 7\ns_add_u32 s7, s7, s11")
    e("v_lshrrev_b32 v20, 3, v1\nv_and_b32 v21, 7, v1\nv_lshrrev_b32 v22, 4, v1")
    e("s_lshl_b32 s8, s3, 4")
    e("v_add_u32 v23, s8, v20\nv_mul_u32_u24 v23, 896, v23")
    e("v_xor_b32 v24, v21, v22\nv_lshl_add_u32 v2, v24, 4, v23")
    e("v_xor_b32 v24, 4, v24\nv_lshl_add_u32 v3, v24, 4, v23\nv_add_u32 v3, 7168, v3")
    e("s_and_b32 s8, s3, 3\ns_lshl_b32 s8, s8, 4\nv_add_u32 v23, s8, v20\nv_mul_u32_u24 v23, 3584, v23")
    e("s_lshr_b32 s9, s3, 2\ns_lshl_b32 s9, s9, 1\nv_bfe_u32 v24, v1, 4, 1\nv_or_b32 v24, s9, v24")
    e("v_bfe_u32 v25, v1, 1, 2\nv_xor_b32 v24, v24, v25\nv_and_b32 v26, 1, v1\nv_lshl_or_b32 v27, v24, 1, v26\nv_lshl_add_u32 v4, v27, 4, v23")
    e("s_mul_i32 s88, s6, 114688\ns_lshl_b32 s89, s7, 8\ns_lshl_b32 s90, s3, 11\ns_lshl_b32 s91, s3, 12")
    def dma(u):
        if u < 14 and u % 2 == 0:
            c = u // 2
            return [(f"s_add_u32 m0, s90, {slot_of(u) + ee*1024}\ns_add_u32 s8, s88, {c*128}\nbuffer_load_dwordx4 v{2+ee}, {srd(S_X)}, s8 offen lds", ("U", u)) for ee in range(2)]
        c, h = ((u - 1) // 2, 0) if u < 14 else (u - 14, 1)
        return [(f"s_add_u32 m0, s90, {slot_of(u) + ee*1024}\ns_add_u32 s8, s89, {(64*c + 8*ee)*3584 + h*128}\nbuffer_load_dwordx4 v4, {srd(S_WSEL)}, s8 offen lds", ("U", u)) for ee in range(2)]
    for u in range(9):
        for s in dma(u): x(s)
    if O.tlb:
        Lt2 = a.label("Ltlb")
        e(f"s_cmp_lg_u32 s3, 7\ns_cbranch_scc1 {Lt2}")
        e(f"buffer_load_dword v140, off, {srd(S_SSMD)}, 0\nbuffer_load_dword v140, off, {srd(S_OUT)}, 0")
        e(f"v_lshlrev_b32 v25, 21, v1\nv_add_u32 v25, {(2<<20) - 128}, v25\nv_subrev_u32 v26, 4, v1\nv_mul_u32_u24 v26, {8*HSTR}, v26\nv_add_u32 v26, {WS_H + 114688}, v26")
        e("v_cmp_gt_u32 vcc, 4, v1\ns_nop 1\nv_cndmask_b32 v25, v26, v25, vcc\nv_cmp_gt_u32 vcc, 12, v1\nv_mov_b32 v26, 0x80000000\ns_nop 0\nv_cndmask_b32 v25, v26, v25, vcc")
        e(f"buffer_load_dword v140, v25, {srd(S_WS)}, 0 offen")
        e(f"{Lt2}:")
    e("s_mul_hi_u32 s12, s2, 0x24924925\ns_mul_i32 s13, s12, 7\ns_sub_u32 s13, s2, s13")
    e("v_and_b32 v23, 31, v1\nv_lshrrev_b32 v24, 5, v1")
    e("v_mul_u32_u24 v25, 3584, v24\nv_lshl_add_u32 v25, v23, 2, v25")
    e("s_mul_i32 s8, s12, 57344\ns_lshl_b32 s9, s13, 7\ns_add_u32 s8, s8, s9\ns_mul_i32 s9, s3, 7168\ns_add_u32 s8, s8, s9")
    e("v_add_u32 v112, s8, v25\nv_lshlrev_b32 v113, 4, v23")
    e(f"s_lshl_b32 s8, s3, 4\ns_sub_u32 s8, {L_KT + 120}, s8\nv_mul_u32_u24 v114, 272, v23\nv_lshlrev_b32 v25, 3, v24\nv_sub_u32 v114, v114, v25\nv_add_u32 v114, s8, v114")
    e(f"s_mul_i32 s8, s3, 1088\ns_add_u32 s8, s8, {L_KT}\nv_mul_u32_u24 v115, 136, v20\nv_lshl_add_u32 v115, v21, 4, v115\nv_add_u32 v115, s8, v115")
    e("v_lshlrev_b32 v116, 12, v20\nv_lshl_add_u32 v116, v21, 4, v116")
    e("s_lshl_b32 s15, s13, 18\ns_lshl_b32 s9, s3, 15\ns_add_u32 s15, s15, s9\ns_sub_u32 s9, 31, s12\ns_lshl_b32 s9, s9, 7\ns_add_u32 s15, s15, s9")
    e("s_lshl_b32 s43, s13, 5\ns_add_u32 s43, s43, s12")
    def kv_loads():
        o = [(f"s_lshl_b32 s8, s13, 9\nbuffer_load_dwordx4 v[60:63], v113, {srd(S_SHK)}, s8 offen", "KVL")]
        for i in range(-3, 0): o.append((f"v_subrev_u32 v117, {-i*896}, v112\nbuffer_load_dword v{51+i}, v117, {srd(S_K)}, 0 offen", "KVL"))
        for i in range(4):
            o.append((f"buffer_load_dword v{51+i}, v112, {srd(S_K)}, 0 offen offset:{i*896}", "KVL"))
            o.append((f"buffer_load_dword v{55+i}, v112, {srd(S_V)}, 0 offen offset:{i*896}", "KVL"))
        return o
    for z in kv_loads(): x(z)
    def kv_compute(c):
        o = []
        def up(d, s_, hi): return f"v_and_b32 v{d}, s14, v{s_}" if hi else f"v_lshlrev_b32 v{d}, 16, v{s_}"
        for j in range(4): o.append(up(64 + j, 60 + 2*c + (j >> 1), j & 1))
        for i in range(7): o.append(up(68 + i, 48 + i, c))
        for i in range(4): o.append(f"v_mul_f32 v{76+i}, v64, v{71+i}")
        for lag in range(1, 4):
            for i in range(4): o.append(f"v_fmac_f32 v{76+i}, v{64+lag}, v{71+i-lag}")
        for i in range(4): o.append(up(68 + i, 55 + i, c))
        for i in range(4): o.append(f"v_mul_f32 v{76+i}, v{76+i}, v{68+i}")
        d = 118 + 2*c
        o += [f"v_cvt_pk_bf16_f32 v{d}, v79, v78", f"v_cvt_pk_bf16_f32 v{d+1}, v77, v76", f"ds_write_b64 v114, v[{d}:{d+1}] offset:{c*136}"]
        return o
    def touches():
        L1 = a.label("Ltsk"); L2 = a.label("Ltw2")
        return ["\n".join([f"s_cmp_lg_u32 s3, 6\ns_cbranch_scc1 {L1}", "s_lshl_b32 s8, s2, 13\nv_lshlrev_b32 v141, 7, v1\nv_add_u32 v141, s8, v141", "global_load_dword v140, v141, s[24:25]", f"{L1}:"]),
                "\n".join([f"s_cmp_lg_u32 s3, 7\ns_cbranch_scc1 {L2}", "s_mul_i32 s8, s2, 7168\nv_lshlrev_b32 v141, 7, v1\nv_min_u32 v141, 7040, v141", f"buffer_load_dword v140, v141, {srd(S_W2)}, s8 offen", f"{L2}:"])]
    e("v_bfe_u32 v25, v1, 1, 3\ns_and_b32 s8, s3, 3\ns_lshl_b32 s8, s8, 12\nv_lshlrev_b32 v26, 7, v23\nv_add_u32 v26, s8, v26\nv_xor_b32 v27, v24, v25\nv_lshl_add_u32 v5, v27, 4, v26")
    e("v_bfe_u32 v23, v1, 4, 1\nv_bfe_u32 v25, v1, 2, 2\nv_bfe_u32 v26, v1, 3, 1\nv_lshl_or_b32 v26, v23, 1, v26")
    e("v_lshl_add_u32 v27, v24, 3, v25\nv_lshlrev_b32 v27, 7, v27\nv_lshl_add_u32 v27, v23, 13, v27\nv_and_b32 v28, 3, v1\nv_lshl_add_u32 v27, v28, 3, v27")
    for j in range(2):
        e(f"s_lshr_b32 s8, s3, 2\ns_lshl_b32 s8, s8, 1\ns_add_u32 s8, s8, {j}\nv_xor_b32 v28, s8, v26\nv_lshl_add_u32 v{142+j}, v28, 5, v27")
    def setcur(q):
        uw = 2*q + 1 if q < 7 else 7 + q
        o = [f"v_add_u32 v10, {slot_of(uw)}, v142", f"v_add_u32 v11, {slot_of(uw)}, v143"]
        if q < 7: o.append(f"v_add_u32 v6, {slot_of(2*q)}, v5")
        return o
    def reads(s):
        q = s // 4; st = s % 4; f = ASET[s % 4]; out = []
        if st == 0: out += setcur(q)
        for j in range(2):
            for t in range(2):
                out.append([f"ds_read_b64_tr_b16 v[{f+4*j+2*t}:{f+4*j+2*t+1}], v{10+j} offset:{(16*st + 4*t)*128}", ("R", s)])
        if q < 7:
            out.append(f"v_xor_b32 v{7 + (s & 1)}, {32*st}, v6")
            out.append([f"ds_read_b128 v[{XF+4*s}:{XF+4*s+3}], v{7 + (s & 1)}", ("R", s)])
        return out
    def mfmas(s):
        h = s // 28; ks = s % 28; f = ASET[s % 4]
        return [f"v_mfma_f32_32x32x16_bf16 {vr(gacc(h, j), 16)}, {vr(f+4*j, 4)}, {vr(XF+4*ks, 4)}, {vr(gacc(h, j), 16) if ks else 0}" for j in range(2)]
    def ha_dma():
        o = ["\n".join([
            "s_lshl_b32 s9, s2, 1\ns_add_u32 s9, s9, s4\ns_lshl_b32 s9, s9, 12",
            f"s_add_u32 s{S_T0}, s24, s9\ns_addc_u32 s{S_T0+1}, s25, 0\ns_mov_b32 s{S_T0+2}, 4096\ns_mov_b32 s{S_T0+3}, 0x20000",
            "s_lshl_b32 s10, s5, 10", f"s_mul_i32 s11, s4, {HREG}\ns_add_u32 s11, s11, {L_HA}", "v_subrev_u32 v14, 256, v12"])]
        o.append((f"s_add_u32 m0, s11, s10\nv_add_u32 v15, s10, v14\nbuffer_load_dwordx4 v15, {srd(S_T0)}, 0 offen lds", "HA"))
        o.append((f"s_add_u32 m0, s11, 4096\nv_add_u32 v15, 4096, v14\nbuffer_load_dwordx4 v15, {srd(S_T0)}, 0 offen lds", "HA"))
        return o
    e("s_and_b32 s8, s2, 7\ns_lshr_b32 s9, s2, 3\ns_mul_hi_u32 s10, s9, 0x24924925")
    e("s_mul_i32 s11, s10, 7\ns_sub_u32 s93, s9, s11\ns_lshl_b32 s92, s8, 2\ns_add_u32 s92, s92, s10")
    e("s_mul_i32 s95, s5, 14\ns_add_u32 s95, s95, s4\ns_lshl_b32 s69, s93, 7")
    e("v_mul_u32_u24 v9, 896, v20\nv_lshl_add_u32 v9, v21, 4, v9\nv_bfe_u32 v23, v1, 4, 1\nv_lshlrev_b32 v23, 6, v23\nv_xor_b32 v9, v23, v9")
    e(f"v_lshrrev_b32 v23, 7, v0\nv_mul_u32_u24 v23, {UREG - 2048}, v23\nv_lshl_add_u32 v0, v0, 4, v23\nv_add_u32 v0, {L_UB + 4096}, v0")
    e(f"s_lshr_b32 s8, s3, 2\ns_mul_i32 s8, s8, 14336\ns_lshl_b32 s9, s7, 10\ns_add_u32 s8, s8, s9\ns_and_b32 s9, s3, 3\ns_lshl_b32 s9, s9, 8\ns_add_u32 s8, s8, s9\ns_add_u32 s68, s8, {WS_CS}")
    e(f"s_lshl_b32 s8, s6, 2\ns_and_b32 s9, s3, 3\ns_add_u32 s8, s8, s9\ns_mul_i32 s70, s8, {HSTR}\ns_lshl_b32 s10, s7, 12\ns_add_u32 s70, s70, s10\ns_lshr_b32 s10, s3, 2\ns_lshl_b32 s11, s10, 11\ns_add_u32 s70, s70, s11\ns_add_u32 s70, s70, {WS_H}")
    e(f"s_lshr_b32 s71, s8, 1\ns_lshl_b32 s71, s71, 8\ns_and_b32 s8, s8, 1\ns_mul_i32 s8, s8, 112\ns_add_u32 s71, s71, s8\ns_lshl_b32 s8, s7, 3\ns_add_u32 s71, s71, s8\ns_lshl_b32 s8, s10, 2\ns_add_u32 s71, s71, s8\ns_add_u32 s71, s71, {WS_FH}")
    STL = f"s_lshl_b32 s8, s6, 11\ns_lshl_b32 s9, s3, 8\ns_add_u32 s8, s8, s9\ns_add_u32 s8, s8, {WS_ST}\nv_and_b32 v123, 240, v12\nbuffer_load_dwordx4 v[128:131], v123, {srd(S_WS)}, s8 offen sc1"
    CSL = f"v_lshlrev_b32 v122, 3, v1\nv_and_b32 v122, 255, v122\nbuffer_load_dwordx2 v[124:125], v122, {srd(S_WS)}, s68 offen sc1"
    def w0(body):
        L = a.label("Lw0")
        return f"s_cmp_lg_u32 s3, 0\ns_cbranch_scc1 {L}\n{body}\n{L}:"
    phases = [[q] for q in range(7)] + [[7, 8], [9, 10], [11, 12], [13]]
    nextu = 9
    for pi, qs in enumerate(phases):
        need = []
        for q in qs: need += [("U", 2*q), ("U", 2*q+1)] if q < 7 else [("U", 7+q)]
        if pi == 3: need.append("KVL")
        if pi == 8: need.append("KVS")
        if pi == 10: need.append(("HS", 0))
        a.wait_vm(need, " lgkmcnt(0)")
        a.lq = []
        e("s_barrier")
        if pi in (0, 2, 4, 6, 7, 8, 9, 10): a.stamp({0:1, 2:2, 4:3, 6:4, 7:5, 8:6, 9:7, 10:18}[pi])
        s0 = 4*qs[0]; n = 4*len(qs)
        steps_m = list(range(max(0, s0-2), s0 + n - 2))
        mm = [(s, m) for s in steps_m for m in mfmas(s)]
        nsl = len(mm)
        slots = [[] for _ in range(nsl)]
        ex = []; exV = []; post = {}
        if 1 <= pi <= 6:
            ex += dma(nextu) + dma(nextu + 1); nextu += 2
        if pi == 1: ex += [w0(f"buffer_load_dword v139, off, {srd(S_DBG)}, 0 sc1")] + touches()
        if pi == 3: exV = kv_compute(0)
        if pi == 4: exV = kv_compute(1)
        if pi == 5: post[2] = "KVST"; slots[0] += [["ds_read_b64 v[48:49], v115", "KB"], ["ds_read_b64 v[50:51], v115 offset:8", "KB"]]; post[4] = "TOKEN"
        if pi == 6: slots[0] += [f"v_mov_b32 v14, {L_LF + 96}", ["ds_read_b32 v139, v14", "TK"]]; post[3] = "TOKRD"; ex += ha_dma() + [(CSL, "CSL"), (STL, "CSL")]
        if pi == 7: ex += w2_shared(0, 3) + w2_shared(1, 4); post[12] = "CHK"
        if pi == 8:
            post[1] = "FK"; ex += w2_shared(2, 5) + w2_shared(3, 6)
            slots[0] += [f"v_and_b32 v14, 31, v1\ns_and_b32 s8, s3, 3\ns_lshl_b32 s8, s8, 8\ns_add_u32 s8, s8, {L_ST}\nv_lshl_add_u32 v14, v14, 3, s8", [f"ds_read_b64 v[{ST0}:{ST0+1}], v14", "STR"],
                         f"v_lshrrev_b32 v{CSA}, 5, v1\ns_lshr_b32 s8, s3, 2\ns_lshl_b32 s8, s8, 7\ns_add_u32 s8, s8, {L_C2}\nv_lshl_add_u32 v{CSA}, v{CSA}, 4, s8"]
            rd, ops = epi_ops(0, 0, ET, False); slots[1] += rd; post[3] = ("EW", 0, 0); exV = ("late", 3, [f"v_mul_f32 v{ST0+1}, {fbits(-LOG2E)}, v{ST0+1}"] + ops)
        if pi == 9:
            rd, ops = epi_ops(0, 1, ET, False); slots[0] += rd; post[2] = ("EW", 0, 1); exV = ("late", 2, ops)
            e(f"s_lshr_b32 s94, s2, 5\ns_lshl_b32 s94, s94, 7\ns_and_b32 s8, s2, 3\ns_lshl_b32 s8, s8, 10\ns_add_u32 s94, s94, s8\ns_add_u32 s94, s94, {WS_FK}")
        if pi == 10:
            fh_store(a, 0)
            ex += [w0("v_and_b32 v14, 124, v13\n" + poll_ins(15, 14, 94)),
                   f"v_mov_b32 v112, 0\nv_mov_b32 v113, 0\nv_mov_b32 v114, 0\nv_mov_b32 v115, 0\nds_write_b128 v0, v[112:115]", f"v_mov_b32 v116, {L_LF + 128}\nds_write_b32 v116, v112"]
            e("s_sub_u32 s98, s3, 4\ns_lshl_b32 s99, s98, 12\ns_mul_i32 s98, s98, 14")
            for i_ in range(8, 12):
                Lz = a.label("Lz")
                ex.append(f"s_cmp_lt_u32 s3, 4\ns_cbranch_scc1 {Lz}\n" + w2_own(i_, SLOT[i_])[0][0] + f"\n{Lz}:")
        off = 0 if pi else 0
        if pi == 0:
            for s in (0, 1):
                for r_ in reads(s): x(r_)
            slots[0] += reads(2); slots[1] += reads(3)
        else:
            for k in range(n):
                s = s0 + k
                idx = 0 if k == 0 else (1 if k == 1 else 2*(k-2) + 1)
                if k >= 2: idx = max(idx, 2*(k-2) + 1)
                slots[min(idx, nsl-1)] += reads(s)
        for i, f_ in enumerate(ex): slots[i*max(1, nsl-1)//max(1, len(ex))].append(f_)
        if isinstance(exV, tuple):
            _, st_, ops = exV
            for i, f_ in enumerate(ops): slots[st_ + i*((12 if pi == 9 else nsl) - st_)//len(ops)].append(f_)
        else:
            for i, f_ in enumerate(exV): slots[i*nsl//len(exV)].append(f_)
        for i, (s, m) in enumerate(mm):
            if s >= s0 and i % 2 == 0: a.wait_l(("R", s))
            x(m)
            pz = post.get(i)
            if pz == "KVST":
                a.wait_l("KB")
                x((f"buffer_store_dwordx4 v[48:51], v116, {srd(S_WS)}, s15 offen sc1", "KVS"))
            if pz == "TOKEN":
                L = a.label("Ltk2")
                e(f"s_cmp_lg_u32 s3, 0\ns_cbranch_scc1 {L}")
                token_get(a, 139)
                e(f"v_mov_b32 v14, {L_LF + 96}\nds_write_b32 v14, v139\n{L}:")
            if pz == "TOKRD":
                a.wait_l("TK"); e(f"v_readfirstlane_b32 s{S_TOK}, v139")
            if pz == "FK":
                e(w0(f"s_lshl_b32 s8, s43, 2\ns_add_u32 s8, s8, {WS_FK}\nv_mov_b32 v14, s{S_TOK}\nv_and_b32 v15, 3, v1\nv_lshlrev_b32 v15, 10, v15\nbuffer_store_dword v14, v15, {srd(S_WS)}, s8 offen sc1"))
            if pz == "CHK":
                a.wait_vm(["CSL"])
                Lchk = a.label("Lcs"); Lok = a.label("Lcsok")
                e("s_mov_b32 s10, 0")
                e(f"{Lchk}:")
                e(f"v_cmp_ne_u32 vcc, s{S_TOK}, v125\nv_cmp_ne_u32 s[8:9], s{S_TOK}, v130\ns_or_b64 vcc, vcc, s[8:9]\ns_cbranch_vccz {Lok}")
                e(f"s_add_u32 s10, s10, 1\ns_cmp_gt_u32 s10, {O.spin}\ns_cbranch_scc1 {Lok}")
                e(f"s_sleep 8\n{CSL}\n{STL}\ns_waitcnt vmcnt(0)\ns_branch {Lchk}")
                e(f"{Lok}:")
                x(f"s_lshl_b32 s8, s3, 7\ns_add_u32 s9, s8, {L_C2}\nv_lshrrev_b32 v122, 1, v122\nv_add_u32 v122, s9, v122\nds_write_b32 v122, v124")
                x(f"s_add_u32 s9, s8, {L_ST}\nv_lshrrev_b32 v123, 1, v123\nv_add_u32 v123, s9, v123\nds_write_b64 v123, v[128:129]")
            if isinstance(pz, tuple): a.wait_l(("CSR", pz[1], pz[2]))
            for f_ in slots[i]: x(f_)
    Lk2 = a.label("Lpk2")
    e(f"s_cmp_lg_u32 s3, 0\ns_cbranch_scc1 {Lk2}")
    e("s_waitcnt vmcnt(0)")
    poll_check(a, 15, 14, 94, 32)
    e(f"{Lk2}:")
    e("s_waitcnt lgkmcnt(0)")
    e("s_barrier")
    a.stamp(21)
    a.lq = []
    for m in mfmas(54) + mfmas(55): e(m)
    e("v_lshrrev_b32 v2, 5, v1\nv_bfe_u32 v3, v1, 2, 2\nv_lshl_add_u32 v5, v2, 2, v3\nv_lshlrev_b32 v5, 7, v5")
    e("v_bfe_u32 v3, v1, 4, 1\nv_lshl_add_u32 v5, v3, 5, v5\nv_and_b32 v3, 3, v1\nv_lshl_add_u32 v5, v3, 3, v5")
    e("v_bfe_u32 v3, v1, 3, 1\nv_lshl_add_u32 v5, v3, 6, v5\nv_add_u32 v5, s99, v5\nv_xor_b32 v6, 64, v5\nv_add_u32 v7, 65536, v5\nv_add_u32 v8, 65536, v6")
    rd0, ops0 = epi_ops(1, 0, 16, True); rd1, ops1 = epi_ops(1, 1, ET, True)
    for z in rd0 + rd1: x(z)
    Lu2 = a.label("Lu2"); Lu1 = a.label("Lu1")
    e(f"s_cmp_lt_u32 s3, 4\ns_cbranch_scc1 {Lu1}")
    for i in range(8):
        for o_ in w2_tr(i, SLOT[i]): e(o_)
    for i in (12, 13): e(w2_own(i, SLOT[i])[0][0])
    e(f"s_branch {Lu2}")
    e(f"{Lu1}:")
    e("s_lshl_b32 s9, s2, 1\ns_add_u32 s9, s9, s5\ns_lshl_b32 s9, s9, 12")
    e(f"s_add_u32 s{S_T0}, s40, s9\ns_addc_u32 s{S_T0+1}, s41, 0\ns_mov_b32 s{S_T0+2}, 4096\ns_mov_b32 s{S_T0+3}, 0x20000")
    e(f"s_mul_i32 s10, s3, {UREG}\ns_add_u32 s10, s10, {L_UB}\ns_lshl_b32 s9, s4, 2\ns_sub_u32 s11, 4, s9")
    e("v_lshrrev_b32 v14, 4, v1\nv_lshlrev_b32 v14, 4, v14\nv_xor_b32 v14, v14, v12\nv_add_u32 v14, s11, v14")
    for i in range(4):
        e(f"s_add_u32 m0, s10, {i*1024}\nv_xor_b32 v15, {64*i}, v14\nv_add_u32 v15, {i*1024}, v15\nbuffer_load_dwordx4 v15, {srd(S_T0)}, 0 offen sc1 lds")
    e("s_lshl_b32 s10, s2, 1\ns_add_u32 s10, s10, s5\ns_lshl_b32 s10, s10, 1")
    e(f"buffer_load_ushort v0, off, {srd(S_SSMD)}, s10")
    e(f"{Lu2}:")
    a.stamp(8)
    e("s_setprio 2\ns_waitcnt lgkmcnt(0)")
    for z in ops0 + ops1: x(z)
    a.stamp(19)
    e("s_waitcnt vmcnt(0)")
    fh_store(a, 1)
    a.stamp(20)
    e(f"s_lshl_b32 s8, s3, 2\ns_add_u32 s8, s8, {L_LF + 64}\nv_mov_b32 v3, s8\nds_write_b32 v3, v14")
    a.stamp(9)
    Lg2 = a.label("Lg2"); Lfin = a.label("Lfin")
    e(f"s_setprio 0\ns_cmp_ge_u32 s3, 4\ns_cbranch_scc1 {Lg2}")
    conv_loop(a)
    a.stamp(10)
    conv_final(a)
    a.stamp(12)
    lower_tail(a)
    e(f"s_branch {Lfin}")
    e(f"{Lg2}:")
    gemm2(a)
    e(f"{Lfin}:")
    final(a)

CR = 16; CS_ = 52; CACC = 104; CB = [88, 92, 96, 100]
def conv_loop(a):
    e = a.e
    a.c("--- conv loop")
    if O.ep: e("s_setprio 0")
    Lskip = a.label("Lnoconv"); Lagain = a.label("Lconv2")
    Lup0 = a.label("Lup0")
    e(f"s_cmp_lt_u32 s3, 4\ns_cbranch_scc1 {Lup0}")
    e(f"s_branch {Lskip}")
    e(f"{Lup0}:")
    e("s_mov_b32 s13, s3")
    e(f"{Lagain}:")
    e("s_bfe_u32 s8, s3, 0x10001\ns_and_b32 s9, s3, 1")
    e("s_lshl_b32 s11, s9, 9\ns_add_u32 s11, s11, 1024\ns_cmp_ge_u32 s13, 4\ns_cselect_b32 s11, s11, 0")
    e("s_cselect_b32 s12, 7, 8")
    e("s_cselect_b64 s[88:89], -1, 0")
    t = 120
    e(f"v_and_b32 v{t}, 15, v1\nv_lshrrev_b32 v{t+1}, 4, v1")
    e(f"v_lshlrev_b32 v{t+2}, s12, v{t+1}\nv_add_u32 v{t+2}, s11, v{t+2}")
    e(f"v_lshl_add_u32 v2, v{t}, 3, v{t+2}\nv_lshlrev_b32 v2, 1, v2")
    e(f"s_mul_i32 s10, s8, {HREG}\ns_add_u32 s10, s10, {L_HA}\nv_add_u32 v2, s10, v2")
    e(f"v_or_b32 v{t+3}, 8, v{t}\nv_cmp_gt_u32 vcc, 8, v{t}\nv_mov_b32 v{t+5}, s9\ns_nop 0")
    e(f"v_cndmask_b32 v{t+4}, 0, 1, vcc")
    e(f"v_cndmask_b32 v{t+3}, v{t}, v{t+3}, s[88:89]\nv_cndmask_b32 v{t+4}, v{t+5}, v{t+4}, s[88:89]")
    e(f"v_sub_u32 v{t+3}, 15, v{t+3}\nv_lshrrev_b32 v{t+5}, 7, v{t+2}\nv_add_u32 v{t+3}, v{t+3}, v{t+5}")
    e(f"v_mul_u32_u24 v{t+4}, {UREG}, v{t+4}")
    e(f"s_mul_i32 s10, s8, {2*UREG}\ns_add_u32 s10, s10, {L_UB}\nv_add_u32 v{t+4}, s10, v{t+4}")
    for k, reg in ((0, 3), (1, 4)):
        e(f"v_add_u32 v{t+5}, {k}, v{t+3}\nv_and_b32 v{t+6}, 15, v{t+5}\nv_lshlrev_b32 v{t+5}, 8, v{t+5}\nv_lshl_or_b32 v{t+5}, v{t+6}, 4, v{t+5}\nv_add_u32 v{reg}, v{t+4}, v{t+5}")
    e("s_mov_b64 vcc, s[88:89]")
    R = CR; S = CS_
    queue = []
    NB = 9
    def rdA(blk):
        it, q = divmod(blk, 8)
        outs = []
        if q == 0 and it > 0: outs.append(8)
        e(f"ds_read_b128 v[{R+4*q}:{R+4*q+3}], v2 offset:{16*blk}"); queue.append(("A", it, q))
    def rdA8(it):
        e(f"ds_read_b128 v[{R+32}:{R+35}], v2 offset:{16*(8*it+8)}"); queue.append(("A", it, 8))
    def rdB(st):
        b = CB[st % 4]; tmp = 10 + (st % 2)
        e(f"v_xor_b32 v{tmp}, {16*(st % 16)}, v{3 if st < 16 else 4}\nds_read_b128 v[{b}:{b+3}], v{tmp}"); queue.append(("B", st))
    def wait_for(tags):
        idx = max([i for i, x_ in enumerate(queue) if x_ in tags], default=-1)
        if idx >= 0:
            e(f"s_waitcnt lgkmcnt({len(queue) - 1 - idx})")
            del queue[:idx+1]
    w2 = []
    w2l = []
    def al(k): return f"v_alignbit_b32 v{S+k}, v{R+k}, v{R+k-1}, 16"
    def sA(blk):
        it, q = divmod(blk, 8)
        return (f"ds_read_b128 v[{R+4*q}:{R+4*q+3}], v2 offset:{16*blk}", ("A", it, q))
    def sA8(it): return (f"ds_read_b128 v[{R+32}:{R+35}], v2 offset:{16*(8*it+8)}", ("A", it, 8))
    def sB(st):
        b = CB[st % 4]; tmp = 10 + (st % 2)
        return (f"ds_read_b128 v[{b}:{b+3}], v{tmp}", ("B", st))
    def xB(st): return f"v_xor_b32 v{10 + (st % 2)}, {16*(st % 16)}, v{3 if st < 16 else 4}"
    def L_(item): e(item[0]); queue.append(item[1])
    rdA(0); rdA(1); rdB(0); rdA(2); rdB(1); rdA(3); rdB(2); rdA(4)
    wait_for([("A", 0, 0), ("A", 0, 1)])
    for k in range(2, 8): e(al(k))
    Lout = a.label("Lconvout")
    for st in range(32):
        it, q = divmod(st, 8)
        if q < 7: needA = [("A", it, q+2)] ; nxt = [al(4*(q+1) + 4 + i) for i in range(4)]
        else: needA = [("A", it+1, 0), ("A", it+1, 1)] ; nxt = [al(k) for k in range(2, 8)]
        if st == 31: needA = []; nxt = []
        wait_for(needA + [("B", st)])
        lds = []
        if q <= 2: lds.append(sA(8*it + q + 5))
        elif q == 3: lds.append(sA8(it))
        elif it < 3:
            if q == 4: lds += [sA(8*it + 8), sA(8*it + 9)]
            else: lds.append(sA(8*it + 8 + q - 3))
        Bq = vr(CB[st % 4], 4)
        def C(i): return vr(CACC + 4*i, 4)
        def Cin(i): return C(i) if st else "0"
        e(f"v_mfma_f32_16x16x32_bf16 {C(0)}, {vr(S+4*q+2,4)}, {Bq}, {Cin(0)}")
        if st + 3 < 32: e(xB(st + 3))
        for z in lds: L_(z)
        e(f"v_mfma_f32_16x16x32_bf16 {C(2)}, {vr(S+4*q+4,4)}, {Bq}, {Cin(2)}")
        for z in nxt[:2]: e(z)
        e(f"v_mfma_f32_16x16x32_bf16 {C(1)}, {vr(R+4*q+2,4)}, {Bq}, {Cin(1)}")
        for z in nxt[2:4]: e(z)
        e(f"v_mfma_f32_16x16x32_bf16 {C(3)}, {vr(R+4*q+4,4)}, {Bq}, {Cin(3)}")
        for z in nxt[4:]: e(z)
        if st + 3 < 32: L_(sB(st + 3))
        if st == 15:
            e(f"s_cbranch_vccnz {Lout}")
    e(f"{Lout}:")
    e("s_waitcnt lgkmcnt(0)")
    Lw9 = a.label("Lw9"); Lok9 = a.label("Lok9")
    e(f"v_and_b32 v3, 3, v1\nv_lshlrev_b32 v3, 2, v3\nv_add_u32 v3, {L_LF + 80}, v3\ns_mov_b32 s9, 0\n{Lw9}:\nds_read_b32 v4, v3\ns_waitcnt lgkmcnt(0)")
    e(f"v_cmp_ne_u32 vcc, s{S_TOK}, v4\ns_cbranch_vccz {Lok9}\ns_add_u32 s9, s9, 1\ns_cmp_lt_u32 s9, {O.spin*50}\ns_cbranch_scc1 {Lw9}\n{Lok9}:")
    e(f"s_lshl_b32 s8, s13, 11\ns_add_u32 s8, s8, {L_YB}")
    e("v_add_u32 v2, s8, v12")
    e("s_nop 5")
    for a2 in range(4): e(f"ds_write_b128 v2, {vr(CACC+4*a2,4)} offset:{(a2 >> 1)*16384 + (a2 & 1)*1024}")
    e(f"s_lshl_b32 s8, s13, 2\ns_add_u32 s8, s8, {L_LF}\nv_mov_b32 v2, s8\nv_mov_b32 v3, s{S_TOK}")
    e("ds_write_b32 v2, v3")
    e(f"s_cmp_ge_u32 s13, 4\ns_cbranch_scc1 {Lskip}")
    e("s_add_u32 s13, s13, 4")
    Lw = a.label("Luf"); Lok = a.label("Lufok")
    e(f"s_and_b32 s8, s3, 2\ns_lshl_b32 s8, s8, 2\ns_add_u32 s8, s8, {L_LF + 64}\nv_and_b32 v3, 1, v1\nv_lshl_add_u32 v3, v3, 2, s8\ns_lshl_b32 s8, s13, 2\ns_add_u32 s8, s8, {L_LF + 64}\nv_writelane_b32 v3, s8, 2\ns_mov_b32 s9, 0")
    e(f"{Lw}:")
    e("ds_read_b32 v4, v3\ns_waitcnt lgkmcnt(0)")
    e(f"v_cmp_ne_u32 vcc, s{S_TOK}, v4\ns_cbranch_vccz {Lok}")
    e(f"s_add_u32 s9, s9, 1\ns_cmp_lt_u32 s9, {O.spin*50}\ns_cbranch_scc1 {Lw}")
    e(f"{Lok}:")
    e(f"s_branch {Lagain}")
    e(f"{Lskip}:")

def conv_final(a):
    e = a.e
    a.c("--- conv finalize")
    Lw = a.label("Llf"); Lok = a.label("Llfok")
    e(f"v_and_b32 v2, 7, v1\nv_lshlrev_b32 v2, 2, v2\nv_add_u32 v2, {L_LF}, v2")
    e("s_mov_b32 s12, 0x33\ns_lshl_b32 s13, s5, 1\ns_lshl_b32 s12, s12, s13\ns_mov_b32 s9, 0")
    e(f"{Lw}:")
    e("ds_read_b32 v3, v2\ns_waitcnt lgkmcnt(0)")
    e(f"v_cmp_ne_u32 vcc, s{S_TOK}, v3\ns_and_b32 s8, vcc_lo, s12\ns_cbranch_scc0 {Lok}")
    e(f"s_add_u32 s9, s9, 1\ns_cmp_lt_u32 s9, {O.spin*50}\ns_cbranch_scc1 {Lw}")
    e(f"{Lok}:")
    a.stamp(11)
    e(f"s_lshl_b32 s8, s5, 12\ns_lshl_b32 s11, s4, 9\ns_add_u32 s8, s8, s11\ns_add_u32 s8, s8, {L_YB}")
    e("v_add_u32 v2, s8, v13\nv_subrev_u32 v3, 128, v2")
    JM = [0, 1, 4, 5]
    e("v_lshrrev_b32 v16, 2, v1\nv_and_b32 v17, 3, v1\nv_sub_u32 v18, 15, v16")
    e(f"s_mul_i32 s12, s5, {2*UREG}\ns_add_u32 s12, s12, {L_UB + UREG}")
    for rr in range(2):
        Y = 24 + 28*rr
        for b in range(2):
            for a2 in range(4):
                e(f"ds_read_b32 v{Y + JM[a2] + 2*b}, v2 offset:{b*2048 + (a2 >> 1)*16384 + (a2 & 1)*1024 + rr*256}")
        e(f"s_lshl_b32 s11, s4, 3\ns_sub_u32 s11, {15 - 4*rr}, s11")
        e(f"v_sub_u32 v19, s11, v17\nv_xor_b32 v19, v19, v18\nv_lshlrev_b32 v20, 8, v18\nv_lshl_add_u32 v19, v19, 4, v20\nv_add_u32 v19, s12, v19")
        e(f"ds_read_b128 v[{Y+24}:{Y+27}], v19")
    e("s_mov_b32 exec_lo, 0")
    for rr in range(2):
        Y = 24 + 28*rr
        for u in range(2):
            for b in range(2):
                for a2 in range(4):
                    e(f"ds_read_b32 v{Y + 8 + 8*u + JM[a2] + 2*b}, v{2 if b == 0 else 3} offset:{8192 + u*2048 + (a2 >> 1)*16384 + (a2 & 1)*1024 + rr*256}")
    e("s_waitcnt lgkmcnt(0)")
    for rr in range(2):
        Y = 24 + 28*rr
        for j in range(8): e(f"v_add_f32 v{Y+8+j}, v{Y+8+j}, v{Y+16+j}\nv_add_f32 v{Y+j}, v{Y+j}, v{Y+8+j}")
    e("s_mov_b32 exec_lo, -1")
    e(f"s_lshl_b32 s8, s3, 2\ns_add_u32 s8, s8, {L_LF + 48}\nv_mov_b32 v2, s8\nv_mov_b32 v3, s{S_TOK}\nds_write_b32 v2, v3")
    e("v_lshlrev_b32 v0, 16, v0")
    e(f"s_lshl_b32 s10, s2, 1\ns_add_u32 s10, s10, s5\ns_lshl_b32 s10, s10, 12\ns_lshl_b32 s11, s4, 7\ns_add_u32 s10, s10, s11\ns_add_u32 s10, s10, {WS_Y}")
    e("v_lshlrev_b32 v16, 8, v16\nv_lshl_add_u32 v16, v17, 4, v16")
    for rr in range(2):
        Y = 24 + 28*rr
        for q in range(4):
            e(f"v_lshlrev_b32 v{Y+8}, 16, v{Y+24+q}\nv_and_b32 v{Y+9}, s14, v{Y+24+q}")
            e(f"v_fmac_f32 v{Y+7-2*q}, v0, v{Y+8}\nv_fmac_f32 v{Y+6-2*q}, v0, v{Y+9}")
        for q in range(4): e(f"v_cvt_pk_bf16_f32 v{Y+12+q}, v{Y+2*q}, v{Y+2*q+1}")
        e(f"buffer_store_dwordx4 v[{Y+12}:{Y+15}], v16, {srd(S_WS)}, s10 offen offset:{rr*64} sc1")
    e("s_nop 1")

def lds_wait(a, addr, lim=500):
    e = a.e
    Lw = a.label("Llw"); Lok = a.label("Llwok")
    e(f"v_mov_b32 v2, {addr}\ns_mov_b32 s9, 0\n{Lw}:\nds_read_b32 v3, v2\ns_waitcnt lgkmcnt(0)")
    e(f"v_cmp_ne_u32 vcc, s{S_TOK}, v3\ns_cbranch_vccz {Lok}\ns_add_u32 s9, s9, 1\ns_cmp_lt_u32 s9, {O.spin*lim}\ns_cbranch_scc1 {Lw}\n{Lok}:")

def fh_sync(a, h):
    e = a.e
    Ln = a.label("Lnp"); Lj = a.label("Lfj")
    e(f"s_cmp_lg_u32 s3, 4\ns_cbranch_scc1 {Ln}")
    e(f"s_lshl_b32 s94, s92, 8\ns_add_u32 s94, s94, {WS_FH + h*8192}")
    e(poll_ins(15, 13, 94) + "\ns_waitcnt vmcnt(0)")
    poll_check(a, 15, 13, 94, 56)
    e(f"v_mov_b32 v2, {L_LF + 144 + 4*h}\nv_mov_b32 v3, s{S_TOK}\nds_write_b32 v2, v3\ns_branch {Lj}")
    e(f"{Ln}:")
    lds_wait(a, L_LF + 144 + 4*h)
    e(f"{Lj}:")

def epi_addr(a):
    e = a.e
    e("v_lshrrev_b32 v0, 3, v1\nv_and_b32 v2, 7, v1\ns_lshl_b32 s8, s3, 3\nv_add_u32 v0, s8, v0")
    e("v_mul_u32_u24 v3, 896, v0\nv_lshl_add_u32 v3, v2, 4, v3")
    e("s_mul_i32 s43, s92, 57344\ns_lshl_b32 s9, s93, 7\ns_add_u32 s43, s43, s9")
    return [(f"buffer_load_dwordx4 v[8:11], v3, {srd(S_X)}, s43 offen", "E"),
            (f"s_lshl_b32 s70, s92, 10\ns_add_u32 s70, s70, {WS_ST}\nv_lshlrev_b32 v4, 4, v0\nbuffer_load_dwordx2 v[14:15], v4, {srd(S_WS)}, s70 offen sc1", "E")]

def lower_tail(a):
    e = a.e
    L = a.label("Lfy")
    e("s_waitcnt vmcnt(0)")
    e(f"v_mov_b32 v15, {L_LF + 128}\nv_mov_b32 v4, 1\ns_mov_b64 exec, 1\nds_add_rtn_u32 v4, v15, v4\ns_mov_b64 exec, -1\ns_waitcnt lgkmcnt(0)")
    e(f"v_readfirstlane_b32 s8, v4\ns_cmp_lg_u32 s8, 3\ns_cbranch_scc1 {L}")
    e(f"s_lshl_b32 s8, s2, 2\ns_add_u32 s8, s8, {WS_FY}\nv_mov_b32 v15, s{S_TOK}\nv_and_b32 v4, 7, v1\nv_lshlrev_b32 v4, 10, v4")
    e(f"buffer_store_dword v15, v4, {srd(S_WS)}, s8 offen sc1")
    e(f"s_lshl_b32 s94, s93, 7\ns_and_b32 s8, s92, 7\ns_lshl_b32 s8, s8, 10\ns_add_u32 s94, s94, s8\ns_add_u32 s94, s94, {WS_FY}\nv_and_b32 v14, 124, v13")
    Lchk = a.label("Lfyc"); Lok = a.label("Lfyok")
    e(f"s_mov_b32 s9, 0\n{Lchk}:")
    e(f"s_sleep 12\nbuffer_load_dword v16, v14, {srd(S_WS)}, s94 offen sc1\ns_waitcnt vmcnt(0)")
    e(f"v_cmp_ne_u32 vcc, s{S_TOK}, v16\ns_cbranch_vccz {Lok}\ns_add_u32 s9, s9, 1\ns_cmp_gt_u32 s9, {O.spin}\ns_cbranch_scc1 {Lok}\ns_branch {Lchk}\n{Lok}:")
    e("v_lshrrev_b32 v15, 3, v1\nv_lshlrev_b32 v15, 12, v15\nv_and_b32 v16, 7, v1\nv_lshl_add_u32 v15, v16, 4, v15")
    e(f"s_lshl_b32 s9, s93, 18\ns_lshl_b32 s10, s92, 7\ns_add_u32 s9, s9, s10\ns_add_u32 s9, s9, {WS_Y}")
    for i in range(8):
        e(f"s_mov_b32 m0, {L_YT + i*1040}\ns_add_u32 s10, s9, {i*32768}\nbuffer_load_dwordx4 v15, {srd(S_WS)}, s10 offen sc1 lds")
    e(f"{L}:")
    lds_wait(a, L_LF + 144)
    for z in epi_addr(a): e(z[0])

def gemm2(a):
    e = a.e; x = a.x
    a.c("=== GEMM2 (upper waves, K split 4) ===")
    AC = 16; HB = 80
    for i in range(8, 14):
        for o_ in w2_tr(i, SLOT[i]): e(o_)
    fh_sync(a, 0)
    a.stamp(13)
    a.vm_reset(); a.lq = []
    e(f"s_lshl_b32 s9, s98, 10\ns_mul_i32 s88, s92, {2*HSTR}\ns_add_u32 s88, s88, s9\ns_add_u32 s88, s88, {WS_H}\ns_add_u32 s89, s88, {HSTR}\ns_waitcnt lgkmcnt(0)")
    def hload(s):
        o = []
        for t in range(2):
            r = HB + ((s % 8)*2 + t)*4
            o.append((f"s_add_u32 s8, s{88+t}, {(s // 14)*57344 + (s % 14)*1024}\nbuffer_load_dwordx4 v[{r}:{r+3}], v12, {srd(S_WS)}, s8 offen{O.scl}", ("H", s)))
        return o
    for s in range(8):
        for z in hload(s): x(z)
    for s in range(28):
        if s == 6: fh_sync(a, 1); a.lq = []
        a.wait_vm([("H", s)])
        if s >= 14: a.wait_l(("TR", s))
        fill = []
        if s < 10: fill += w2_own(14 + s, SLOT[14 + s])
        if 16 <= s < 20: fill += w2_own(8 + s, SLOT[8 + s])
        tr = []
        i = s + 3
        if 14 <= i < 28:
            a.wait_vm([("W2", i)])
            tr = [[o_, ("TR", i)] for o_ in w2_tr(i, SLOT[i])]
        k = 0
        for mt in range(2):
            for t in range(2):
                C = vr(AC + (mt*2 + t)*16, 16)
                e(f"v_mfma_f32_32x32x16_bf16 {C}, {vr(W2R + 8*(s % 14) + 4*mt, 4)}, {vr(HB + ((s % 8)*2 + t)*4, 4)}, {C if s else 0}")
                if tr: x(tr[k])
                if k == 1:
                    for z in fill: x(z)
                k += 1
        if s + 8 < 28:
            for z in hload(s + 8): x(z)
        if s == 25:
            for z in epi_addr(a): x(z)
    a.stamp(14)
    e(f"s_lshl_b32 s8, s3, 2\ns_add_u32 s8, s8, {L_LF + 160 - 16}\nv_mov_b32 v80, s8\nv_mov_b32 v81, s{S_TOK}\nds_write_b32 v80, v81")
    Lw3 = a.label("Llf3"); Lok3 = a.label("Llf3ok")
    e(f"v_and_b32 v80, 3, v1\nv_lshlrev_b32 v80, 2, v80\nv_add_u32 v80, {L_LF + 160}, v80\ns_mov_b32 s9, 0\n{Lw3}:\nds_read_b32 v81, v80\ns_waitcnt lgkmcnt(0)")
    e(f"v_cmp_ne_u32 vcc, s{S_TOK}, v81\ns_cbranch_vccz {Lok3}\ns_add_u32 s9, s9, 1\ns_cmp_lt_u32 s9, {O.spin*500}\ns_cbranch_scc1 {Lw3}\n{Lok3}:")
    e("v_and_b32 v80, 31, v1\nv_lshrrev_b32 v81, 5, v1\nv_mul_u32_u24 v80, 272, v80\nv_lshl_add_u32 v80, v81, 4, v80")
    e("s_sub_u32 s8, s3, 4\ns_mul_i32 s8, s8, 17408\nv_add_u32 v80, s8, v80\ns_nop 3")
    for mt in range(2):
        for t in range(2):
            for q in range(4):
                e(f"ds_write_b128 v80, {vr(AC + (mt*2+t)*16 + 4*q, 4)} offset:{t*32*272 + mt*128 + q*32}")

def final(a):
    e = a.e
    P2 = lambda r: f"v[{r}:{r+1}]"
    e(f"v_mul_u32_u24 v82, 1040, v2\nv_lshl_add_u32 v82, v0, 1, v82\nv_add_u32 v82, {L_YT}, v82")
    e("v_mul_u32_u24 v84, 272, v0\nv_lshl_add_u32 v84, v2, 5, v84")
    e("s_waitcnt vmcnt(0) lgkmcnt(0)")
    a.stamp(16)
    e("s_barrier")
    a.stamp(17)
    for w in range(4):
        for hh in range(2):
            r = 16 + w*8 + hh*4
            e(f"ds_read_b128 v[{r}:{r+3}], v84 offset:{w*17408 + hh*16}")
    for i in range(8): e(f"ds_read_u16 v{96+i}, v82 offset:{i*128}")
    e(f"s_mov_b32 s11, {fbits(-LOG2E)}")
    for q in range(4): e(f"v_lshlrev_b32 v{104+2*q}, 16, v{8+q}\nv_and_b32 v{105+2*q}, s14, v{8+q}")
    e("v_mul_f32 v6, v15, v15\nv_mul_f32 v7, v14, v15")
    for i in range(8): e(f"v_fma_f32 v{112+i}, v{104+i}, v15, -v7")
    e("s_waitcnt lgkmcnt(8)")
    for i in range(0, 8, 2): e(f"v_pk_add_f32 {P2(16+i)}, {P2(16+i)}, {P2(24+i)}\nv_pk_add_f32 {P2(32+i)}, {P2(32+i)}, {P2(40+i)}")
    for i in range(0, 8, 2): e(f"v_pk_add_f32 {P2(32+i)}, {P2(16+i)}, {P2(32+i)}")
    for i in range(8): e(f"v_mul_f32 v{32+i}, v6, v{32+i}")
    for i in range(8): e(f"v_mul_f32 v{40+i}, s11, v{32+i}")
    e("s_waitcnt lgkmcnt(0)")
    for i in range(8): e(f"v_exp_f32 v{40+i}, v{40+i}\nv_lshlrev_b32 v{96+i}, 16, v{96+i}")
    for i in range(8): e(f"v_add_f32 v{40+i}, 1.0, v{40+i}\nv_mul_f32 v{112+i}, v{112+i}, v{96+i}")
    for i in range(8): e(f"v_rcp_f32 v{40+i}, v{40+i}\nv_mul_f32 v{112+i}, v{112+i}, v{32+i}")
    e("s_nop 0")
    for i in range(8): e(f"v_fma_f32 v{104+i}, v{112+i}, v{40+i}, v{104+i}")
    for q in range(4): e(f"v_cvt_pk_bf16_f32 v{120+q}, v{104+2*q}, v{105+2*q}")
    e(f"buffer_store_dwordx4 v[120:123], v3, {srd(S_OUT)}, s43 offen")
    a.stamp(15)

def aux_path(a):
    e = a.e; x = a.x
    a.c("=== AUX ===")
    a.vm_reset()
    e("s_sub_u32 s4, s2, 224\ns_lshl_b32 s5, s4, 3\ns_add_u32 s5, s5, s3")
    Lnt = a.label("Lnt")
    e(f"s_cmp_lg_u32 s5, 0\ns_cbranch_scc1 {Lnt}")
    e("s_memrealtime s[8:9]\ns_waitcnt lgkmcnt(0)\ns_or_b32 s8, s8, 1\nv_mov_b32 v2, s8")
    e(f"buffer_store_dword v2, off, {srd(S_DBG)}, 0 sc1")
    e(f"{Lnt}:")
    e("v_lshrrev_b32 v2, 3, v1\nv_and_b32 v3, 7, v1\nv_lshrrev_b32 v4, 4, v1\nv_and_b32 v5, 15, v1")
    e("s_and_b32 s8, s4, 7\ns_lshr_b32 s9, s4, 3\ns_lshr_b32 s10, s8, 1\ns_lshl_b32 s10, s10, 2\ns_add_u32 s10, s10, s9")
    e("s_and_b32 s8, s8, 1\ns_mul_i32 s8, s8, 14\ns_add_u32 s12, s8, s10")
    e("s_cmp_ge_u32 s10, 14\ns_cselect_b32 s13, 0x80000000, 0")
    e("v_mul_u32_u24 v7, 3584, v2\nv_lshl_add_u32 v7, v3, 4, v7\nv_or_b32 v7, s13, v7")
    e("s_and_b32 s8, s4, 7\ns_lshl_b32 s8, s8, 8\ns_lshr_b32 s9, s4, 3\ns_lshl_b32 s9, s9, 6\ns_add_u32 s8, s8, s9\ns_lshl_b32 s9, s3, 3\ns_add_u32 s6, s8, s9")
    e("v_mul_u32_u24 v8, 896, v2\nv_lshl_add_u32 v8, v3, 4, v8\ns_mul_i32 s7, s6, 896")
    e("s_and_b32 s8, s3, 3\ns_mul_i32 s8, s8, 28672\ns_lshl_b32 s9, s12, 7\ns_add_u32 s8, s8, s9")
    for i in range(14):
        x((f"s_add_u32 s9, s8, {i*114688}\nbuffer_load_dwordx4 v[{48+4*i}:{51+4*i}], v7, {srd(S_WSEL)}, s9 offen", ("CS", i)))
        if i == O.apace:
            a.wait_vm([("CS", O.apace)])
            x((f"buffer_load_dword v15, off, {srd(S_DBG)}, 0 sc1", "TOK"))
    for j in range(7):
        x((f"buffer_load_dwordx4 v[{104+4*j}:{107+4*j}], v8, {srd(S_X)}, s7 offen offset:{j*128}", "XS"))
    C = 16
    for i in range(14):
        a.wait_vm([("CS", i)])
        for q in range(4):
            r = 48 + 4*i + q
            if i == 0: e(f"v_lshlrev_b32 v{C+2*q}, 16, v{r}\nv_and_b32 v{C+2*q+1}, s14, v{r}")
            else: e(f"v_lshlrev_b32 v{24+2*q}, 16, v{r}\nv_and_b32 v{25+2*q}, s14, v{r}")
        if i:
            for q in range(8): e(f"v_add_f32 v{C+q}, v{C+q}, v{24+q}")
    a.stamp(3)
    e("s_nop 1")
    for q in range(4): e(f"v_permlane32_swap_b32 v{C+q}, v{C+4+q}")
    e("s_nop 1")
    for q in range(4): e(f"v_add_f32 v{C+q}, v{C+q}, v{C+4+q}")
    e("s_nop 1")
    for q in range(2): e(f"v_permlane16_swap_b32 v{C+q}, v{C+2+q}")
    e("s_nop 1")
    for q in range(2): e(f"v_add_f32 v{C+q}, v{C+q}, v{C+2+q}")
    e("s_nop 1")
    for q in range(2): e(f"v_add_f32_dpp v{C+q}, v{C+q}, v{C+q} row_ror:8 row_mask:0xf bank_mask:0xf")
    e("v_lshrrev_b32 v24, 5, v1\nv_bfe_u32 v25, v1, 4, 1\nv_lshlrev_b32 v26, 5, v3\nv_lshl_add_u32 v26, v24, 4, v26\nv_lshl_add_u32 v26, v25, 3, v26")
    e("s_lshl_b32 s8, s3, 8\nv_add_u32 v26, s8, v26")
    e(f"ds_write_b64 v26, v[{C}:{C+1}]")
    e("s_waitcnt lgkmcnt(0)\ns_barrier")
    e("s_lshr_b32 s8, s3, 2\ns_lshl_b32 s9, s8, 10\nv_add_u32 v26, s9, v13")
    for q in range(4): e(f"ds_read_b32 v{28+q}, v26 offset:{q*256}")
    e("s_and_b32 s9, s3, 3\ns_cmp_lg_u32 s9, 0\ns_cselect_b32 s9, 0x80000000, s13\nv_lshlrev_b32 v27, 3, v1\nv_or_b32 v27, s9, v27")
    e("s_mov_b32 s10, s8")
    a.wait_vm(["TOK"])
    token_get(a, 15)
    e("s_waitcnt lgkmcnt(0)")
    e(f"v_add_f32 v28, v28, v29\nv_add_f32 v30, v30, v31\nv_add_f32 v28, v28, v30\nv_mov_b32 v29, s{S_TOK}")
    e(f"s_mul_i32 s8, s10, 14336\ns_lshl_b32 s9, s12, 9\ns_add_u32 s8, s8, s9\ns_add_u32 s8, s8, {WS_CS}")
    x((f"buffer_store_dwordx2 v[28:29], v27, {srd(S_WS)}, s8 offen sc1", "CST"))
    a.wait_vm(["XS"])
    e("v_mov_b32 v36, 0x3f803f80\nv_mov_b32 v32, 0\nv_mov_b32 v33, 0\nv_mov_b32 v34, 0\nv_mov_b32 v35, 0")
    for r in range(104, 132):
        e(f"v_dot2_f32_bf16 v{32 + 2*(r&1)}, v{r}, v36, v{32 + 2*(r&1)}\nv_dot2_f32_bf16 v{33 + 2*(r&1)}, v{r}, v{r}, v{33 + 2*(r&1)}")
    e("s_nop 2\nv_add_f32 v32, v32, v34\nv_add_f32 v33, v33, v35\ns_nop 1")
    for pat in ("quad_perm:[1,0,3,2]", "quad_perm:[2,3,0,1]", "row_half_mirror"):
        e(f"v_add_f32_dpp v32, v32, v32 {pat} row_mask:0xf bank_mask:0xf\nv_add_f32_dpp v33, v33, v33 {pat} row_mask:0xf bank_mask:0xf\ns_nop 1")
    e(f"v_mul_f32 v32, {fbits(1.0/448)}, v32\nv_mul_f32 v33, {fbits(1.0/448)}, v33\nv_fma_f32 v33, -v32, v32, v33\nv_max_f32 v33, 0, v33")
    e(f"v_add_f32 v33, {fbits(1e-5)}, v33\nv_rsq_f32 v33, v33\nv_mov_b32 v34, s{S_TOK}\nv_mov_b32 v35, s{S_TOK}")
    e(f"s_lshl_b32 s8, s6, 4\ns_add_u32 s8, s8, {WS_ST}\nv_lshlrev_b32 v26, 4, v2")
    e(f"buffer_store_dwordx4 v[32:35], v26, {srd(S_WS)}, s8 offen sc1")
    a.stamp(4)

def build():
    a = Gen()
    prologue(a)
    a.e("s_cmp_ge_u32 s2, 224\ns_cbranch_scc1 Laux")
    main_path(a)
    a.stamp_flush()
    a.e("s_endpgm")
    a.e("Laux:")
    aux_path(a)
    a.stamp_flush()
    a.e("Lend:")
    a.e("s_endpgm")
    a.e("Lcode_end:")
    k = NAME + "_kernel"
    out = [f"; @launch grid=(256,1,1) block=(512,1,1) lds={LDS_TOTAL}",
           '.amdgcn_target "amdgcn-amd-amdhsa--gfx950"\n.text', kernel_header(k), a.text(),
           '.section .rodata,"a"', kernel_desc(k, 256, 256)]
    return "\n".join(out) + "\n"

if __name__ == "__main__":
    for arg in sys.argv[1:]:
        if arg == "stamps": O.stamps = True
        elif arg == "cyc": O.cyc = True
        elif arg.startswith("hb="): O.hb = int(arg[3:])
        elif arg == "gt": O.gt = True
        elif arg.startswith("gtp="): O.gtp = int(arg[4:])
        elif arg.startswith("glt="): O.glt = int(arg[4:]); O.touch = False
        elif arg.startswith("skp="): O.skp = int(arg[4:])
        elif arg.startswith("wtp="): O.wtp = int(arg[4:])
        elif arg.startswith("ap="): O.apace = int(arg[3:])
        elif arg == "nopk": O.pk = False
        elif arg == "noep": O.ep = False
        elif arg == "hf": O.hfirst = True
        elif arg == "nog2p": O.g2p = False
        elif arg == "noct": O.ctouch = False
        elif arg == "notlb": O.tlb = False
        elif arg == "kd1": O.kd = 1; O.kv0 = False
        elif arg.startswith("rr="): O.rr = int(arg[3:])
        elif arg.startswith("rf="): O.rf = int(arg[3:])
        elif arg.startswith("rs="): O.rs = int(arg[3:])
        elif arg == "nogt": O.gt = False
        elif arg == "kv0": O.kv0 = True; O.kd = 0
        elif arg.startswith("w6="): O.w6 = int(arg[3:])
        elif arg == "sc1": O.scl = " sc1"
        elif arg == "notouch": O.touch = False
        elif arg.startswith("kt="): O.ktail = int(arg[3:])
    print(build())
```
